```python
import torch

def _softmax(x, axis=-1):
    return torch.softmax(x, dim=axis)

def _gelu(x):
    return torch.nn.functional.gelu(x, approximate='tanh')

def _silu(x):
    return torch.nn.functional.silu(x)

def _sigmoid(x):
    return torch.sigmoid(x)

def _layernorm(x, axis=-1, eps=1e-05):
    m = x.mean(dim=axis, keepdim=True)
    v = x.var(dim=axis, keepdim=True, unbiased=False)
    return (x - m) / torch.sqrt(v + eps)

def _scatter_add(tgt, idx, src, axis=0):
    return tgt.clone().index_add_(axis, idx, src)

def _segment_sum(src, seg, n):
    out = torch.zeros((n,) + src.shape[1:], dtype=src.dtype)
    return out.index_add_(0, seg, src)

def _pad(x, pw):
    flat = tuple((v for pair in reversed(pw) for v in pair))
    return torch.nn.functional.pad(x, flat)
kernel_name = 'adaLN_cond__sliding_local_dilated__dense_activation_relu__prompt'

def setup_inputs():

    _w = lambda a: (lambda t: t.to(torch.bfloat16) if t.is_floating_point() else t)(torch.as_tensor(a))

    def _A_setup():
        B, S, D = (1, 2048, 512)
        return {'x': _w((lambda *s: torch.randn(*s, dtype=torch.bfloat16) * 0.05)(B, S, D)), 'wqkv': _w((lambda *s: torch.randn(*s, dtype=torch.bfloat16) * 0.05)(D, 3 * D)), 'wo': _w((lambda *s: torch.randn(*s, dtype=torch.bfloat16) * 0.05)(D, D))}
    _A_in = _A_setup()

    def _B_setup():
        B, S, D, Dff = (1, 2048, 512, 1376)
        return {'x': _w((lambda *s: torch.randn(*s, dtype=torch.bfloat16) * 0.05)(B, S, D)), 'w1': _w((lambda *s: torch.randn(*s, dtype=torch.bfloat16) * 0.05)(D, Dff)), 'w2': _w((lambda *s: torch.randn(*s, dtype=torch.bfloat16) * 0.05)(Dff, D))}
    _B_in = _B_setup()
    return {'A_x': _A_in['x'], 'A_wqkv': _A_in['wqkv'], 'A_wo': _A_in['wo'], 'B_x': _B_in['x'], 'B_w1': _B_in['w1'], 'B_w2': _B_in['w2'], 'c': _w((lambda *s: torch.randn(*s, dtype=torch.bfloat16) * 0.1)(1, 512) * 8.0), 'w_mod': _w((lambda *s: torch.randn(*s, dtype=torch.bfloat16) * 0.1)(512, 6 * 512) * 512 ** (-0.5) * 8.0)}

def reference(A_x, A_wqkv, A_wo, B_x, B_w1, B_w2, c, w_mod):

    def _A_ref(x, wqkv, wo):
        B, S, D = x.shape
        H = 32
        Dh = D // H
        W, dil = (8, 2)
        qkv = (lambda x, *d: x.permute(*d))((x @ wqkv).reshape(B, S, 3, H, Dh), 2, 0, 3, 1, 4)
        q, k, v = (qkv[0], qkv[1], qkv[2])
        scale = Dh ** (-0.5)
        pos = torch.arange(S)
        off = torch.arange(W) * dil
        idx = pos[:, None] - off[None, :]
        mask = idx >= 0
        idx_c = torch.where(mask, idx, 0).reshape(-1)
        kg = k[:, :, idx_c, :].reshape(B, H, S, W, Dh)
        vg = v[:, :, idx_c, :].reshape(B, H, S, W, Dh)
        logits = torch.einsum('bhsd,bhswd->bhsw', q, kg) * scale
        logits = torch.where(mask[None, None, :, :], logits, -1000000000.0)
        attn = _softmax(logits, axis=-1)
        o = torch.einsum('bhsw,bhswd->bhsd', attn, vg)
        return (lambda x, *d: x.permute(*d))(o, 0, 2, 1, 3).reshape(B, S, D) @ wo

    def _B_ref(x, w1, w2):
        h = torch.einsum('bsd,df->bsf', x, w1)
        zero = torch.zeros_like(h)
        h = torch.maximum(h, zero)
        return torch.einsum('bsf,fd->bsd', h, w2)
    x = A_x
    mod = (_silu(c) @ w_mod).reshape(c.shape[0], 6, 1, -1)
    sa, ca, ga, sb, cb, gb = (mod[:, 0].clone(), mod[:, 1].clone(), mod[:, 2].clone(), mod[:, 3].clone(), mod[:, 4].clone(), mod[:, 5].clone())
    h = _layernorm(x, axis=-1) * (1 + ca) + sa
    x = x + ga * _A_ref(h, A_wqkv, A_wo)
    h = _layernorm(x, axis=-1) * (1 + cb) + sb
    x = x + gb * _B_ref(h, B_w1, B_w2)
    return x
```

```python
import re

REG_RE = re.compile(r'(?<![\w.])([vas])(\d+)(?![\w])|(?<![\w.])([vas])\[(\d+):(\d+)\]')
TRANS = ('v_exp_f32', 'v_log_f32', 'v_rcp_f32', 'v_rsq_f32', 'v_sqrt_f32', 'v_sin_f32', 'v_cos_f32')

def regs_of(tok):
    out = set()
    for m in REG_RE.finditer(tok):
        if m.group(1):
            out.add((m.group(1), int(m.group(2))))
        else:
            for i in range(int(m.group(4)), int(m.group(5)) + 1):
                out.add((m.group(3), i))
    t = tok.strip().lstrip('-')
    if t in ('vcc', 'vcc_lo', 'vcc_hi'): out.add(('x', 'vcc'))
    if t in ('exec', 'exec_lo', 'exec_hi'): out.add(('x', 'exec'))
    if t == 'm0': out.add(('x', 'm0'))
    return out

def split_ops(s):
    ops, depth, cur = [], 0, ''
    for ch in s:
        if ch in '[(': depth += 1
        if ch in '])': depth -= 1
        if ch == ',' and depth == 0:
            ops.append(cur.strip()); cur = ''
        else:
            cur += ch
    if cur.strip(): ops.append(cur.strip())
    return ops

class Ins:
    __slots__ = ('text', 'op', 'kind', 'dst', 'src', 'srcC', 'srcAB', 'tag', 'maybe', 'wide', 'dpp', 'data', 'is_label', 'cond', 'nowait')
    def __init__(self, text, tag=None):
        self.text = text; self.tag = tag; self.maybe = False; self.is_label = False
        self.cond = None; self.nowait = False
        self.dst = set(); self.src = set(); self.srcC = set(); self.srcAB = set(); self.data = set()
        self.wide = False; self.dpp = False
        t = text.split(';')[0].strip()
        if t.endswith(':'):
            self.is_label = True; self.kind = 'label'; self.op = t; return
        if t.startswith('.') or not t:
            self.kind = 'dir'; self.op = t; return
        parts = t.split(None, 1)
        op = parts[0]; self.op = op
        rest = parts[1] if len(parts) > 1 else ''
        ops = split_ops(rest)
        if ops:
            last = ops[-1].split()
            mods = ' '.join(last[1:]); ops[-1] = last[0]
        else:
            mods = ''
        R = [regs_of(o) for o in ops]
        allr = set().union(*R) if R else set()
        if op.startswith('v_mfma'):
            self.kind = 'mfma'; self.dst = R[0]; self.srcAB = R[1] | R[2]; self.srcC = R[3]; self.src = R[1] | R[2] | R[3]
        elif op.startswith('v_'):
            self.kind = 'valu'
            base = op.replace('_e32', '').replace('_e64', '').replace('_dpp', '').replace('_sdwa', '')
            self.dpp = ('_dpp' in op) or ('row_' in mods) or ('quad_perm' in mods)
            if base.startswith('v_permlane') or base == 'v_swap_b32':
                self.dst = R[0] | R[1]; self.src = R[0] | R[1]
            elif base in ('v_add_co_u32', 'v_sub_co_u32', 'v_addc_co_u32', 'v_subb_co_u32', 'v_mad_u64_u32'):
                self.dst = R[0] | R[1]; self.src = set().union(*R[2:])
            elif base == 'v_nop':
                pass
            else:
                self.dst = R[0]; self.src = set().union(*R[1:]) if len(R) > 1 else set()
                if base in ('v_fmac_f32', 'v_dot2c_f32_bf16', 'v_writelane_b32', 'v_pk_fmac_f16') or self.dpp:
                    self.src |= R[0]
                if base.startswith('v_cmpx'): self.dst |= {('x', 'exec')}
                if base.startswith('v_dot'): self.srcAB = R[1] | R[2]
        elif op.startswith('ds_'):
            self.kind = 'ds'
            if op.startswith('ds_read') or op.startswith('ds_bpermute') or op.startswith('ds_permute') or op.startswith('ds_swizzle'):
                self.dst = R[0]; self.src = set().union(*R[1:])
            else:
                self.src = allr; self.data = set().union(*R[1:])
        elif op.startswith('buffer_') or op.startswith('global_'):
            self.kind = 'vmem'
            lds = (' lds' in (' ' + mods)) or ('_lds_' in op)
            if lds:
                self.src = allr | {('x', 'm0')}; self.kind = 'vmem'; self.tag = tag
                self.op = op + '@lds'
            elif '_load' in op:
                self.dst = R[0]; self.src = set().union(*R[1:])
            elif '_store' in op:
                self.src = allr
                self.data = R[0] if op.startswith('buffer_') else R[1]
                self.wide = op.endswith('x3') or op.endswith('x4')
            elif '_atomic' in op:
                self.src = allr
                if 'sc0' in mods: self.dst = R[0]
            else:
                self.src = allr
        elif op.startswith('s_load') or op.startswith('s_buffer_load') or op in ('s_memtime', 's_memrealtime'):
            self.kind = 'smem'; self.dst = R[0]; self.src = set().union(*R[1:]) if len(R) > 1 else set()
        elif op in ('s_waitcnt',):
            self.kind = 'wait'
        elif op == 's_nop':
            self.kind = 'nop'
        elif op.startswith('s_cbranch') or op == 's_branch':
            self.kind = 'branch'
            if 'vcc' in op: self.src = {('x', 'vcc')}
        elif op in ('s_barrier', 's_endpgm', 's_sleep', 's_setprio'):
            self.kind = 'misc'
        elif op.startswith('s_cmp') or op.startswith('s_bitcmp'):
            self.kind = 'salu'; self.src = allr
        elif op.startswith('s_'):
            self.kind = 'salu'; self.dst = R[0]; self.src = set().union(*R[1:]) if len(R) > 1 else set()
            if 'saveexec' in op: self.dst |= {('x', 'exec')}; self.src |= {('x', 'exec')}
            if op in ('s_addk_i32', 's_mulk_i32', 's_cmov_b32', 's_cmov_b64'): self.src |= R[0]
        else:
            raise ValueError('unknown instr: ' + text)

    def states(self):
        if self.kind in ('label', 'dir'): return 0
        if self.kind == 'nop': return int(self.text.split()[1], 0) + 1
        return 1

class Marker:
    def __init__(self, what, arg=None): self.what = what; self.arg = arg

class Prog:
    def __init__(self):
        self.items = []
        self.nlabel = 0
    def e(self, text, tag=None):
        for line in text.split('\n'):
            line = line.strip()
            if not line: continue
            self.items.append(Ins(line, tag))
    __call__ = e
    def add(self, items):
        for it in items:
            if isinstance(it, str): self.e(it)
            elif isinstance(it, tuple): self.e(it[0], it[1])
            else: self.items.append(it)
    def label(self, base='L'):
        self.nlabel += 1
        return f'{base}_{self.nlabel}'
    def wait_vm(self, tag): self.items.append(Marker('wait_vm', tag))
    def wait_vm_all(self): self.items.append(Marker('wait_vm_all'))
    def wait_lgkm_all(self): self.items.append(Marker('wait_lgkm_all'))
    def wait_lgkm(self, tag): self.items.append(Marker('wait_lgkm', tag))
    def cond_begin(self): self.items.append(Marker('cond_begin'))
    def cond_end(self): self.items.append(Marker('cond_end'))
    def comment(self, c): self.items.append(Marker('comment', c))

    def finalize(self):
        ins = self._insert_waits()
        ins = self._insert_nops(ins)
        return ins

    def _insert_waits(self):
        out = []
        vm = []
        lg = []
        cond_stack = []
        def emit_wait(v=None, l=None):
            parts = []
            if v is not None: parts.append(f'vmcnt({min(v,63)})')
            if l is not None: parts.append(f'lgkmcnt({min(l,15)})')
            out.append(Ins('s_waitcnt ' + ' '.join(parts)))
        def need(queue, idx):
            return sum(1 for e in queue[idx + 1:] if not e['maybe'])
        def retire(queue, idx):
            del queue[:idx + 1]
        for it in self.items:
            if isinstance(it, Marker):
                if it.what == 'comment':
                    out.append(Ins('; ' + it.arg)); continue
                if it.what == 'cond_begin':
                    cond_stack.append((list(vm), list(lg))); continue
                if it.what == 'cond_end':
                    svm, slg = cond_stack.pop()
                    newvm = [dict(e, maybe=True) for e in vm if not any(e is s for s in svm)]
                    newlg = [dict(e, maybe=True) for e in lg if not any(e is s for s in slg)]
                    vm = svm + newvm; lg = slg + newlg
                    continue
                if it.what == 'wait_vm':
                    idx = max([i for i, e in enumerate(vm) if e['tag'] == it.arg], default=-1)
                    if idx >= 0:
                        emit_wait(v=need(vm, idx)); retire(vm, idx)
                    continue
                if it.what == 'wait_lgkm':
                    idx = max([i for i, e in enumerate(lg) if e['tag'] == it.arg], default=-1)
                    if idx >= 0:
                        if any(e['smem'] for e in lg): emit_wait(l=0); lg = []
                        else: emit_wait(l=need(lg, idx)); retire(lg, idx)
                    continue
                if it.what == 'wait_vm_all':
                    emit_wait(v=0); vm = []; continue
                if it.what == 'wait_lgkm_all':
                    if lg: emit_wait(l=0)
                    lg = []; continue
                raise ValueError(it.what)
            ins = it
            if ins.kind in ('label', 'dir'):
                out.append(ins); continue
            if ins.kind == 'wait':
                m = re.search(r'vmcnt\((\d+)\)', ins.text)
                if m and int(m.group(1)) == 0: vm = []
                m = re.search(r'lgkmcnt\((\d+)\)', ins.text)
                if m and int(m.group(1)) == 0: lg = []
                out.append(ins); continue
            touched = ins.src | ins.dst
            vi = max([i for i, e in enumerate(vm) if e['dst'] & touched], default=-1)
            li = max([i for i, e in enumerate(lg) if e['dst'] & touched], default=-1)
            if vi >= 0 and ins.kind == 'vmem' and not (vm[vi]['dst'] & ins.src) and all(not (e['dst'] & ins.src) for e in vm):
                vi = -1
            if li >= 0 and ins.kind == 'ds' and all(not (e['dst'] & ins.src) for e in lg) and not any(e['smem'] for e in lg):
                li = -1
            v = l = None
            if vi >= 0:
                v = need(vm, vi); retire(vm, vi)
            if li >= 0:
                if any(e['smem'] for e in lg): l = 0; lg = []
                else: l = need(lg, li); retire(lg, li)
            if v is not None or l is not None: emit_wait(v, l)
            out.append(ins)
            if ins.kind == 'vmem': vm.append(dict(dst=set(ins.dst), tag=ins.tag, maybe=False))
            elif ins.kind == 'ds': lg.append(dict(dst=set(ins.dst), tag=ins.tag, maybe=False, smem=False))
            elif ins.kind == 'smem': lg.append(dict(dst=set(ins.dst), tag=ins.tag, maybe=False, smem=True))
        return out

    @staticmethod
    def _required(p, c):
        req = 0
        isv = lambda s: {r for r in s if r[0] in 'va'}
        iss = lambda s: {r for r in s if r[0] == 's' or r == ('x', 'vcc')}
        if p.kind == 'valu':
            pv = isv(p.dst); ps = iss(p.dst)
            if c.kind == 'mfma' and pv & c.src: req = max(req, 2)
            if c.kind == 'valu':
                if c.dpp and pv & c.src: req = max(req, 2)
                if c.op.startswith('v_permlane') and pv & c.src: req = max(req, 2)
                if (c.op.startswith('v_readlane') or c.op.startswith('v_readfirstlane')) and pv & c.src: req = max(req, 1)
                if p.op.replace('_e32', '').replace('_e64', '') in TRANS and pv & c.src: req = max(req, 1)
                if ps & c.src:
                    req = max(req, 4 if (c.op.startswith('v_readlane') or c.op.startswith('v_writelane')) else 2)
                if ('x', 'vcc') in ps and c.op.startswith('v_cndmask') : req = max(req, 2)
                if ('dst_sel' in p.text and 'dst_sel:DWORD' not in p.text) and pv & (c.src | c.dst): req = max(req, 1)
                if ('x', 'exec') in p.dst: req = max(req, 5)
            if c.kind == 'vmem' and ps & c.src: req = max(req, 5)
            if c.kind in ('salu', 'branch', 'smem') and ps & c.src: req = max(req, 2)
            if c.kind == 'mfma' and ('x', 'exec') in p.dst: req = max(req, 4)
        if p.kind == 'valu' and p.op.startswith('v_dot'):
            pv = isv(p.dst)
            pb = p.op.replace('_e32', '').replace('_e64', '').replace('_dpp', '')
            cb = c.op.replace('_e32', '').replace('_e64', '').replace('_dpp', '')
            if pv & (c.src | c.dst):
                if pb == cb and not (pv & c.srcAB): pass
                else: req = max(req, 3)
        if p.kind == 'mfma':
            n8 = '32x32' in p.op
            if c.kind == 'mfma':
                if p.dst & c.srcAB: req = max(req, 12 if n8 else 8)
                if p.dst & c.srcC:
                    if not (p.dst == c.srcC and p.op == c.op): req = max(req, 10 if n8 else 6)
                elif p.dst & c.dst:
                    req = max(req, 10 if n8 else 6)
            elif c.kind in ('valu', 'vmem', 'ds'):
                if p.dst & (c.src | c.dst): req = max(req, 12 if n8 else 8)
            if c.kind == 'valu' and isv(p.srcC) & c.dst: req = max(req, 7 if n8 else 3)
        if p.kind == 'salu':
            if ('x', 'm0') in p.dst and ('x', 'm0') in c.src and c.kind == 'vmem': req = max(req, 1)
        if p.kind == 'vmem' and p.wide and p.data & c.dst:
            req = max(req, 2 if c.kind in ('valu', 'mfma') else 1)
        return req

    def _insert_nops(self, ins):
        out = []
        WIN = 14
        for c in ins:
            if c.kind in ('dir',):
                out.append(c); continue
            boundary = c.kind in ('label', 'branch')
            dist = 0; need = 0
            for p in reversed(out):
                if dist >= WIN: break
                if p.kind in ('label', 'dir'): continue
                if boundary:
                    worst = {'mfma': 8, 'valu': 2}.get(p.kind, 0)
                    if p.kind == 'valu' and p.op.startswith('v_dot'): worst = 3
                    if p.kind == 'valu' and any(r[0] == 's' or r == ('x', 'vcc') for r in p.dst): worst = 5
                    if p.kind == 'salu' and ('x', 'm0') in p.dst: worst = 1
                    if p.kind == 'vmem' and p.wide: worst = 2
                    if c.kind == 'branch': worst -= 1
                    r = max(worst, self._required(p, c) if c.kind == 'branch' else 0)
                else:
                    r = self._required(p, c)
                need = max(need, r - dist)
                dist += p.states()
            while need > 0:
                n = min(need, 16)
                out.append(Ins(f's_nop {n-1}')); need -= n
            out.append(c)
        return out

def interleave(main, fill, every=1, per=1, start=0):
    out = []; fi = 0
    for i, m in enumerate(main):
        out.append(m)
        if i >= start and (i - start) % every == every - 1:
            for _ in range(per):
                if fi < len(fill): out.append(fill[fi]); fi += 1
    out.extend(fill[fi:])
    return out

def spread(main, fill, start=0, end=None):
    if end is None: end = len(main)
    n = end - start
    out = list(main[:start]); fi = 0
    for i in range(n):
        out.append(main[start + i])
        tgt = (i + 1) * len(fill) // n
        while fi < tgt:
            f = fill[fi]; fi += 1
            if isinstance(f, list): out.extend(f)
            else: out.append(f)
    out.extend(main[end:])
    return out
```

```python
import sys, os
sys.path.insert(0, os.path.dirname(os.path.abspath(__file__)))
from asmlib import *

KNAME = 'adaLN_cond__sliding_local_dilated__dense_activation_relu__prompt_kernel'

WS_EPOCH = 0
WS_HELLO = 0x400
WS_FLAG = 0x1000
WS_MOD = 0x8000
WS_O = 0x100000
WS_X1 = 0x300000
WS_ST = 0x500000
WS_H = 0x600000
H_TILE = 45056
H_CL = 4 * H_TILE
WS_DIAG = 0xE00000
WS_SIZE = 0x1000000
OOB = 0x40000000

L_H = 0
L_RING = 81920
L_MISC = 155648
SLOT = 12288

S_X, S_WQ, S_WO, S_W1, S_W2, S_WM, S_OUT, S_WS, S_C = 4, 8, 12, 16, 20, 24, 28, 32, 36
sW, sCL, sJ, sTAG = 60, 61, 62, 63
sT0, sT1, sT2, sT3, sT4, sT5 = 64, 65, 66, 67, 68, 69
sSPIN = 40
sONES = 41
sR0 = 42
sK = 44
sU0 = 46
sOB = 47
sXB = 48
sHB = 49
sFL = 50
sD0 = 51
sD1 = 52
sMW = 53
sHV = 54
sP = 55
STAMP0 = 70


def srd(b): return f's[{b}:{b+3}]'
def vr(a, n=1): return f'v{a}' if n == 1 else f'v[{a}:{a+n-1}]'
def ar(a, n=1): return f'a{a}' if n == 1 else f'a[{a}:{a+n-1}]'
def rr(r, n=1):
    return (vr if r[0] == 'v' else ar)(r[1], n)

def WVM(tag): return Marker('wait_vm', tag)
def WLG(tag): return Marker('wait_lgkm', tag)
WVMA = lambda: Marker('wait_vm_all')
WLGA = lambda: Marker('wait_lgkm_all')
def CMT(c): return Marker('comment', c)

vL16 = 255
vTAG = 254
vDP = 250
vTS = 248
vDQ = 247
vTP = 246
vLANE = 245
vG = 244
vC = 243
vHW = 241
vX2 = 232
vST = 240


class Gen:
    def __init__(self, diag=False, stop=None):
        self.p = Prog()
        self.diag = diag
        self.stop = stop
        self.nst = 0
        self.flushed = 0
        self.stamp_names = []

    def stamp(self, name):
        if not self.diag: return []
        k = self.nst; self.nst += 1
        assert k - self.flushed < 16
        self.stamp_names.append(name)
        op = 's_memrealtime' if k == 0 else 's_memtime'
        k %= 16
        return [f'{op} s[{STAMP0+2*k}:{STAMP0+2*k+1}]']

    def flush(self):
        if not self.diag: return []
        o = ['s_waitcnt lgkmcnt(0)']
        for k in range(self.flushed, self.nst):
            o.append(f'v_writelane_b32 v217, s{STAMP0+2*(k%16)}, {k}')
        self.flushed = self.nst
        return o

    def bar(self):
        return [WLGA(), 's_barrier']

    def prologue(self):
        p = self.p
        p(f's_cmp_ge_u32 s2, 256')
        p(f's_cbranch_scc1 L_END')
        p.add(self.stamp('rt0'))
        p.add(self.stamp('start'))
        p('s_load_dwordx16 s[40:55], s[0:1], 0')
        p('s_load_dwordx2 s[56:57], s[0:1], 64')
        p('s_load_dwordx2 s[58:59], s[0:1], 80')
        p(f'v_and_b32 v{vLANE}, 63, v0')
        p(f'v_lshrrev_b32 v1, 6, v0')
        p(f'v_lshlrev_b32 v{vL16}, 4, v{vLANE}')
        p(f'v_readfirstlane_b32 s{sW}, v1')
        p(f'v_lshrrev_b32 v{vG}, 4, v{vLANE}')
        p(f'v_and_b32 v{vC}, 15, v{vLANE}')
        for b, sz in ((S_X, 2048*1024), (S_WQ, 512*3072), (S_WO, 512*1024), (S_W1, 512*2752), (S_W2, 1376*1024),
                      (S_WM, 512*6144), (S_OUT, 2048*1024), (S_WS, WS_SIZE), (S_C, 1024)):
            p(f's_mov_b32 s{b+2}, {sz}')
            p(f's_mov_b32 s{b+3}, 0x00020000')
        p(f's_and_b32 s{sT0}, s2, 7')
        p(f's_lshr_b32 s{sT1}, s2, 6')
        p(f's_lshl_b32 s{sT0}, s{sT0}, 2')
        p(f's_add_u32 s{sCL}, s{sT0}, s{sT1}')
        p(f's_bfe_u32 s{sJ}, s2, 0x30003')
        p(f'v_lshlrev_b32 v1, 11, v{vG}')
        p(f'v_lshl_add_u32 v1, v{vC}, 4, v1')
        p(f'v_lshrrev_b32 v2, 3, v{vLANE}')
        p(f'v_lshrrev_b32 v3, 1, v2')
        p(f'v_lshlrev_b32 v3, 5, v3')
        p(f'v_and_b32 v4, 0x70, v{vL16}')
        p(f'v_xor_b32 v3, v3, v4')
        p(f'v_and_b32 v4, 4, v2')
        p(f'v_add_u32 v2, v2, v4')
        p(f'v_mul_u32_u24 v4, 3072, v2')
        p(f'v_add_u32 v{vDQ}, v4, v3')
        p(f'v_lshl_add_u32 v{vDP}, v2, 10, v3')
        p(f'v_add_u32 v{vDP+1}, {15*1024}, v{vDP}')
        p(f'v_add_u32 v{vDP+2}, {2*1024}, v{vDP}')
        p(f'v_add_u32 v{vDP+3}, {17*1024}, v{vDP}')
        p(f'v_mul_u32_u24 v4, 2752, v2')
        p(f'v_add_u32 v231, v4, v3')
        p.add([WLGA()])
        for b, k in ((S_X, 40), (S_WQ, 42), (S_WO, 44), (S_W1, 48), (S_W2, 50), (S_C, 52), (S_WM, 54), (S_OUT, 56), (S_WS, 58)):
            p(f's_mov_b64 s[{b}:{b+1}], s[{k}:{k+1}]')
        p(f's_load_dword s{sTAG}, s[58:59], {WS_EPOCH} glc')
        p(f's_lshl_b32 s{sR0}, s{sCL}, 6')

    def p0_loads(self):
        p = self.p
        p('s_cmp_ge_u32 s2, 96')
        p('s_cbranch_scc1 L_P0A')
        p.cond_begin()
        p(f'v_lshrrev_b32 v2, 2, v{vLANE}')
        p(f'v_and_b32 v3, 0x30, v{vL16}')
        p(f'v_mul_u32_u24 v2, {8*6144}, v2')
        p(f'v_add_u32 v2, v2, v3')
        p(f'v_lshlrev_b32 v3, 2, v{vLANE}')
        p(f's_lshl_b32 s{sT0}, s{sW}, 8')
        p(f'buffer_load_dword v200, v3, {srd(S_C)}, s{sT0} offen')
        p(f's_mul_i32 s{sT0}, s{sW}, {128*6144}')
        p(f's_lshl_b32 s{sT1}, s2, 6')
        p(f's_add_u32 s{sT0}, s{sT0}, s{sT1}')
        for i in range(8):
            p(f'buffer_load_dwordx4 {vr(160+4*i,4)}, v2, {srd(S_WM)}, s{sT0} offen')
            if i < 7: p(f's_add_u32 s{sT0}, s{sT0}, 6144')
        p.cond_end()
        p('L_P0A:')

    def x_loads(self):
        p = self.p
        p(f's_lshl_b32 s{sT0}, s{sW}, 3')
        p(f's_add_u32 s{sT0}, s{sT0}, s{sR0}')
        p(f's_cmp_lt_u32 s{sW}, 2')
        p(f's_cselect_b32 s{sT1}, 15, 32')
        p(f's_sub_i32 s{sT1}, s{sT0}, s{sT1}')
        p(f's_max_i32 s{sT1}, s{sT1}, 0')
        p(f's_lshl_b32 s{sT1}, s{sT1}, 10')
        p(f's_lshl_b32 s{sT0}, s{sT0}, 10')
        p(f's_add_u32 s{sT2}, s{sT0}, 32768')
        for T, (so, io) in enumerate(((sT1, 0), (sT0, 0), (sT0, 1024), (sT2, 0), (sT2, 1024))):
            for i in range(4):
                p(f'buffer_load_dwordx4 {vr(32*T+16+4*i,4)}, v1, {srd(S_X)}, s{so} offen offset:{io+256*i}')

    def dma_wq(self, s, slot):
        out = []
        if s == 0:
            out += [f's_and_b32 s{sT0}, s{sW}, 1', f's_lshl_b32 s{sT0}, s{sT0}, 4', f's_lshr_b32 s{sT1}, s{sW}, 1',
                    f's_lshl_b32 s{sT1}, s{sT1}, 2', f's_add_u32 s{sP}, s{sT0}, s{sT1}',
                    f's_mul_i32 s{sD0}, s{sP}, 3072', f's_lshl_b32 s{sT0}, s{sJ}, 7', f's_add_u32 s{sD0}, s{sD0}, s{sT0}',
                    f's_mul_i32 s{sD1}, s{sW}, 3072']
        else:
            out += [f's_add_u32 s{sD0}, s{sD0}, {32*3072}']
        out += [f's_add_u32 m0, s{sD1}, {L_RING + slot*SLOT}']
        for sec in range(3):
            out += [(f'buffer_load_dwordx4 v{vDQ}, {srd(S_WQ)}, s{sD0} offen offset:{1024*sec} lds', f'wq{s}')]
        return out

    def shared_tr_setup(self, colunit_expr_is_wave=True):
        o = []
        o += [f'v_lshrrev_b32 v2, 2, v{vLANE}', f'v_and_b32 v2, 7, v2',
              f'v_lshrrev_b32 v3, 1, v2', f'v_lshlrev_b32 v3, 5, v3',
              f'v_and_b32 v4, 3, v{vLANE}', f'v_lshlrev_b32 v4, 3, v4',
              f'v_lshl_add_u32 v4, v2, 7, v4',
              f'v_lshrrev_b32 v2, 5, v{vLANE}']
        o += [f'v_and_b32 v5, 0x30, v{vL16}', f'v_xor_b32 v5, v5, v3', f'v_and_b32 v6, 0x380, v4',
              f'v_add_u32 v5, v5, v6', f'v_lshl_add_u32 v{vTP}, v2, 10, v5']
        o += [f'v_mul_u32_u24 v2, 3072, v2', f'v_add_u32 v230, v4, v2',
              f'v_mov_b32 v229, v3',
              f's_lshl_b32 s{sT0}, s{sW}, 5', f'v_xor_b32 v3, s{sT0}, v3',
              f'v_add3_u32 v{vTS}, v230, v3, 0', f'v_add_u32 v{vTS}, {L_RING}, v{vTS}',
              f'v_add_u32 v{vTS+1}, {3*SLOT}, v{vTS}']
        return o

    def absorb_wq(self, s, slot):
        out = []
        base = vTS + (1 if slot >= 3 else 0)
        so = (slot % 3) * SLOT
        for sec in range(3):
            for h in range(2):
                out.append((f'ds_read_b64_tr_b16 {ar(s*12+sec*4+2*h,2)}, v{base} offset:{so+h*6144+sec*1024}', f'awq{s}'))
        return out

    def p0_compute(self):
        p = self.p
        p('s_cmp_ge_u32 s2, 96')
        p('s_cbranch_scc1 L_P0B')
        p.cond_begin()
        p('v_lshlrev_b32 v202, 16, v200')
        p('v_and_b32 v203, 0xffff0000, v200')
        p('v_mul_f32 v204, 0xbfb8aa3b, v202')
        p('v_mul_f32 v205, 0xbfb8aa3b, v203')
        p('v_exp_f32 v204, v204')
        p('v_exp_f32 v205, v205')
        for a in range(8): p(f'v_mov_b32 v{208+a}, 0')
        p('v_add_f32 v204, 1.0, v204')
        p('v_add_f32 v205, 1.0, v205')
        p('v_rcp_f32 v204, v204')
        p('v_rcp_f32 v205, v205')
        p('s_nop 0')
        p('v_mul_f32 v202, v202, v204')
        p('v_mul_f32 v203, v203, v205')
        p('v_cvt_pk_bf16_f32 v200, v202, v203')
        p('v_and_b32 v202, 0xffff, v200')
        p('v_lshlrev_b32 v203, 16, v200')
        p('v_lshrrev_b32 v204, 16, v200')
        p('v_and_b32 v205, 0xffff0000, v200')
        for i in range(8):
            q = i >> 1
            for d in range(4):
                for hh in range(2):
                    p(f'v_dot2c_f32_bf16_dpp v{208+2*d+hh}, v{202+2*(i&1)+hh}, v{160+4*i+d} quad_perm:[{q},{q},{q},{q}] row_mask:0xf bank_mask:0xf')
        for m in range(4): p(f'v_permlane32_swap_b32 v{208+m}, v{212+m}')
        for m in range(4): p(f'v_add_f32 v{208+m}, v{208+m}, v{212+m}')
        for m in range(2): p(f'v_permlane16_swap_b32 v{208+m}, v{210+m}')
        for m in range(2): p(f'v_add_f32 v{208+m}, v{208+m}, v{210+m}')
        p(f'v_and_b32 v202, 3, v{vLANE}')
        p(f'v_lshlrev_b32 v202, 5, v202')
        for sh in (8, 4):
            for m in range(2): p(f'v_add_f32_dpp v{208+m}, v{208+m}, v{208+m} row_ror:{sh} row_mask:0xf bank_mask:0xf')
            if sh == 8:
                p(f'v_lshl_add_u32 v202, v{vG}, 3, v202')
                p(f's_lshl_b32 s{sT0}, s{sW}, 7')
                p(f's_add_u32 s{sT0}, s{sT0}, {L_MISC+4096}')
                p(f'v_add_u32 v202, s{sT0}, v202')
        p(f'ds_write_b64 v202, v[208:209]')
        p.add(self.bar())
        p(f's_cmp_lg_u32 s{sW}, 0')
        p('s_cbranch_scc1 L_P0B')
        p(f'v_add_u32 v202, {L_MISC+4096}, v{vL16}')
        p('s_mov_b64 exec, 0xff')
        for k in range(4): p(f'ds_read_b128 {vr(208+4*k,4)}, v202 offset:{128*k}')
        p(f's_lshr_b32 s{sT0}, s2, 4')
        p(f's_cmp_eq_u32 s{sT0}, 1')
        p(f's_cselect_b32 s{sT1}, 1.0, 0')
        p(f's_cmp_eq_u32 s{sT0}, 4')
        p(f's_cselect_b32 s{sT1}, 1.0, s{sT1}')
        p(f's_lshl_b32 s{sT0}, s2, 7')
        p(f's_add_u32 s{sT0}, s{sT0}, {WS_MOD}')
        p('v_pk_add_f32 v[208:209], v[208:209], v[212:213]')
        p('v_pk_add_f32 v[210:211], v[210:211], v[214:215]')
        p('v_pk_add_f32 v[216:217], v[216:217], v[220:221]')
        p('v_pk_add_f32 v[218:219], v[218:219], v[222:223]')
        p('v_pk_add_f32 v[208:209], v[208:209], v[216:217]')
        p('v_pk_add_f32 v[210:211], v[210:211], v[218:219]')
        p('v_cvt_pk_bf16_f32 v208, v208, v209')
        p('v_cvt_pk_bf16_f32 v210, v210, v211')
        p('v_and_b32 v209, 0xffff0000, v208')
        p('v_lshlrev_b32 v208, 16, v208')
        p('v_and_b32 v211, 0xffff0000, v210')
        p('v_lshlrev_b32 v210, 16, v210')
        for k in range(4): p(f'v_add_f32 v{208+k}, s{sT1}, v{208+k}')
        p('v_cvt_pk_bf16_f32 v208, v208, v209')
        p('v_cvt_pk_bf16_f32 v209, v210, v211')
        p(f'v_mov_b32 v210, v{vTAG}')
        p(f'v_mov_b32 v211, v{vTAG}')
        p(f'buffer_store_dwordx4 v[208:211], v{vL16}, {srd(S_WS)}, s{sT0} offen sc1')
        p('s_mov_b64 exec, -1')
        p.cond_end()
        p('L_P0B:')

    def tag_and_hello(self):
        p = self.p
        p.add([WLGA()])
        p(f's_mul_i32 s{sTAG}, s{sTAG}, 1664525')
        p(f's_add_u32 s{sTAG}, s{sTAG}, 1013904223')
        p(f'v_mov_b32 v{vTAG}, s{sTAG}')
        p(f's_mov_b32 s{sONES}, 0x3f803f80')
        p(f's_lshl_b32 s{sOB}, s{sCL}, 16')
        p(f's_add_u32 s{sXB}, s{sOB}, {WS_X1}')
        p(f's_add_u32 s{sOB}, s{sOB}, {WS_O}')
        p(f's_mul_i32 s{sHB}, s{sCL}, {H_CL}')
        p(f's_add_u32 s{sHB}, s{sHB}, {WS_H}')
        p(f's_lshl_b32 s{sFL}, s{sCL}, 7')
        p(f's_add_u32 s{sFL}, s{sFL}, {WS_FLAG}')
        p(f's_min_u32 s{sT0}, s{sJ}, 3')
        p(f's_mul_i32 s{sU0}, s{sJ}, 5')
        p(f's_add_u32 s{sU0}, s{sU0}, s{sT0}')

    def hello_store(self):
        p = self.p
        p(f's_cmp_lg_u32 s{sW}, 3')
        p('s_cbranch_scc1 L_HEL')
        p.cond_begin()
        p(f's_lshl_b32 s{sT0}, s2, 2')
        p(f's_add_u32 s{sT0}, s{sT0}, {WS_HELLO}')
        p('s_mov_b64 exec, 1')
        p(f'buffer_store_dword v{vTAG}, v{vL16}, {srd(S_WS)}, s{sT0} offen sc1')
        p('s_mov_b64 exec, -1')
        p.cond_end()
        p('L_HEL:')

    def ln_stats(self):
        o = []
        SB = 208
        for T in range(5):
            o += [f'v_mov_b32 v{SB+2*T}, 0', f'v_mov_b32 v{SB+2*T+1}, 0']
        for T in range(5):
            for m in range(16):
                x = 32*T+16+m
                o += [f'v_dot2c_f32_bf16 v{SB+2*T}, s{sONES}, v{x}', f'v_dot2c_f32_bf16 v{SB+2*T+1}, v{x}, v{x}']
        for sh in (8, 4, 2, 1):
            for k in range(10):
                o += [f'v_add_f32_dpp v{SB+k}, v{SB+k}, v{SB+k} row_ror:{sh} row_mask:0xf bank_mask:0xf']
        inv = '0x3b000000'
        for T in range(5): o += [f'v_mul_f32 v{SB+2*T}, {inv}, v{SB+2*T}']
        for T in range(5): o += [f'v_mul_f32 v{SB+2*T+1}, {inv}, v{SB+2*T+1}']
        for T in range(5): o += [f'v_fma_f32 v{SB+2*T+1}, -v{SB+2*T}, v{SB+2*T}, v{SB+2*T+1}']
        for T in range(5): o += [f'v_max_f32 v{SB+2*T+1}, 0, v{SB+2*T+1}']
        for T in range(5): o += [f'v_add_f32 v{SB+2*T+1}, 0x3727c5ac, v{SB+2*T+1}']
        for T in range(5): o += [f'v_rsq_f32 v{SB+2*T+1}, v{SB+2*T+1}']
        for T in range(5): o += [f'v_mul_f32_e64 v{SB+2*T}, -v{SB+2*T}, v{SB+2*T+1}']
        for T in range(5):
            for m in range(16):
                x = 32*T+16+m; d = 32*T+2*m
                o += [f'v_lshlrev_b32 v{d}, 16, v{x}', f'v_and_b32 v{d+1}, 0xffff0000, v{x}']
            for m in range(16):
                d = 32*T+2*m
                o += [f'v_pk_fma_f32 {vr(d,2)}, {vr(d,2)}, {vr(SB+2*T,2)}, {vr(SB+2*T,2)} op_sel:[0,1,0] op_sel_hi:[1,1,0]']
        return o

    def poll_tagged(self, dsts, soffs, name):
        p = self.p
        L = p.label('L_PT'); D = p.label('L_PD')
        p(f's_mov_b32 s{sSPIN}, 20000')
        p(f'{L}:')
        for d, so in zip(dsts, soffs):
            p(f'buffer_load_dwordx4 {vr(d,4)}, v{vL16}, {srd(S_WS)}, s{so} offen sc1')
        p('s_waitcnt vmcnt(0)')
        p(f'v_cmp_ne_u32 vcc, s{sTAG}, v{dsts[0]+2}')
        for d in dsts[1:]:
            p(f'v_cmp_ne_u32 s[{sT4}:{sT5}], s{sTAG}, v{d+2}')
            p(f's_or_b64 vcc, vcc, s[{sT4}:{sT5}]')
        p(f's_cbranch_vccz {D}')
        p(f's_sub_u32 s{sSPIN}, s{sSPIN}, 1')
        p(f's_cbranch_scc0 {L}')
        p(f'{D}:')

    def mod_a(self):
        p = self.p
        p(f's_lshl_b32 s{sT0}, s{sW}, 10')
        p(f's_add_u32 s{sT1}, s{sT0}, {WS_MOD}')
        p(f's_add_u32 s{sT0}, s{sT0}, {L_MISC}')
        p(f'v_add_u32 v224, s{sT0}, v{vL16}')
        p(f'v_lshlrev_b32 v225, 5, v{vC}')
        p(f'v_add_u32 v225, {L_MISC}, v225')
        p(f's_lshl_b32 s{sT2}, s{sW}, 2')
        p(f'v_add_u32 v226, s{sT2}, v{vG}')
        p(f'v_and_b32 v227, 7, v{vC}')
        p(f'v_xor_b32 v226, v226, v227')
        p(f'v_lshlrev_b32 v226, 4, v226')
        p(f'v_lshl_add_u32 v{vHW}, v{vC}, 8, v226')
        p(f'v_add_u32 v{vHW+1}, 65536, v{vHW}')
        self.poll_tagged([160], [sT1], 'moda')
        p.add(self.stamp('moda'))
        p('v_and_b32 v163, 0xffff0000, v161')
        p('v_lshlrev_b32 v162, 16, v161')
        p('v_and_b32 v161, 0xffff0000, v160')
        p('v_lshlrev_b32 v160, 16, v160')
        p('ds_write_b128 v224, v[160:163]')
        p.add(self.bar())
        for i in range(4):
            for v in (1, 0):
                for hh in range(2):
                    p(f'ds_read_b128 {vr(160+32*v+8*i+4*hh,4)}, v225 offset:{2048*v+512*i+16*hh}')
        for i in range(4):
            for T in range(5):
                b = 32*T+8*i
                for m in range(4):
                    p(f'v_pk_fma_f32 {vr(b+2*m,2)}, {vr(b+2*m,2)}, {vr(192+8*i+2*m,2)}, {vr(160+8*i+2*m,2)}')
                for m in range(4):
                    p(f'v_cvt_pk_bf16_f32 v{b+m}, v{b+2*m}, v{b+2*m+1}')
                base = vHW + (1 if T == 4 else 0)
                p(f'ds_write_b128 v{base}, {vr(b,4)} offset:{(T%4)*16384+i*4096}')

    def dma_priv(self, S, soff_reg, lds_off, tag):
        out = [f's_add_u32 m0, s{sMW}, {lds_off}']
        for b in range(4):
            out.append((f'buffer_load_dwordx4 v{vDP+b}, {srd(S)}, s{soff_reg} offen offset:{1024*b} lds', tag))
        out.append(f's_add_u32 s{soff_reg}, s{soff_reg}, 32768')
        return out

    def absorb_priv(self, basereg, lds_off, dst, tag):
        out = []
        for ct in range(4):
            pp, t = ct >> 1, ct & 1
            for h in range(2):
                out.append((f'ds_read_b64_tr_b16 {rr((dst[0], dst[1]+4*ct+2*h),2)}, v{basereg+pp} offset:{lds_off+h*2048+8*t}', tag))
        return out

    def p1_gemm(self, fill):
        o = []
        FR = 56
        rb = [96, 97, 98, 99]
        pre = [f'v_xor_b32 v{rb[0]}, v{vC}, v{vG}', f'v_lshlrev_b32 v{rb[0]}, 4, v{rb[0]}',
               f'v_lshl_add_u32 v{rb[0]}, v{vG}, 8, v{rb[0]}', f'v_xor_b32 v{rb[1]}, 64, v{rb[0]}',
               f'v_add_u32 v{rb[2]}, 65536, v{rb[0]}', f'v_add_u32 v{rb[3]}, 65536, v{rb[1]}']
        def rd(T, s):
            return f'ds_read_b128 {vr(FR+20*(s&1)+4*T,4)}, v{rb[(s&1)+(2 if T==4 else 0)]} offset:{(T%4)*16384+s*1024}'
        main = []
        first = [rd(T, 0) for T in range(5)]
        for s in range(16):
            ms = []
            for T in range(5):
                h = vr(FR+20*(s&1)+4*T, 4)
                def C(a): return '0' if s == 0 else vr(a, 4)
                ms.append(f'v_mfma_f32_16x16x32_bf16 {vr(16+4*T,4)}, {ar(s*12+4,4)}, {h}, {C(16+4*T)}')
                ms.append(f'v_mfma_f32_16x16x32_bf16 {vr(36+4*T,4)}, {h}, {ar(s*12+8,4)}, {C(36+4*T)}')
                if T > 0:
                    ms.append(f'v_mfma_f32_16x16x32_bf16 {vr(4*(T-1),4)}, {ar(s*12,4)}, {h}, {C(4*(T-1))}')
            if s < 15:
                ms = interleave(ms, [rd(T, s+1) for T in range(5)], every=2, per=1, start=0)
            main += ms
        return pre, first, main

    def attn_masks(self):
        o = []
        o += [f'v_lshlrev_b32 v120, 2, v{vG}', f'v_sub_u32 v120, v120, v{vC}',
              f'v_mov_b32 v121, 0xf149f2ca',
              f's_cmp_eq_u32 s{sCL}, 0', f's_cselect_b32 s{sT0}, 100, 9', f's_cselect_b32 s{sT1}, 100, 1',
              f'v_and_b32 v122, 2, v{vG}', f'v_lshlrev_b32 v122, 6, v122', f'v_sub_u32 v122, v120, v122']
        g = []
        for r in range(4):
            g.append([f'v_add_u32 v123, {r+7}, v120', f'v_cmp_gt_u32 vcc, 8, v123', f'v_cndmask_b32 v{100+r}, v121, 0, vcc',
                      f'v_cndmask_b32 v{124+r}, 0, -1, vcc'])
            g.append([f'v_add_u32 v123, {r}, v120', f'v_cmp_le_i32 vcc, 9, v123', f'v_cndmask_b32 v{104+r}, v121, 0, vcc',
                      f'v_cmp_le_i32 vcc, s{sT0}, v123', f'v_cndmask_b32 v{108+r}, v121, 0, vcc'])
            g.append([f'v_add_u32 v123, {r}, v122', f'v_cmp_le_i32 vcc, s{sT1}, v123', f'v_cndmask_b32 v{112+r}, v121, 0, vcc'])
        for x in g: o += x
        o += [f'v_mov_b32 v123, 0xffff', 'v_bfi_b32 v116, v123, v124, v125', 'v_bfi_b32 v117, v123, v126, v127',
              'v_not_b32 v118, v116', 'v_not_b32 v119, v117',
              f'v_mov_b32 v120, s{sONES}', f'v_mov_b32 v121, s{sONES}',
              f's_mov_b32 s{sK}, 0x3eb8aa3b', f's_mov_b32 s{sK+1}, 0x3eb8aa3b']
        o += [f'v_and_b32 v{vST}, 1, v{vG}', f'v_lshlrev_b32 v{vST}, 14, v{vST}', f'v_lshrrev_b32 v123, 1, v{vG}',
              f'v_lshl_add_u32 v{vST}, v123, 8, v{vST}', f'v_lshl_add_u32 v{vST}, v{vC}, 4, v{vST}']
        return o

    def attention(self):
        p = self.p
        QB, KB, VB = 128, 136, 146
        vpos = {4: 0, 2: 2, 0: 4, 1: 6, 3: 8}
        SP, SC = 56, 72
        prevT = [0, 0, 1, 2]; biasP = [108, 112, 104, 104]
        def cv(d, a): return [f'v_cvt_pk_bf16_f32 v{d}, v{a}, v{a+1}', f'v_cvt_pk_bf16_f32 v{d+1}, v{a+2}, v{a+3}']
        p.add(cv(KB, 16))
        for t in range(4):
            p.add(cv(KB+2*(t+1), 16+4*(t+1)) + cv(QB+2*t, 4*t))
        for t in range(4):
            p(f'v_mfma_f32_16x16x16_bf16 {vr(SP+4*t,4)}, {vr(KB+2*prevT[t],2)}, {vr(QB+2*t,2)}, {vr(biasP[t],4)}')
            p(f'v_mfma_f32_16x16x16_bf16 {vr(SC+4*t,4)}, {vr(KB+2*(t+1),2)}, {vr(QB+2*t,2)}, {vr(100,4)}')
        for T in range(5): p.add(cv(VB+vpos[T], 36+4*T))
        M = 88
        for t in range(4):
            for r in range(4): p(f'v_max_f32 v{SP+4*t+r}, v{SP+4*t+r}, v{SC+4*t+r}')
            p(f'v_max3_f32 v{M+t}, v{SP+4*t}, v{SP+4*t+1}, v{SP+4*t+2}')
            p(f'v_max_f32 v{M+t}, v{M+t}, v{SP+4*t+3}')
        p(f'v_permlane32_swap_b32 v{M}, v{M+1}')
        p(f'v_permlane32_swap_b32 v{M+2}, v{M+3}')
        p(f'v_max_f32 v{M}, v{M}, v{M+1}')
        p(f'v_max_f32 v{M+2}, v{M+2}, v{M+3}')
        p(f'v_permlane16_swap_b32 v{M}, v{M+2}')
        p(f'v_max_f32 v{M}, v{M}, v{M+2}')
        p(f'v_mul_f32 v{M}, 0xbeb8aa3b, v{M}')
        p(f'v_mov_b32 v{M+4}, v{M}')
        p(f'v_permlane16_swap_b32 v{M}, v{M+4}')
        p(f'v_mov_b32 v{M+2}, v{M}')
        p(f'v_mov_b32 v{M+6}, v{M+4}')
        p(f'v_permlane32_swap_b32 v{M}, v{M+2}')
        p(f'v_permlane32_swap_b32 v{M+4}, v{M+6}')
        PB = 0
        for t in range(4):
            for hh in range(2):
                a = SP+4*t+2*hh
                p(f'v_pk_fma_f32 {vr(a,2)}, {vr(a,2)}, s[{sK}:{sK+1}], {vr(M+2*t,2)} op_sel_hi:[1,1,0]')
            for r in range(4): p(f'v_exp_f32 v{SP+4*t+r}, v{SP+4*t+r}')
        for t in range(4):
            p.add(cv(16+2*t, SP+4*t))
            e = (t & 1) == 0
            pp, pc = (PB+4*t, PB+4*t+2) if e else (PB+4*t+2, PB+4*t)
            for hh in range(2):
                p(f'v_and_b32 v{pp+hh}, v{118+hh}, v{16+2*t+hh}')
                p(f'v_and_b32 v{pc+hh}, v{116+hh}, v{16+2*t+hh}')
        OA = [VB+4, VB+2, VB+6, VB+0]
        for t in range(4):
            p(f'v_mfma_f32_16x16x16_bf16 {vr(SC+4*t,4)}, v[120:121], {vr(16+2*t,2)}, 0')
            p(f'v_mfma_f32_16x16x32_bf16 {vr(SP+4*t,4)}, {vr(OA[t],4)}, {vr(PB+4*t,4)}, 0')
        p(f's_lshl_b32 s{sT0}, s{sJ}, 11')
        p(f's_lshl_b32 s{sT1}, s{sW}, 9')
        p(f's_add_u32 s{sT0}, s{sT0}, s{sT1}')
        p(f's_add_u32 s{sT0}, s{sT0}, s{sOB}')
        p(f's_add_u32 s{sT1}, s{sT0}, 32768')
        for t in range(4): p(f'v_rcp_f32 v{SC+4*t}, v{SC+4*t}')
        for t in range(4):
            for hh in range(2):
                a = SP+4*t+2*hh
                p(f'v_pk_mul_f32 {vr(a,2)}, {vr(a,2)}, {vr(SC+4*t,2)} op_sel_hi:[1,0]')
            p.add(cv(24+2*t, SP+4*t))
            if t & 1:
                b = 24+2*(t-1)
                p(f'v_permlane16_swap_b32 v{b}, v{b+2}')
                p(f'v_permlane16_swap_b32 v{b+1}, v{b+3}')
                p(f'buffer_store_dwordx4 {vr(b,4)}, v{vST}, {srd(S_WS)}, s{sT0 if t==1 else sT1} offen sc1')

    def publish(self, ph, between=()):
        p = self.p
        p.add(between)
        p.add([WVMA()])
        p.add(self.bar())
        L = p.label('L_PUB')
        p(f's_cmp_lg_u32 s{sW}, 0')
        p(f's_cbranch_scc1 {L}')
        p.cond_begin()
        p(f's_lshl_b32 s{sT0}, s{sJ}, 2')
        p(f's_add_u32 s{sT0}, s{sT0}, s{sFL}')
        p(f's_add_u32 s{sT0}, s{sT0}, {ph*4096}')
        p('s_mov_b64 exec, 1')
        p(f'buffer_store_dword v{vTAG}, v{vL16}, {srd(S_WS)}, s{sT0} offen sc1')
        p('s_mov_b64 exec, -1')
        p.cond_end()
        p(f'{L}:')

    def wait_flags(self, ph, tmp):
        p = self.p
        L = p.label('L_WF'); D = p.label('L_WD'); D2 = p.label('L_WE')
        p(f's_cmp_lg_u32 s{sW}, 0')
        p(f's_cbranch_scc1 {D2}')
        p.cond_begin()
        p(f's_add_u32 s{sT0}, s{sFL}, {ph*4096}')
        p(f'v_lshlrev_b32 v{tmp+1}, 2, v{vLANE}')
        p(f's_mov_b32 s{sSPIN}, 20000')
        p('s_mov_b64 exec, 0xff')
        p(f'{L}:')
        p(f'buffer_load_dword v{tmp}, v{tmp+1}, {srd(S_WS)}, s{sT0} offen sc1')
        p('s_waitcnt vmcnt(0)')
        p(f'v_cmp_ne_u32 vcc, s{sTAG}, v{tmp}')
        p(f's_cbranch_vccz {D}')
        p(f's_sub_u32 s{sSPIN}, s{sSPIN}, 1')
        p(f's_cbranch_scc0 {L}')
        p(f'{D}:')
        p('s_mov_b64 exec, -1')
        p.cond_end()
        p(f'{D2}:')
        p.add(self.bar())

    def unpack8(self, dst, src):
        o = []
        for k in range(8):
            o += [f'v_lshlrev_b32 v{dst+2*k}, 16, v{src+k}', f'v_and_b32 v{dst+2*k+1}, 0xffff0000, v{src+k}']
        return o

    def build(self):
        p = self.p
        self.prologue()
        self.p0_loads()
        self.x_loads()
        for s in range(6): p.add(self.dma_wq(s, s))
        p.add(self.shared_tr_setup())
        p.add(self.stamp('issued'))
        self.tag_and_hello()
        p.add(self.stamp('epoch'))
        self.p0_compute()
        self.hello_store()
        p.add(self.stamp('p0done'))
        p.add(self.ln_stats())
        p.add(self.stamp('lndone'))
        for s in range(16):
            p.add([WVM(f'wq{s}')])
            p.add(self.bar())
            if s >= 1 and s+5 < 16: p.add(self.dma_wq(s+5, (s+5) % 6))
            p.add(self.absorb_wq(s, s % 6))
        p.add(self.stamp('wqdone'))
        self.mod_a()
        pre, first, main = self.p1_gemm([])
        p.add(pre)
        p.add(self.bar())
        p.add(self.stamp('hready'))
        p.add(first)
        fill = []
        fill.append([f's_lshl_b32 s{sMW}, s{sW}, 14', f's_add_u32 s{sMW}, s{sMW}, {L_RING}',
                     f's_lshl_b32 s{sD0}, s{sW}, 17', f's_lshl_b32 s{sT0}, s{sJ}, 7', f's_add_u32 s{sD0}, s{sD0}, s{sT0}'])
        for i in range(4):
            for x in self.dma_priv(S_WO, sD0, 4096*i, f'wo{i}'): fill.append(x)
        fill += [f'v_lshlrev_b32 v228, 11, v{vC}', f'v_lshl_add_u32 v228, v{vG}, 4, v228',
                 f's_lshr_b32 s{sT0}, s{sW}, 1', f's_lshl_b32 s{sT0}, s{sT0}, 5', f's_and_b32 s{sT1}, s{sW}, 1',
                 f's_add_u32 s{sT0}, s{sT0}, s{sT1}', f's_add_u32 s{sT0}, s{sT0}, s{sR0}', f's_lshl_b32 s{sT0}, s{sT0}, 10',
                 f's_lshl_b32 s{sT1}, s{sJ}, 7', f's_add_u32 s43, s{sT0}, s{sT1}']
        fill += [f'buffer_load_dwordx4 {vr(vX2+4*pp,4)}, v228, {srd(S_X)}, s43 offen offset:{64*pp}' for pp in range(2)]
        fill += self.attn_masks()
        fill += [f'v_add_u32 v226, s{sMW}, v{vTP}', f'v_xor_b32 v227, 64, v226']
        p.add(spread(main, fill, 4, 150))
        p.add(self.stamp('p1gemm'))
        self.attention()
        p.add(self.stamp('attn'))
        ab = []
        for i in range(4):
            ab += [WVM(f'wo{i}')] + self.absorb_priv(226, 4096*i, ('a', 192+16*i), f'awo{i}')
        p.add(ab)
        p(f's_lshl_b32 s{sT0}, s{sW}, 10')
        p(f's_add_u32 s{sT0}, s{sT0}, {WS_MOD+4096}')
        p(f's_add_u32 s{sT1}, s{sT0}, 4096')
        p(f's_lshl_b32 s{sT2}, s{sW}, 9')
        p(f's_add_u32 s{sT2}, s{sT2}, {L_MISC}')
        p(f'v_lshlrev_b32 v224, 3, v{vLANE}')
        p(f'v_add_u32 v224, s{sT2}, v224')
        self.poll_tagged([160, 164], [sT0, sT1], 'modb')
        p('ds_write_b64 v224, v[160:161]')
        p('ds_write_b64 v224, v[164:165] offset:2048')
        self.publish(0)
        p.add(self.stamp('pub1'))
        p.add(self.flush())
        if self.stop == 1: return self.finish()
        w1slot = lambda k: (L_RING + (k % 8)*SLOT) if (k % 8) < 6 else (49152 + ((k % 8)-6)*SLOT)
        def dma_w1(s):
            o = []
            if s == 0:
                o += [f's_mul_i32 s{sD0}, s{sP}, 2752', f's_lshl_b32 s{sT0}, s{sU0}, 6', f's_add_u32 s{sD0}, s{sD0}, s{sT0}']
            else:
                o += [f's_add_u32 s{sD0}, s{sD0}, {32*2752}']
            for sec in range(3):
                o += [f's_add_u32 m0, s{sD1}, {w1slot(s) + sec*896}',
                      (f'buffer_load_dwordx4 v231, {srd(S_W1)}, s{sD0} offen offset:{128*sec} lds', f'w1{s}')]
            return o
        w1b = []
        for m in range(3):
            w1b += [f's_mul_i32 s{sT0}, s{sW}, 3', f's_add_u32 s{sT0}, s{sT0}, {m}', f's_and_b32 s{sT1}, s{sT0}, 3',
                    f's_lshl_b32 s{sT1}, s{sT1}, 5', f's_lshr_b32 s{sT0}, s{sT0}, 2', f's_lshl_b32 s{sT0}, s{sT0}, 10',
                    f's_add_u32 s{sT0}, s{sT0}, 49152',
                    f'v_xor_b32 v{218+m}, s{sT1}, v229', f'v_add3_u32 v{218+m}, v{218+m}, v230, s{sT0}',
                    f'v_add_u32 v{221+m}, {5*SLOT}, v{218+m}']
        def absorb_w1(s):
            o = []
            off = w1slot(s) - 49152
            hi = off + 6144 > 65535
            if hi: off -= 5*SLOT
            assert 0 <= off and off + 6144 <= 65535
            for m in range(3):
                for h in range(2):
                    o.append((f'ds_read_b64_tr_b16 {ar(s*12+m*4+2*h,2)}, v{218+m+(3 if hi else 0)} offset:{off+h*6144}', f'aw1{s}'))
            return o
        for s in range(8): p.add(dma_w1(s))
        p.add(w1b)
        p(f's_lshl_b32 s{sT0}, s{sJ}, 7')
        p(f's_add_u32 s{sT0}, s{sT0}, {L_MISC}')
        p(f'v_lshlrev_b32 v224, 4, v{vG}')
        p(f'v_add_u32 v224, s{sT0}, v224')
        for k, off in enumerate((0, 2048, 3072)):
            for pp in range(2):
                p(f'ds_read_b128 {vr(128+8*k+4*pp,4)}, v224 offset:{off+64*pp}')
        p.add(self.unpack8(184, 128) + self.unpack8(200, 136))
        GBP = 176
        for k in range(8): p(f'v_mov_b32 v{GBP+k}, v{144+k}')
        p.add([WVMA()])
        self.wait_flags(0, 128)
        p.add(self.stamp('flag1'))
        mid = []
        for s in range(8): mid += absorb_w1(s)
        self.ksplit(4, lambda i, ct: ar(192+16*i+4*ct, 4), lambda n, i: ('v', 16*n+4*i), 64, sOB, 16384, 4096, 0, 0, 160, False, mid=mid)
        p.add(self.stamp('p2gemm'))
        Y = 112
        p.add(self.unpack8(128, vX2))
        for k in range(8): p(f'v_pk_fma_f32 {vr(Y+2*k,2)}, {vr(Y+2*k,2)}, {vr(184+2*k,2)}, {vr(128+2*k,2)}')
        for k in range(8): p(f'v_cvt_pk_bf16_f32 v{vX2+k}, v{Y+2*k}, v{Y+2*k+1}')
        p.add(self.unpack8(128, vX2))
        p('v_mov_b32 v144, 0')
        p('v_mov_b32 v145, 0')
        for k in range(8): p(f'v_pk_mul_f32 {vr(128+2*k,2)}, {vr(128+2*k,2)}, {vr(200+2*k,2)}')
        for k in range(8): p(f'v_cvt_pk_bf16_f32 v{Y+k}, v{128+2*k}, v{128+2*k+1}')
        p(f's_lshl_b32 s{sT0}, s{sW}, 14')
        p(f's_lshl_b32 s{sT1}, s{sJ}, 11')
        p(f's_add_u32 s{sT0}, s{sT0}, s{sT1}')
        p(f's_add_u32 s{sT0}, s{sT0}, s{sXB}')
        for pp in range(2):
            p(f'buffer_store_dwordx4 {vr(Y+4*pp,4)}, v{vL16}, {srd(S_WS)}, s{sT0} offen offset:{1024*pp} sc1')
        for k in range(8):
            p(f'v_dot2c_f32_bf16 v144, s{sONES}, v{vX2+k}')
            p(f'v_dot2c_f32_bf16 v145, v{vX2+k}, v{vX2+k}')
        p(f'v_lshrrev_b32 v146, 1, v{vG}')
        p(f'v_lshlrev_b32 v146, 2, v146')
        p(f'v_lshl_add_u32 v146, v{vC}, 4, v146')
        p('v_permlane32_swap_b32 v144, v145')
        p(f's_lshl_b32 s{sT0}, s{sCL}, 12')
        p(f's_lshl_b32 s{sT1}, s{sW}, 10')
        p(f's_add_u32 s{sT0}, s{sT0}, s{sT1}')
        p('v_add_f32 v144, v144, v145')
        p(f's_lshr_b32 s{sT1}, s{sJ}, 1')
        p(f's_lshl_b32 s{sT1}, s{sT1}, 8')
        p('v_mov_b32 v145, v144')
        p(f's_add_u32 s{sT0}, s{sT0}, s{sT1}')
        p(f's_and_b32 s{sT1}, s{sJ}, 1')
        p(f's_lshl_b32 s{sT1}, s{sT1}, 3')
        p('v_permlane16_swap_b32 v144, v145')
        p(f's_add_u32 s{sT0}, s{sT0}, s{sT1}')
        p(f's_add_u32 s{sT0}, s{sT0}, {WS_ST}')
        p('v_add_f32 v144, v144, v145')
        p(f'buffer_store_dword v144, v146, {srd(S_WS)}, s{sT0} offen sc1')
        self.publish(1)
        p.add(self.stamp('pub2'))
        if self.stop == 2: return self.finish()
        for s in range(8, 16): p.add(dma_w1(s))
        p.add([WVMA()])
        p.add(self.bar())
        for s in range(8, 16): p.add(absorb_w1(s))
        p(f'v_and_b32 v224, 8, v{vC}')
        p(f'v_lshlrev_b32 v224, 7, v224')
        p(f'v_sub_u32 v224, {L_MISC+2048}, v224')
        p(f'v_lshl_add_u32 v224, v{vG}, 4, v224')
        for s in range(16): p(f'ds_read_b128 {vr(4*s,4)}, v224 offset:{64*s}')
        U, V = 128, 140
        for s in range(16):
            for m in range(3):
                p(f'v_mfma_f32_16x16x32_bf16 {vr(U+4*m,4)}, {ar(s*12+4*m,4)}, {vr(4*s,4)}, {"0" if s==0 else vr(U+4*m,4)}')
        for k in range(12): p(f'v_mov_b32 v{V+k}, v{U+k}')
        for k in range(12): p(f'v_mov_b32_dpp v{V+k}, v{U+k} row_ror:8 row_mask:0xf bank_mask:0x3')
        for k in range(12): p(f'v_mov_b32_dpp v{U+k}, v{U+k} row_ror:8 row_mask:0xf bank_mask:0xc')
        self.wait_flags(1, 0)
        p.add(self.stamp('flag2'))
        p(f's_lshl_b32 s{sT0}, s{sW}, 14')
        p(f's_add_u32 s{sT1}, s{sT0}, s{sXB}')
        for q in range(4):
            p(f's_add_u32 m0, s{sT0}, {4096*q}')
            for i in range(4):
                p(f'buffer_load_dwordx4 v{vL16}, {srd(S_WS)}, s{sT1} offen offset:{1024*i} sc1 lds', f'x1{q}')
            if q < 3: p(f's_add_u32 s{sT1}, s{sT1}, 4096')
        p(f's_lshl_b32 s{sT0}, s{sCL}, 12')
        p(f's_add_u32 s{sT0}, s{sT0}, {WS_ST}')
        STT = 152
        for t in range(4):
            p(f'buffer_load_dwordx4 {vr(STT+4*t,4)}, v{vL16}, {srd(S_WS)}, s{sT0} offen offset:{1024*t} sc1')
        w2reg = lambda i: ('a', 192+16*i) if i < 4 else ('a', 16*(i-4))
        setup2 = [f's_mul_i32 s{sMW}, s{sW}, 20480', f's_add_u32 s{sMW}, s{sMW}, 65536',
                  f's_mul_i32 s{sD0}, s{sW}, {11*32768}', f's_lshl_b32 s{sT0}, s{sJ}, 7', f's_add_u32 s{sD0}, s{sD0}, s{sT0}',
                  f'v_add_u32 v226, s{sMW}, v{vTP}', f'v_xor_b32 v227, 64, v226']
        p.add(setup2)
        dw2 = lambda i: self.dma_priv(S_W2, sD0, 4096*(i % 5), f'w2{i}')
        aw2 = lambda i: [WVM(f'w2{i}')] + self.absorb_priv(226, 4096*(i % 5), w2reg(i), f'aw2{i}')
        FR = 48
        def rd(t, s): return f'ds_read_b128 {vr(FR+16*(s&1)+4*t,4)}, v{vL16} offset:{t*16384+s*1024}'
        st = []
        for t in range(4):
            st += [f'v_add_f32 v{STT+4*t}, v{STT+4*t}, v{STT+4*t+2}', f'v_add_f32 v{STT+4*t+1}, v{STT+4*t+1}, v{STT+4*t+3}']
        for k in range(2):
            a = STT+k
            st += [f'v_permlane32_swap_b32 v{a}, v{a+4}', f'v_permlane32_swap_b32 v{a+8}, v{a+12}',
                   f'v_add_f32 v{a}, v{a}, v{a+4}', f'v_add_f32 v{a+8}, v{a+8}, v{a+12}',
                   f'v_permlane16_swap_b32 v{a}, v{a+8}', f'v_add_f32 v{a}, v{a}, v{a+8}']
        a = STT
        st += [f'v_mul_f32 v{a}, 0x3b000000, v{a}', f'v_mul_f32 v{a+1}, 0x3b000000, v{a+1}',
               f'v_fma_f32 v{a+1}, -v{a}, v{a}, v{a+1}', f'v_max_f32 v{a+1}, 0, v{a+1}', f'v_add_f32 v{a+1}, 0x3727c5ac, v{a+1}',
               f'v_rsq_f32 v{a+1}, v{a+1}', f'v_mul_f32_e64 v{a}, -v{a}, v{a+1}']
        for k in range(2):
            a = STT+k
            st += [f'v_mov_b32 v{a+8}, v{a}', f'v_permlane16_swap_b32 v{a}, v{a+8}',
                   f'v_mov_b32 v{a+4}, v{a}', f'v_mov_b32 v{a+12}, v{a+8}',
                   f'v_permlane32_swap_b32 v{a}, v{a+4}', f'v_permlane32_swap_b32 v{a+8}, v{a+12}']
        TT = 80
        for t in range(4):
            for k in range(12):
                st += [f'v_fma_f32 v{TT+12*t+k}, v{STT+4*t}, v{U+k}, v{V+k}']
        st += [f'v_and_b32 v{vST}, 1, v{vG}', f'v_mul_u32_u24 v{vST}, {H_TILE}, v{vST}', f'v_lshrrev_b32 v224, 1, v{vG}',
               f'v_lshl_add_u32 v{vST}, v224, 8, v{vST}', f'v_lshl_add_u32 v{vST}, v{vC}, 4, v{vST}']
        main = []
        for s in range(16):
            ms = []
            for t in range(4):
                for m in range(3):
                    a = 12*t+4*m
                    ms.append(f'v_mfma_f32_16x16x32_bf16 {vr(a,4)}, {ar(s*12+4*m,4)}, {vr(FR+16*(s&1)+4*t,4)}, {"0" if s==0 else vr(a,4)}')
            nxt = []
            if s < 15:
                nxt = [rd(t, s+1) for t in range(4)]
                if (s+1) % 4 == 0:
                    nxt = [[WVM(f'x1{(s+1)//4}'), 's_barrier', nxt[0]]] + nxt[1:]
            ms = spread(ms, nxt, 1, 9)
            main.append(ms)
        p.add([WVM('x10'), 's_barrier'])
        p.add([rd(t, 0) for t in range(4)])
        for s in range(16):
            f = []
            if s < 5: f += dw2(s)
            if 5 <= s < 12:
                n = len(st); f += st[(s-5)*n//7:(s-4)*n//7]
            if s >= 12:
                f += aw2(s-12) + [WLG(f'aw2{s-12}')] + dw2(s-12+5)
            p.add(spread(main[s], f, 0, len(main[s])))
        p.add(self.stamp('p3gemm'))
        p(f's_cmp_ge_u32 s{sJ}, 3')
        p(f's_cselect_b32 s{sT2}, 3, 99')
        p(f's_mul_i32 s{sT0}, s{sW}, {3*512}')
        p(f's_lshl_b32 s{sT1}, s{sU0}, 10')
        p(f's_add_u32 s{sT0}, s{sT0}, s{sT1}')
        p(f's_add_u32 s{sT0}, s{sT0}, s{sHB}')
        p(f's_cmp_eq_u32 s{sW}, s{sT2}')
        p(f's_cselect_b32 s{sT1}, {OOB}, s{sT0}')
        for pr in range(2):
            for m in range(3):
                b = FR+12*pr+4*m
                for tt in range(2):
                    t = 2*pr+tt
                    a = 12*t+4*m
                    for hh in range(2):
                        p(f'v_pk_fma_f32 {vr(a+2*hh,2)}, {vr(a+2*hh,2)}, {vr(STT+4*t,2)}, {vr(TT+a+2*hh,2)} op_sel:[0,1,0] op_sel_hi:[1,1,1]')
                    for hh in range(2):
                        p(f'v_cvt_pk_bf16_f32 v{b+2*tt+hh}, v{a+2*hh}, v{a+2*hh+1}')
                for k in range(4): p(f'v_pk_max_i16 v{b+k}, v{b+k}, 0')
                p(f'v_permlane16_swap_b32 v{b}, v{b+2}')
                p(f'v_permlane16_swap_b32 v{b+1}, v{b+3}')
                p(f'buffer_store_dwordx4 {vr(b,4)}, v{vST}, {srd(S_WS)}, s{sT0 if m==0 else sT1} offen offset:{512*m} sc1')
            if pr == 0:
                p(f's_add_u32 s{sT0}, s{sT0}, {2*H_TILE}')
                p(f's_add_u32 s{sT1}, s{sT1}, {2*H_TILE}')
        ab = []
        for i in range(4, 9): ab += aw2(i)
        self.publish(2, ab)
        p.add(self.stamp('pub3'))
        if self.stop == 3: return self.finish()
        p.add(dw2(9) + dw2(10))
        p(f's_lshl_b32 s{sT0}, s2, 2')
        p(f's_add_u32 s{sT0}, s{sT0}, s{sW}')
        p(f's_cmp_lg_u32 s{sT0}, 1')
        p('s_cbranch_scc1 L_EP')
        p.cond_begin()
        p(f's_mov_b32 s{sSPIN}, 20000')
        p(f's_mov_b32 s{sT0}, {WS_HELLO}')
        p('L_EPL:')
        p(f'buffer_load_dwordx4 v[0:3], v{vL16}, {srd(S_WS)}, s{sT0} offen sc1')
        p('s_waitcnt vmcnt(0)')
        for k in range(4): p(f'v_xor_b32 v{k}, s{sTAG}, v{k}')
        p('v_or3_b32 v0, v0, v1, v2')
        p('v_or_b32 v0, v0, v3')
        p('v_cmp_ne_u32 vcc, 0, v0')
        p('s_cbranch_vccz L_EPD')
        p(f's_sub_u32 s{sSPIN}, s{sSPIN}, 1')
        p('s_cbranch_scc0 L_EPL')
        p('L_EPD:')
        p('s_mov_b64 exec, 1')
        p(f'buffer_store_dword v{vTAG}, v{vL16}, {srd(S_WS)}, 0 offen sc1')
        p('s_mov_b64 exec, -1')
        p.cond_end()
        p('L_EP:')
        p.add(aw2(9) + aw2(10))
        p.add(self.unpack8(184, GBP))
        p.add(self.unpack8(200, vX2))
        self.wait_flags(2, 0)
        p.add(self.stamp('flag3'))
        def breg(n, i):
            k = 11*n+i
            return ('a', 112+4*k) if k < 20 else ('v', 64+4*(k-20))
        w2op = lambda i, ct: rr((w2reg(i)[0], w2reg(i)[1]+4*ct), 4)
        self.ksplit(11, w2op, breg, 0, sHB, H_TILE, 11*1024, 0, 64, 160, True)
        p.add(self.stamp('p4gemm'))
        Y = 48
        for k in range(8): p(f'v_pk_fma_f32 {vr(Y+2*k,2)}, {vr(Y+2*k,2)}, {vr(184+2*k,2)}, {vr(200+2*k,2)}')
        for k in range(8): p(f'v_cvt_pk_bf16_f32 v{Y+k}, v{Y+2*k}, v{Y+2*k+1}')
        for pp in range(2):
            p(f'buffer_store_dwordx4 {vr(Y+4*pp,4)}, v228, {srd(S_OUT)}, s43 offen offset:{64*pp}')
        return self.finish()

    def ksplit(self, nsteps, wreg, breg, acc, base_sreg, tile_stride, wave_stride, scr, part, areg, last_oob, mid=()):
        p = self.p
        p(f's_mul_i32 s{sT0}, s{sW}, {wave_stride}')
        p(f's_add_u32 s{sT0}, s{sT0}, s{base_sreg}')
        if last_oob:
            p(f's_cmp_eq_u32 s{sW}, 3')
            p(f's_cselect_b32 s{sT3}, {OOB}, 0')
        for n in range(4):
            p(f's_add_u32 s{sT1}, s{sW}, {n+1}')
            p(f's_and_b32 s{sT1}, s{sT1}, 3')
            p(f's_mul_i32 s{sT1}, s{sT1}, {tile_stride}')
            p(f's_add_u32 s{sT1}, s{sT1}, s{sT0}')
            for i in range(nsteps):
                if i and i % 4 == 0: p(f's_add_u32 s{sT1}, s{sT1}, 4096')
                if last_oob and i == nsteps-1: p(f's_add_u32 s{sT1}, s{sT1}, s{sT3}')
                p(f'buffer_load_dwordx4 {rr(breg(n,i),4)}, v{vL16}, {srd(S_WS)}, s{sT1} offen offset:{(i%4)*1024} sc1')
        p.add(mid)
        for n in range(3):
            p(f's_add_u32 s{sT1}, s{sW}, {n+1}')
            p(f's_and_b32 s{sT1}, s{sT1}, 3')
            p(f's_mul_i32 s{sT1}, s{sT1}, {3*4096}')
            p(f's_add_u32 s{sT1}, s{sT1}, {scr+n*4096}')
            p(f'v_add_u32 v{areg+n}, s{sT1}, v{vL16}')
        p(f's_mul_i32 s{sT1}, s{sW}, {3*4096}')
        p(f's_add_u32 s{sT1}, s{sT1}, {scr}')
        p(f'v_add_u32 v{areg+3}, s{sT1}, v{vL16}')
        pend = []
        for n in range(4):
            ms = []
            for i in range(nsteps):
                for ct in range(4):
                    a = acc+16*n+4*ct
                    ms.append(f'v_mfma_f32_16x16x32_bf16 {vr(a,4)}, {wreg(i,ct)}, {rr(breg(n,i),4)}, {"0" if i==0 else vr(a,4)}')
            ms = interleave(ms, pend, every=2, per=1, start=4)
            p.add(ms)
            pend = [f'ds_write_b128 v{areg+n}, {vr(acc+16*n+4*ct,4)} offset:{1024*ct}' for ct in range(4)] if n < 3 else []
        p.add(self.bar())
        for n in range(3):
            for ct in range(4):
                p(f'ds_read_b128 {vr(part+16*n+4*ct,4)}, v{areg+3} offset:{4096*n+1024*ct}')
        for n in range(3):
            for k in range(8):
                p(f'v_pk_add_f32 {vr(acc+48+2*k,2)}, {vr(acc+48+2*k,2)}, {vr(part+16*n+2*k,2)}')

    def finish(self):
        p = self.p
        if self.diag:
            p.add([WVMA()])
            p.add(self.stamp('end'))
            p.add(self.flush())
            p(f's_getreg_b32 s{sT1}, hwreg(HW_REG_XCC_ID)')
            p(f'v_writelane_b32 v217, s{sT1}, 63')
            p(f's_lshl_b32 s{sT0}, s2, 2')
            p(f's_add_u32 s{sT0}, s{sT0}, s{sW}')
            p(f's_lshl_b32 s{sT0}, s{sT0}, 8')
            p(f's_add_u32 s{sT0}, s{sT0}, {WS_DIAG}')
            p(f'v_lshlrev_b32 v1, 2, v{vLANE}')
            p(f'buffer_store_dword v217, v1, {srd(S_WS)}, s{sT0} offen')
        p('L_END:')
        p('s_endpgm')
        return p.finalize()


HEADER = open(os.path.join(os.path.dirname(os.path.abspath(__file__)), '..', 'cdna_kernels',
              'adaLN_cond__sliding_local_dilated__dense_activation_relu__prompt.s.ref')).read()

def emit(diag=False, stop=None):
    g = Gen(diag, stop)
    ins = g.build()
    head = HEADER.split(KNAME + ':')[0].replace('grid=(4096,1,1) block=(256,1,1) lds=0', 'grid=(256,1,1) block=(256,1,1) lds=163840')
    tail = HEADER.split('s_endpgm\n')[1].replace('next_free_vgpr 256', 'next_free_vgpr 512')
    body = '\n'.join(('' if i.is_label else '    ') + i.text for i in ins)
    txt = head + KNAME + ':\n' + body + '\n' + tail
    if diag: txt += '\n; STAMPS ' + ' '.join(g.stamp_names) + '\n'
    return txt

if __name__ == '__main__':
    import argparse
    ap = argparse.ArgumentParser()
    ap.add_argument('out'); ap.add_argument('--diag', action='store_true'); ap.add_argument('--stop', type=int)
    a = ap.parse_args()
    open(a.out, 'w').write(emit(a.diag, a.stop))
```

```python
import sys, os
sys.path.insert(0, os.path.dirname(os.path.abspath(__file__)))
from asmlib import *

KNAME = 'adaLN_cond__sliding_local_dilated__dense_activation_relu__prompt_kernel'

WS_EPOCH = 0
WS_HELLO = 0x400
WS_FLAG = 0x1000
WS_MOD = 0x8000
WS_O = 0x100000
WS_X1 = 0x300000
WS_ST = 0x500000
WS_H = 0x600000
H_TILE = 45056
H_CL = 4 * H_TILE
WS_DIAG = 0xE00000
WS_SIZE = 0x1000000
OOB = 0x40000000

L_H = 0
L_RING = 81920
L_MISC = 155648
SLOT = 12288

S_X, S_WQ, S_WO, S_W1, S_W2, S_WM, S_OUT, S_WS, S_C = 4, 8, 12, 16, 20, 24, 28, 32, 36
sW, sCL, sJ, sTAG = 60, 61, 62, 63
sT0, sT1, sT2, sT3, sT4, sT5 = 64, 65, 66, 67, 68, 69
sSPIN = 40
sONES = 41
sR0 = 42
sK = 44
sU0 = 46
sOB = 47
sXB = 48
sHB = 49
sFL = 50
sD0 = 51
sD1 = 52
sMW = 53
sHV = 54
sP = 55
STAMP0 = 70


def srd(b): return f's[{b}:{b+3}]'
def vr(a, n=1): return f'v{a}' if n == 1 else f'v[{a}:{a+n-1}]'
def ar(a, n=1): return f'a{a}' if n == 1 else f'a[{a}:{a+n-1}]'
def rr(r, n=1):
    return (vr if r[0] == 'v' else ar)(r[1], n)

def WVM(tag): return Marker('wait_vm', tag)
def WLG(tag): return Marker('wait_lgkm', tag)
WVMA = lambda: Marker('wait_vm_all')
WLGA = lambda: Marker('wait_lgkm_all')
def CMT(c): return Marker('comment', c)

vL16 = 255
vTAG = 254
vDP = 250
vTS = 248
vDQ = 247
vTP = 246
vLANE = 245
vG = 244
vC = 243
vHW = 241
vX2 = 232
vST = 240


class Gen:
    def __init__(self, diag=False, stop=None):
        self.p = Prog()
        self.diag = diag
        self.stop = stop
        self.nst = 0
        self.flushed = 0
        self.stamp_names = []

    def stamp(self, name):
        if not self.diag: return []
        k = self.nst; self.nst += 1
        assert k - self.flushed < 16
        self.stamp_names.append(name)
        op = 's_memrealtime' if k == 0 else 's_memtime'
        k %= 16
        return [f'{op} s[{STAMP0+2*k}:{STAMP0+2*k+1}]']

    def flush(self):
        if not self.diag: return []
        o = ['s_waitcnt lgkmcnt(0)']
        for k in range(self.flushed, self.nst):
            o.append(f'v_writelane_b32 v217, s{STAMP0+2*(k%16)}, {k}')
        self.flushed = self.nst
        return o

    def bar(self):
        return [WLGA(), 's_barrier']

    def prologue(self):
        p = self.p
        p(f's_cmp_ge_u32 s2, 256')
        p(f's_cbranch_scc1 L_END')
        p.add(self.stamp('rt0'))
        p.add(self.stamp('start'))
        p('s_load_dwordx16 s[40:55], s[0:1], 0')
        p('s_load_dwordx2 s[56:57], s[0:1], 64')
        p('s_load_dwordx2 s[58:59], s[0:1], 80')
        p(f'v_and_b32 v{vLANE}, 63, v0')
        p(f'v_lshrrev_b32 v1, 6, v0')
        p(f'v_lshlrev_b32 v{vL16}, 4, v{vLANE}')
        p(f'v_readfirstlane_b32 s{sW}, v1')
        p(f'v_lshrrev_b32 v{vG}, 4, v{vLANE}')
        p(f'v_and_b32 v{vC}, 15, v{vLANE}')
        for b, sz in ((S_X, 2048*1024), (S_WQ, 512*3072), (S_WO, 512*1024), (S_W1, 512*2752), (S_W2, 1376*1024),
                      (S_WM, 512*6144), (S_OUT, 2048*1024), (S_WS, WS_SIZE), (S_C, 1024)):
            p(f's_mov_b32 s{b+2}, {sz}')
            p(f's_mov_b32 s{b+3}, 0x00020000')
        p(f's_and_b32 s{sT0}, s2, 7')
        p(f's_lshr_b32 s{sT1}, s2, 6')
        p(f's_lshl_b32 s{sT0}, s{sT0}, 2')
        p(f's_add_u32 s{sCL}, s{sT0}, s{sT1}')
        p(f's_bfe_u32 s{sJ}, s2, 0x30003')
        p(f'v_lshlrev_b32 v1, 11, v{vG}')
        p(f'v_lshl_add_u32 v1, v{vC}, 4, v1')
        p(f'v_lshrrev_b32 v2, 3, v{vLANE}')
        p(f'v_lshrrev_b32 v3, 1, v2')
        p(f'v_lshlrev_b32 v3, 5, v3')
        p(f'v_and_b32 v4, 0x70, v{vL16}')
        p(f'v_xor_b32 v3, v3, v4')
        p(f'v_and_b32 v4, 4, v2')
        p(f'v_add_u32 v2, v2, v4')
        p(f'v_mul_u32_u24 v4, 3072, v2')
        p(f'v_add_u32 v{vDQ}, v4, v3')
        p(f'v_lshl_add_u32 v{vDP}, v2, 10, v3')
        p(f'v_add_u32 v{vDP+1}, {15*1024}, v{vDP}')
        p(f'v_add_u32 v{vDP+2}, {2*1024}, v{vDP}')
        p(f'v_add_u32 v{vDP+3}, {17*1024}, v{vDP}')
        p(f'v_mul_u32_u24 v4, 2752, v2')
        p(f'v_add_u32 v231, v4, v3')
        p.add([WLGA()])
        for b, k in ((S_X, 40), (S_WQ, 42), (S_WO, 44), (S_W1, 48), (S_W2, 50), (S_C, 52), (S_WM, 54), (S_OUT, 56), (S_WS, 58)):
            p(f's_mov_b64 s[{b}:{b+1}], s[{k}:{k+1}]')
        p(f's_load_dword s{sTAG}, s[58:59], {WS_EPOCH}')
        p(f's_lshl_b32 s{sR0}, s{sCL}, 6')

    def p0_loads(self):
        p = self.p
        p('s_cmp_ge_u32 s2, 96')
        p('s_cbranch_scc1 L_P0A')
        p.cond_begin()
        p(f'v_lshrrev_b32 v2, 2, v{vLANE}')
        p(f'v_and_b32 v3, 0x30, v{vL16}')
        p(f'v_mul_u32_u24 v2, {8*6144}, v2')
        p(f'v_add_u32 v2, v2, v3')
        p(f'v_lshlrev_b32 v3, 2, v{vLANE}')
        p(f's_lshl_b32 s{sT0}, s{sW}, 8')
        p(f'buffer_load_dword v200, v3, {srd(S_C)}, s{sT0} offen')
        p(f's_mul_i32 s{sT0}, s{sW}, {128*6144}')
        p(f's_lshl_b32 s{sT1}, s2, 6')
        p(f's_add_u32 s{sT0}, s{sT0}, s{sT1}')
        for i in range(8):
            p(f'buffer_load_dwordx4 {vr(160+4*i,4)}, v2, {srd(S_WM)}, s{sT0} offen')
            if i < 7: p(f's_add_u32 s{sT0}, s{sT0}, 6144')
        p.cond_end()
        p('L_P0A:')

    def x_loads(self):
        p = self.p
        p(f's_lshl_b32 s{sT0}, s{sW}, 3')
        p(f's_add_u32 s{sT0}, s{sT0}, s{sR0}')
        p(f's_cmp_lt_u32 s{sW}, 2')
        p(f's_cselect_b32 s{sT1}, 15, 32')
        p(f's_sub_i32 s{sT1}, s{sT0}, s{sT1}')
        p(f's_max_i32 s{sT1}, s{sT1}, 0')
        p(f's_lshl_b32 s{sT1}, s{sT1}, 10')
        p(f's_lshl_b32 s{sT0}, s{sT0}, 10')
        p(f's_add_u32 s{sT2}, s{sT0}, 32768')
        for T, (so, io) in enumerate(((sT1, 0), (sT0, 0), (sT0, 1024), (sT2, 0), (sT2, 1024))):
            for i in range(4):
                p(f'buffer_load_dwordx4 {vr(32*T+16+4*i,4)}, v1, {srd(S_X)}, s{so} offen offset:{io+256*i}')

    def dma_wq(self, s, slot):
        out = []
        if s == 0:
            out += [f's_and_b32 s{sT0}, s{sW}, 1', f's_lshl_b32 s{sT0}, s{sT0}, 4', f's_lshr_b32 s{sT1}, s{sW}, 1',
                    f's_lshl_b32 s{sT1}, s{sT1}, 2', f's_add_u32 s{sP}, s{sT0}, s{sT1}',
                    f's_mul_i32 s{sD0}, s{sP}, 3072', f's_lshl_b32 s{sT0}, s{sJ}, 7', f's_add_u32 s{sD0}, s{sD0}, s{sT0}',
                    f's_mul_i32 s{sD1}, s{sW}, 3072']
        else:
            out += [f's_add_u32 s{sD0}, s{sD0}, {32*3072}']
        out += [f's_add_u32 m0, s{sD1}, {L_RING + slot*SLOT}']
        for sec in range(3):
            out += [(f'buffer_load_dwordx4 v{vDQ}, {srd(S_WQ)}, s{sD0} offen offset:{1024*sec} lds', f'wq{s}')]
        return out

    def shared_tr_setup(self, colunit_expr_is_wave=True):
        o = []
        o += [f'v_lshrrev_b32 v2, 2, v{vLANE}', f'v_and_b32 v2, 7, v2',
              f'v_lshrrev_b32 v3, 1, v2', f'v_lshlrev_b32 v3, 5, v3',
              f'v_and_b32 v4, 3, v{vLANE}', f'v_lshlrev_b32 v4, 3, v4',
              f'v_lshl_add_u32 v4, v2, 7, v4',
              f'v_lshrrev_b32 v2, 5, v{vLANE}']
        o += [f'v_and_b32 v5, 0x30, v{vL16}', f'v_xor_b32 v5, v5, v3', f'v_and_b32 v6, 0x380, v4',
              f'v_add_u32 v5, v5, v6', f'v_lshl_add_u32 v{vTP}, v2, 10, v5']
        o += [f'v_mul_u32_u24 v2, 3072, v2', f'v_add_u32 v230, v4, v2',
              f'v_mov_b32 v229, v3',
              f's_lshl_b32 s{sT0}, s{sW}, 5', f'v_xor_b32 v3, s{sT0}, v3',
              f'v_add3_u32 v{vTS}, v230, v3, 0', f'v_add_u32 v{vTS}, {L_RING}, v{vTS}',
              f'v_add_u32 v{vTS+1}, {3*SLOT}, v{vTS}']
        return o

    def absorb_wq(self, s, slot):
        out = []
        base = vTS + (1 if slot >= 3 else 0)
        so = (slot % 3) * SLOT
        for sec in range(3):
            for h in range(2):
                out.append((f'ds_read_b64_tr_b16 {ar(s*12+sec*4+2*h,2)}, v{base} offset:{so+h*6144+sec*1024}', f'awq{s}'))
        return out

    def p0_compute(self):
        p = self.p
        p('s_cmp_ge_u32 s2, 96')
        p('s_cbranch_scc1 L_P0B')
        p.cond_begin()
        p('v_lshlrev_b32 v202, 16, v200')
        p('v_and_b32 v203, 0xffff0000, v200')
        p('v_mul_f32 v204, 0xbfb8aa3b, v202')
        p('v_mul_f32 v205, 0xbfb8aa3b, v203')
        p('v_exp_f32 v204, v204')
        p('v_exp_f32 v205, v205')
        for a in range(8): p(f'v_mov_b32 v{208+a}, 0')
        p('v_add_f32 v204, 1.0, v204')
        p('v_add_f32 v205, 1.0, v205')
        p('v_rcp_f32 v204, v204')
        p('v_rcp_f32 v205, v205')
        p('s_nop 0')
        p('v_mul_f32 v202, v202, v204')
        p('v_mul_f32 v203, v203, v205')
        p('v_cvt_pk_bf16_f32 v200, v202, v203')
        p('v_and_b32 v202, 0xffff, v200')
        p('v_lshlrev_b32 v203, 16, v200')
        p('v_lshrrev_b32 v204, 16, v200')
        p('v_and_b32 v205, 0xffff0000, v200')
        for i in range(8):
            q = i >> 1
            for d in range(4):
                for hh in range(2):
                    p(f'v_dot2c_f32_bf16_dpp v{208+2*d+hh}, v{202+2*(i&1)+hh}, v{160+4*i+d} quad_perm:[{q},{q},{q},{q}] row_mask:0xf bank_mask:0xf')
        for m in range(4): p(f'v_permlane32_swap_b32 v{208+m}, v{212+m}')
        for m in range(4): p(f'v_add_f32 v{208+m}, v{208+m}, v{212+m}')
        for m in range(2): p(f'v_permlane16_swap_b32 v{208+m}, v{210+m}')
        for m in range(2): p(f'v_add_f32 v{208+m}, v{208+m}, v{210+m}')
        p(f'v_and_b32 v202, 3, v{vLANE}')
        p(f'v_lshlrev_b32 v202, 5, v202')
        for sh in (8, 4):
            for m in range(2): p(f'v_add_f32_dpp v{208+m}, v{208+m}, v{208+m} row_ror:{sh} row_mask:0xf bank_mask:0xf')
            if sh == 8:
                p(f'v_lshl_add_u32 v202, v{vG}, 3, v202')
                p(f's_lshl_b32 s{sT0}, s{sW}, 7')
                p(f's_add_u32 s{sT0}, s{sT0}, {L_MISC+4096}')
                p(f'v_add_u32 v202, s{sT0}, v202')
        p(f'ds_write_b64 v202, v[208:209]')
        p.add(self.bar())
        p(f's_cmp_lg_u32 s{sW}, 0')
        p('s_cbranch_scc1 L_P0B')
        p(f'v_add_u32 v202, {L_MISC+4096}, v{vL16}')
        p('s_mov_b64 exec, 0xff')
        for k in range(4): p(f'ds_read_b128 {vr(208+4*k,4)}, v202 offset:{128*k}')
        p(f's_lshr_b32 s{sT0}, s2, 4')
        p(f's_cmp_eq_u32 s{sT0}, 1')
        p(f's_cselect_b32 s{sT1}, 1.0, 0')
        p(f's_cmp_eq_u32 s{sT0}, 4')
        p(f's_cselect_b32 s{sT1}, 1.0, s{sT1}')
        p(f's_lshl_b32 s{sT0}, s2, 7')
        p(f's_add_u32 s{sT0}, s{sT0}, {WS_MOD}')
        p('v_pk_add_f32 v[208:209], v[208:209], v[212:213]')
        p('v_pk_add_f32 v[210:211], v[210:211], v[214:215]')
        p('v_pk_add_f32 v[216:217], v[216:217], v[220:221]')
        p('v_pk_add_f32 v[218:219], v[218:219], v[222:223]')
        p('v_pk_add_f32 v[208:209], v[208:209], v[216:217]')
        p('v_pk_add_f32 v[210:211], v[210:211], v[218:219]')
        p('v_cvt_pk_bf16_f32 v208, v208, v209')
        p('v_cvt_pk_bf16_f32 v210, v210, v211')
        p('v_and_b32 v209, 0xffff0000, v208')
        p('v_lshlrev_b32 v208, 16, v208')
        p('v_and_b32 v211, 0xffff0000, v210')
        p('v_lshlrev_b32 v210, 16, v210')
        for k in range(4): p(f'v_add_f32 v{208+k}, s{sT1}, v{208+k}')
        p('v_cvt_pk_bf16_f32 v208, v208, v209')
        p('v_cvt_pk_bf16_f32 v209, v210, v211')
        p(f'v_mov_b32 v210, v{vTAG}')
        p(f'v_mov_b32 v211, v{vTAG}')
        p(f'buffer_store_dwordx4 v[208:211], v{vL16}, {srd(S_WS)}, s{sT0} offen sc1')
        p('s_mov_b64 exec, -1')
        p.cond_end()
        p('L_P0B:')

    def tag_and_hello(self):
        p = self.p
        p.add([WLGA()])
        p(f's_mul_i32 s{sTAG}, s{sTAG}, 1664525')
        p(f's_add_u32 s{sTAG}, s{sTAG}, 1013904223')
        p(f'v_mov_b32 v{vTAG}, s{sTAG}')
        p(f's_mov_b32 s{sONES}, 0x3f803f80')
        p(f's_lshl_b32 s{sOB}, s{sCL}, 16')
        p(f's_add_u32 s{sXB}, s{sOB}, {WS_X1}')
        p(f's_add_u32 s{sOB}, s{sOB}, {WS_O}')
        p(f's_mul_i32 s{sHB}, s{sCL}, {H_CL}')
        p(f's_add_u32 s{sHB}, s{sHB}, {WS_H}')
        p(f's_lshl_b32 s{sFL}, s{sCL}, 7')
        p(f's_add_u32 s{sFL}, s{sFL}, {WS_FLAG}')
        p(f's_min_u32 s{sT0}, s{sJ}, 3')
        p(f's_mul_i32 s{sU0}, s{sJ}, 5')
        p(f's_add_u32 s{sU0}, s{sU0}, s{sT0}')

    def hello_store(self):
        p = self.p
        p(f's_cmp_lg_u32 s{sW}, 3')
        p('s_cbranch_scc1 L_HEL')
        p.cond_begin()
        p(f's_lshl_b32 s{sT0}, s2, 2')
        p(f's_add_u32 s{sT0}, s{sT0}, {WS_HELLO}')
        p('s_mov_b64 exec, 1')
        p(f'buffer_store_dword v{vTAG}, v{vL16}, {srd(S_WS)}, s{sT0} offen sc1')
        p('s_mov_b64 exec, -1')
        p.cond_end()
        p('L_HEL:')

    def ln_stats(self):
        o = []
        SB = 208
        for T in range(5):
            o += [f'v_mov_b32 v{SB+2*T}, 0', f'v_mov_b32 v{SB+2*T+1}, 0']
        for T in range(5):
            for m in range(16):
                x = 32*T+16+m
                o += [f'v_dot2c_f32_bf16 v{SB+2*T}, s{sONES}, v{x}', f'v_dot2c_f32_bf16 v{SB+2*T+1}, v{x}, v{x}']
        for sh in (8, 4, 2, 1):
            for k in range(10):
                o += [f'v_add_f32_dpp v{SB+k}, v{SB+k}, v{SB+k} row_ror:{sh} row_mask:0xf bank_mask:0xf']
        inv = '0x3b000000'
        for T in range(5): o += [f'v_mul_f32 v{SB+2*T}, {inv}, v{SB+2*T}']
        for T in range(5): o += [f'v_mul_f32 v{SB+2*T+1}, {inv}, v{SB+2*T+1}']
        for T in range(5): o += [f'v_fma_f32 v{SB+2*T+1}, -v{SB+2*T}, v{SB+2*T}, v{SB+2*T+1}']
        for T in range(5): o += [f'v_max_f32 v{SB+2*T+1}, 0, v{SB+2*T+1}']
        for T in range(5): o += [f'v_add_f32 v{SB+2*T+1}, 0x3727c5ac, v{SB+2*T+1}']
        for T in range(5): o += [f'v_rsq_f32 v{SB+2*T+1}, v{SB+2*T+1}']
        for T in range(5): o += [f'v_mul_f32_e64 v{SB+2*T}, -v{SB+2*T}, v{SB+2*T+1}']
        for T in range(5):
            for m in range(16):
                x = 32*T+16+m; d = 32*T+2*m
                o += [f'v_lshlrev_b32 v{d}, 16, v{x}', f'v_and_b32 v{d+1}, 0xffff0000, v{x}']
            for m in range(16):
                d = 32*T+2*m
                o += [f'v_pk_fma_f32 {vr(d,2)}, {vr(d,2)}, {vr(SB+2*T,2)}, {vr(SB+2*T,2)} op_sel:[0,1,0] op_sel_hi:[1,1,0]']
        return o

    def poll_tagged(self, dsts, soffs, name):
        p = self.p
        L = p.label('L_PT'); D = p.label('L_PD')
        p(f's_mov_b32 s{sSPIN}, 20000')
        p(f'{L}:')
        for d, so in zip(dsts, soffs):
            p(f'buffer_load_dwordx4 {vr(d,4)}, v{vL16}, {srd(S_WS)}, s{so} offen sc1')
        p('s_waitcnt vmcnt(0)')
        p(f'v_cmp_ne_u32 vcc, s{sTAG}, v{dsts[0]+2}')
        for d in dsts[1:]:
            p(f'v_cmp_ne_u32 s[{sT4}:{sT5}], s{sTAG}, v{d+2}')
            p(f's_or_b64 vcc, vcc, s[{sT4}:{sT5}]')
        p(f's_cbranch_vccz {D}')
        p(f's_sub_u32 s{sSPIN}, s{sSPIN}, 1')
        p(f's_cbranch_scc0 {L}')
        p(f'{D}:')

    def mod_a(self):
        p = self.p
        p(f's_lshl_b32 s{sT0}, s{sW}, 10')
        p(f's_add_u32 s{sT1}, s{sT0}, {WS_MOD}')
        p(f's_add_u32 s{sT0}, s{sT0}, {L_MISC}')
        p(f'v_add_u32 v224, s{sT0}, v{vL16}')
        p(f'v_lshlrev_b32 v225, 5, v{vC}')
        p(f'v_add_u32 v225, {L_MISC}, v225')
        p(f's_lshl_b32 s{sT2}, s{sW}, 2')
        p(f'v_add_u32 v226, s{sT2}, v{vG}')
        p(f'v_and_b32 v227, 7, v{vC}')
        p(f'v_xor_b32 v226, v226, v227')
        p(f'v_lshlrev_b32 v226, 4, v226')
        p(f'v_lshl_add_u32 v{vHW}, v{vC}, 8, v226')
        p(f'v_add_u32 v{vHW+1}, 65536, v{vHW}')
        self.poll_tagged([160], [sT1], 'moda')
        p.add(self.stamp('moda'))
        p('v_and_b32 v163, 0xffff0000, v161')
        p('v_lshlrev_b32 v162, 16, v161')
        p('v_and_b32 v161, 0xffff0000, v160')
        p('v_lshlrev_b32 v160, 16, v160')
        p('ds_write_b128 v224, v[160:163]')
        p.add(self.bar())
        for i in range(4):
            for v in (1, 0):
                for hh in range(2):
                    p(f'ds_read_b128 {vr(160+32*v+8*i+4*hh,4)}, v225 offset:{2048*v+512*i+16*hh}')
        for i in range(4):
            for T in range(5):
                b = 32*T+8*i
                for m in range(4):
                    p(f'v_pk_fma_f32 {vr(b+2*m,2)}, {vr(b+2*m,2)}, {vr(192+8*i+2*m,2)}, {vr(160+8*i+2*m,2)}')
                for m in range(4):
                    p(f'v_cvt_pk_bf16_f32 v{b+m}, v{b+2*m}, v{b+2*m+1}')
                base = vHW + (1 if T == 4 else 0)
                p(f'ds_write_b128 v{base}, {vr(b,4)} offset:{(T%4)*16384+i*4096}')

    def dma_priv(self, S, soff_reg, lds_off, tag):
        out = [f's_add_u32 m0, s{sMW}, {lds_off}']
        for b in range(4):
            out.append((f'buffer_load_dwordx4 v{vDP+b}, {srd(S)}, s{soff_reg} offen offset:{1024*b} lds', tag))
        out.append(f's_add_u32 s{soff_reg}, s{soff_reg}, 32768')
        return out

    def absorb_priv(self, basereg, lds_off, dst, tag):
        out = []
        for ct in range(4):
            pp, t = ct >> 1, ct & 1
            for h in range(2):
                out.append((f'ds_read_b64_tr_b16 {rr((dst[0], dst[1]+4*ct+2*h),2)}, v{basereg+pp} offset:{lds_off+h*2048+8*t}', tag))
        return out

    def p1_gemm(self, fill):
        o = []
        FR = 56
        rb = [96, 97, 98, 99]
        pre = [f'v_xor_b32 v{rb[0]}, v{vC}, v{vG}', f'v_lshlrev_b32 v{rb[0]}, 4, v{rb[0]}',
               f'v_lshl_add_u32 v{rb[0]}, v{vG}, 8, v{rb[0]}', f'v_xor_b32 v{rb[1]}, 64, v{rb[0]}',
               f'v_add_u32 v{rb[2]}, 65536, v{rb[0]}', f'v_add_u32 v{rb[3]}, 65536, v{rb[1]}']
        def rd(T, s):
            return f'ds_read_b128 {vr(FR+20*(s&1)+4*T,4)}, v{rb[(s&1)+(2 if T==4 else 0)]} offset:{(T%4)*16384+s*1024}'
        main = []
        first = [rd(T, 0) for T in range(5)]
        for s in range(16):
            ms = []
            for T in range(5):
                h = vr(FR+20*(s&1)+4*T, 4)
                def C(a): return '0' if s == 0 else vr(a, 4)
                ms.append(f'v_mfma_f32_16x16x32_bf16 {vr(16+4*T,4)}, {ar(s*12+4,4)}, {h}, {C(16+4*T)}')
                ms.append(f'v_mfma_f32_16x16x32_bf16 {vr(36+4*T,4)}, {h}, {ar(s*12+8,4)}, {C(36+4*T)}')
                if T > 0:
                    ms.append(f'v_mfma_f32_16x16x32_bf16 {vr(4*(T-1),4)}, {ar(s*12,4)}, {h}, {C(4*(T-1))}')
            if s < 15:
                ms = interleave(ms, [rd(T, s+1) for T in range(5)], every=2, per=1, start=0)
            main += ms
        return pre, first, main

    def attn_masks(self):
        o = []
        o += [f'v_lshlrev_b32 v120, 2, v{vG}', f'v_sub_u32 v120, v120, v{vC}',
              f'v_mov_b32 v121, 0xf149f2ca',
              f's_cmp_eq_u32 s{sCL}, 0', f's_cselect_b32 s{sT0}, 100, 9', f's_cselect_b32 s{sT1}, 100, 1',
              f'v_and_b32 v122, 2, v{vG}', f'v_lshlrev_b32 v122, 6, v122', f'v_sub_u32 v122, v120, v122']
        g = []
        for r in range(4):
            g.append([f'v_add_u32 v123, {r+7}, v120', f'v_cmp_gt_u32 vcc, 8, v123', f'v_cndmask_b32 v{100+r}, v121, 0, vcc',
                      f'v_cndmask_b32 v{124+r}, 0, -1, vcc'])
            g.append([f'v_add_u32 v123, {r}, v120', f'v_cmp_le_i32 vcc, 9, v123', f'v_cndmask_b32 v{104+r}, v121, 0, vcc',
                      f'v_cmp_le_i32 vcc, s{sT0}, v123', f'v_cndmask_b32 v{108+r}, v121, 0, vcc'])
            g.append([f'v_add_u32 v123, {r}, v122', f'v_cmp_le_i32 vcc, s{sT1}, v123', f'v_cndmask_b32 v{112+r}, v121, 0, vcc'])
        for x in g: o += x
        o += [f'v_mov_b32 v123, 0xffff', 'v_bfi_b32 v116, v123, v124, v125', 'v_bfi_b32 v117, v123, v126, v127',
              'v_not_b32 v118, v116', 'v_not_b32 v119, v117',
              f'v_mov_b32 v120, s{sONES}', f'v_mov_b32 v121, s{sONES}',
              f's_mov_b32 s{sK}, 0x3eb8aa3b', f's_mov_b32 s{sK+1}, 0x3eb8aa3b']
        o += [f'v_and_b32 v{vST}, 1, v{vG}', f'v_lshlrev_b32 v{vST}, 14, v{vST}', f'v_lshrrev_b32 v123, 1, v{vG}',
              f'v_lshl_add_u32 v{vST}, v123, 8, v{vST}', f'v_lshl_add_u32 v{vST}, v{vC}, 4, v{vST}']
        return o

    def attention(self):
        p = self.p
        QB, KB, VB = 128, 136, 146
        vpos = {4: 0, 2: 2, 0: 4, 1: 6, 3: 8}
        SP, SC = 56, 72
        prevT = [0, 0, 1, 2]; biasP = [108, 112, 104, 104]
        def cv(d, a): return [f'v_cvt_pk_bf16_f32 v{d}, v{a}, v{a+1}', f'v_cvt_pk_bf16_f32 v{d+1}, v{a+2}, v{a+3}']
        p.add(cv(KB, 16))
        for t in range(4):
            p.add(cv(KB+2*(t+1), 16+4*(t+1)) + cv(QB+2*t, 4*t))
        for t in range(4):
            p(f'v_mfma_f32_16x16x16_bf16 {vr(SP+4*t,4)}, {vr(KB+2*prevT[t],2)}, {vr(QB+2*t,2)}, {vr(biasP[t],4)}')
            p(f'v_mfma_f32_16x16x16_bf16 {vr(SC+4*t,4)}, {vr(KB+2*(t+1),2)}, {vr(QB+2*t,2)}, {vr(100,4)}')
        for T in range(5): p.add(cv(VB+vpos[T], 36+4*T))
        M = 88
        for t in range(4):
            for r in range(4): p(f'v_max_f32 v{SP+4*t+r}, v{SP+4*t+r}, v{SC+4*t+r}')
            p(f'v_max3_f32 v{M+t}, v{SP+4*t}, v{SP+4*t+1}, v{SP+4*t+2}')
            p(f'v_max_f32 v{M+t}, v{M+t}, v{SP+4*t+3}')
        p(f'v_permlane32_swap_b32 v{M}, v{M+1}')
        p(f'v_permlane32_swap_b32 v{M+2}, v{M+3}')
        p(f'v_max_f32 v{M}, v{M}, v{M+1}')
        p(f'v_max_f32 v{M+2}, v{M+2}, v{M+3}')
        p(f'v_permlane16_swap_b32 v{M}, v{M+2}')
        p(f'v_max_f32 v{M}, v{M}, v{M+2}')
        p(f'v_mul_f32 v{M}, 0xbeb8aa3b, v{M}')
        p(f'v_mov_b32 v{M+4}, v{M}')
        p(f'v_permlane16_swap_b32 v{M}, v{M+4}')
        p(f'v_mov_b32 v{M+2}, v{M}')
        p(f'v_mov_b32 v{M+6}, v{M+4}')
        p(f'v_permlane32_swap_b32 v{M}, v{M+2}')
        p(f'v_permlane32_swap_b32 v{M+4}, v{M+6}')
        PB = 0
        for t in range(4):
            for hh in range(2):
                a = SP+4*t+2*hh
                p(f'v_pk_fma_f32 {vr(a,2)}, {vr(a,2)}, s[{sK}:{sK+1}], {vr(M+2*t,2)} op_sel_hi:[1,1,0]')
            for r in range(4): p(f'v_exp_f32 v{SP+4*t+r}, v{SP+4*t+r}')
        for t in range(4):
            p.add(cv(16+2*t, SP+4*t))
            e = (t & 1) == 0
            pp, pc = (PB+4*t, PB+4*t+2) if e else (PB+4*t+2, PB+4*t)
            for hh in range(2):
                p(f'v_and_b32 v{pp+hh}, v{118+hh}, v{16+2*t+hh}')
                p(f'v_and_b32 v{pc+hh}, v{116+hh}, v{16+2*t+hh}')
        OA = [VB+4, VB+2, VB+6, VB+0]
        for t in range(4):
            p(f'v_mfma_f32_16x16x16_bf16 {vr(SC+4*t,4)}, v[120:121], {vr(16+2*t,2)}, 0')
            p(f'v_mfma_f32_16x16x32_bf16 {vr(SP+4*t,4)}, {vr(OA[t],4)}, {vr(PB+4*t,4)}, 0')
        p(f's_lshl_b32 s{sT0}, s{sJ}, 11')
        p(f's_lshl_b32 s{sT1}, s{sW}, 9')
        p(f's_add_u32 s{sT0}, s{sT0}, s{sT1}')
        p(f's_add_u32 s{sT0}, s{sT0}, s{sOB}')
        p(f's_add_u32 s{sT1}, s{sT0}, 32768')
        for t in range(4): p(f'v_rcp_f32 v{SC+4*t}, v{SC+4*t}')
        for t in range(4):
            for hh in range(2):
                a = SP+4*t+2*hh
                p(f'v_pk_mul_f32 {vr(a,2)}, {vr(a,2)}, {vr(SC+4*t,2)} op_sel_hi:[1,0]')
            p.add(cv(24+2*t, SP+4*t))
            if t & 1:
                b = 24+2*(t-1)
                p(f'v_permlane16_swap_b32 v{b}, v{b+2}')
                p(f'v_permlane16_swap_b32 v{b+1}, v{b+3}')
                p(f'buffer_store_dwordx4 {vr(b,4)}, v{vST}, {srd(S_WS)}, s{sT0 if t==1 else sT1} offen sc1')

    def publish(self, ph, between=()):
        p = self.p
        p.add(between)
        p.add([WVMA()])
        p.add(self.bar())
        L = p.label('L_PUB')
        p(f's_cmp_lg_u32 s{sW}, 0')
        p(f's_cbranch_scc1 {L}')
        p.cond_begin()
        p(f's_lshl_b32 s{sT0}, s{sJ}, 2')
        p(f's_add_u32 s{sT0}, s{sT0}, s{sFL}')
        p(f's_add_u32 s{sT0}, s{sT0}, {ph*4096}')
        p('s_mov_b64 exec, 1')
        p(f'buffer_store_dword v{vTAG}, v{vL16}, {srd(S_WS)}, s{sT0} offen sc1')
        p('s_mov_b64 exec, -1')
        p.cond_end()
        p(f'{L}:')

    def wait_flags(self, ph, tmp):
        p = self.p
        L = p.label('L_WF'); D = p.label('L_WD'); D2 = p.label('L_WE')
        p(f's_cmp_lg_u32 s{sW}, 0')
        p(f's_cbranch_scc1 {D2}')
        p.cond_begin()
        p(f's_add_u32 s{sT0}, s{sFL}, {ph*4096}')
        p(f'v_lshlrev_b32 v{tmp+1}, 2, v{vLANE}')
        p(f's_mov_b32 s{sSPIN}, 20000')
        p('s_mov_b64 exec, 0xff')
        p(f'{L}:')
        p(f'buffer_load_dword v{tmp}, v{tmp+1}, {srd(S_WS)}, s{sT0} offen sc1')
        p('s_waitcnt vmcnt(0)')
        p(f'v_cmp_ne_u32 vcc, s{sTAG}, v{tmp}')
        p(f's_cbranch_vccz {D}')
        p(f's_sub_u32 s{sSPIN}, s{sSPIN}, 1')
        p(f's_cbranch_scc0 {L}')
        p(f'{D}:')
        p('s_mov_b64 exec, -1')
        p.cond_end()
        p(f'{D2}:')
        p.add(self.bar())

    def unpack8(self, dst, src):
        o = []
        for k in range(8):
            o += [f'v_lshlrev_b32 v{dst+2*k}, 16, v{src+k}', f'v_and_b32 v{dst+2*k+1}, 0xffff0000, v{src+k}']
        return o

    def build(self):
        p = self.p
        self.prologue()
        p.add(self.stamp('karg'))
        self.p0_loads()
        p.add(self.stamp('p0iss'))
        self.x_loads()
        p.add(self.stamp('xiss'))
        for s in range(6): p.add(self.dma_wq(s, s))
        p.add(self.shared_tr_setup())
        p.add(self.stamp('issued'))
        self.tag_and_hello()
        p.add(self.stamp('epoch'))
        self.p0_compute()
        self.hello_store()
        p.add(self.stamp('p0done'))
        p.add(self.ln_stats())
        p.add(self.stamp('lndone'))
        for s in range(16):
            p.add([WVM(f'wq{s}')])
            p.add(self.bar())
            if s >= 1 and s+5 < 16: p.add(self.dma_wq(s+5, (s+5) % 6))
            p.add(self.absorb_wq(s, s % 6))
        p.add(self.stamp('wqdone'))
        self.mod_a()
        pre, first, main = self.p1_gemm([])
        p.add(pre)
        p.add(self.bar())
        p.add(self.stamp('hready'))
        p.add(first)
        fill = []
        fill.append([f's_lshl_b32 s{sMW}, s{sW}, 14', f's_add_u32 s{sMW}, s{sMW}, {L_RING}',
                     f's_lshl_b32 s{sD0}, s{sW}, 17', f's_lshl_b32 s{sT0}, s{sJ}, 7', f's_add_u32 s{sD0}, s{sD0}, s{sT0}'])
        for i in range(4):
            for x in self.dma_priv(S_WO, sD0, 4096*i, f'wo{i}'): fill.append(x)
        fill += [f'v_lshlrev_b32 v228, 11, v{vC}', f'v_lshl_add_u32 v228, v{vG}, 4, v228',
                 f's_lshr_b32 s{sT0}, s{sW}, 1', f's_lshl_b32 s{sT0}, s{sT0}, 5', f's_and_b32 s{sT1}, s{sW}, 1',
                 f's_add_u32 s{sT0}, s{sT0}, s{sT1}', f's_add_u32 s{sT0}, s{sT0}, s{sR0}', f's_lshl_b32 s{sT0}, s{sT0}, 10',
                 f's_lshl_b32 s{sT1}, s{sJ}, 7', f's_add_u32 s43, s{sT0}, s{sT1}']
        fill += [f'buffer_load_dwordx4 {vr(vX2+4*pp,4)}, v228, {srd(S_X)}, s43 offen offset:{64*pp}' for pp in range(2)]
        fill += self.attn_masks()
        fill += [f'v_add_u32 v226, s{sMW}, v{vTP}', f'v_xor_b32 v227, 64, v226']
        p.add(spread(main, fill, 4, 150))
        p.add(self.stamp('p1gemm'))
        self.attention()
        p.add(self.stamp('attn'))
        ab = []
        for i in range(4):
            ab += [WVM(f'wo{i}')] + self.absorb_priv(226, 4096*i, ('a', 192+16*i), f'awo{i}')
        p.add(ab)
        p(f's_lshl_b32 s{sT0}, s{sW}, 10')
        p(f's_add_u32 s{sT0}, s{sT0}, {WS_MOD+4096}')
        p(f's_add_u32 s{sT1}, s{sT0}, 4096')
        p(f's_lshl_b32 s{sT2}, s{sW}, 9')
        p(f's_add_u32 s{sT2}, s{sT2}, {L_MISC}')
        p(f'v_lshlrev_b32 v224, 3, v{vLANE}')
        p(f'v_add_u32 v224, s{sT2}, v224')
        self.poll_tagged([160, 164], [sT0, sT1], 'modb')
        p('ds_write_b64 v224, v[160:161]')
        p('ds_write_b64 v224, v[164:165] offset:2048')
        self.publish(0)
        p.add(self.stamp('pub1'))
        p.add(self.flush())
        if self.stop == 1: return self.finish()
        w1slot = lambda k: (L_RING + (k % 8)*SLOT) if (k % 8) < 6 else (49152 + ((k % 8)-6)*SLOT)
        def dma_w1(s):
            o = []
            if s == 0:
                o += [f's_mul_i32 s{sD0}, s{sP}, 2752', f's_lshl_b32 s{sT0}, s{sU0}, 6', f's_add_u32 s{sD0}, s{sD0}, s{sT0}']
            else:
                o += [f's_add_u32 s{sD0}, s{sD0}, {32*2752}']
            for sec in range(3):
                o += [f's_add_u32 m0, s{sD1}, {w1slot(s) + sec*896}',
                      (f'buffer_load_dwordx4 v231, {srd(S_W1)}, s{sD0} offen offset:{128*sec} lds', f'w1{s}')]
            return o
        w1b = []
        for m in range(3):
            w1b += [f's_mul_i32 s{sT0}, s{sW}, 3', f's_add_u32 s{sT0}, s{sT0}, {m}', f's_and_b32 s{sT1}, s{sT0}, 3',
                    f's_lshl_b32 s{sT1}, s{sT1}, 5', f's_lshr_b32 s{sT0}, s{sT0}, 2', f's_lshl_b32 s{sT0}, s{sT0}, 10',
                    f's_add_u32 s{sT0}, s{sT0}, 49152',
                    f'v_xor_b32 v{218+m}, s{sT1}, v229', f'v_add3_u32 v{218+m}, v{218+m}, v230, s{sT0}',
                    f'v_add_u32 v{221+m}, {5*SLOT}, v{218+m}']
        def absorb_w1(s):
            o = []
            off = w1slot(s) - 49152
            hi = off + 6144 > 65535
            if hi: off -= 5*SLOT
            assert 0 <= off and off + 6144 <= 65535
            for m in range(3):
                for h in range(2):
                    o.append((f'ds_read_b64_tr_b16 {ar(s*12+m*4+2*h,2)}, v{218+m+(3 if hi else 0)} offset:{off+h*6144}', f'aw1{s}'))
            return o
        for s in range(8): p.add(dma_w1(s))
        p.add(w1b)
        p(f's_lshl_b32 s{sT0}, s{sJ}, 7')
        p(f's_add_u32 s{sT0}, s{sT0}, {L_MISC}')
        p(f'v_lshlrev_b32 v224, 4, v{vG}')
        p(f'v_add_u32 v224, s{sT0}, v224')
        for k, off in enumerate((0, 2048, 3072)):
            for pp in range(2):
                p(f'ds_read_b128 {vr(128+8*k+4*pp,4)}, v224 offset:{off+64*pp}')
        p.add(self.unpack8(184, 128) + self.unpack8(200, 136))
        GBP = 176
        for k in range(8): p(f'v_mov_b32 v{GBP+k}, v{144+k}')
        p.add([WVMA()])
        self.wait_flags(0, 128)
        p.add(self.stamp('flag1'))
        mid = []
        for s in range(8): mid += absorb_w1(s)
        self.ksplit(4, lambda i, ct: ar(192+16*i+4*ct, 4), lambda n, i: ('v', 16*n+4*i), 64, sOB, 16384, 4096, 0, 0, 160, False, mid=mid)
        p.add(self.stamp('p2gemm'))
        Y = 112
        p.add(self.unpack8(128, vX2))
        for k in range(8): p(f'v_pk_fma_f32 {vr(Y+2*k,2)}, {vr(Y+2*k,2)}, {vr(184+2*k,2)}, {vr(128+2*k,2)}')
        for k in range(8): p(f'v_cvt_pk_bf16_f32 v{vX2+k}, v{Y+2*k}, v{Y+2*k+1}')
        p.add(self.unpack8(128, vX2))
        p('v_mov_b32 v144, 0')
        p('v_mov_b32 v145, 0')
        for k in range(8): p(f'v_pk_mul_f32 {vr(128+2*k,2)}, {vr(128+2*k,2)}, {vr(200+2*k,2)}')
        for k in range(8): p(f'v_cvt_pk_bf16_f32 v{Y+k}, v{128+2*k}, v{128+2*k+1}')
        p(f's_lshl_b32 s{sT0}, s{sW}, 14')
        p(f's_lshl_b32 s{sT1}, s{sJ}, 11')
        p(f's_add_u32 s{sT0}, s{sT0}, s{sT1}')
        p(f's_add_u32 s{sT0}, s{sT0}, s{sXB}')
        for pp in range(2):
            p(f'buffer_store_dwordx4 {vr(Y+4*pp,4)}, v{vL16}, {srd(S_WS)}, s{sT0} offen offset:{1024*pp} sc1')
        for k in range(8):
            p(f'v_dot2c_f32_bf16 v144, s{sONES}, v{vX2+k}')
            p(f'v_dot2c_f32_bf16 v145, v{vX2+k}, v{vX2+k}')
        p(f'v_lshrrev_b32 v146, 1, v{vG}')
        p(f'v_lshlrev_b32 v146, 2, v146')
        p(f'v_lshl_add_u32 v146, v{vC}, 4, v146')
        p('v_permlane32_swap_b32 v144, v145')
        p(f's_lshl_b32 s{sT0}, s{sCL}, 12')
        p(f's_lshl_b32 s{sT1}, s{sW}, 10')
        p(f's_add_u32 s{sT0}, s{sT0}, s{sT1}')
        p('v_add_f32 v144, v144, v145')
        p(f's_lshr_b32 s{sT1}, s{sJ}, 1')
        p(f's_lshl_b32 s{sT1}, s{sT1}, 8')
        p('v_mov_b32 v145, v144')
        p(f's_add_u32 s{sT0}, s{sT0}, s{sT1}')
        p(f's_and_b32 s{sT1}, s{sJ}, 1')
        p(f's_lshl_b32 s{sT1}, s{sT1}, 3')
        p('v_permlane16_swap_b32 v144, v145')
        p(f's_add_u32 s{sT0}, s{sT0}, s{sT1}')
        p(f's_add_u32 s{sT0}, s{sT0}, {WS_ST}')
        p('v_add_f32 v144, v144, v145')
        p(f'buffer_store_dword v144, v146, {srd(S_WS)}, s{sT0} offen sc1')
        self.publish(1)
        p.add(self.stamp('pub2'))
        if self.stop == 2: return self.finish()
        for s in range(8, 16): p.add(dma_w1(s))
        p.add([WVMA()])
        p.add(self.bar())
        for s in range(8, 16): p.add(absorb_w1(s))
        p(f'v_and_b32 v224, 8, v{vC}')
        p(f'v_lshlrev_b32 v224, 7, v224')
        p(f'v_sub_u32 v224, {L_MISC+2048}, v224')
        p(f'v_lshl_add_u32 v224, v{vG}, 4, v224')
        for s in range(16): p(f'ds_read_b128 {vr(4*s,4)}, v224 offset:{64*s}')
        U, V = 128, 140
        for s in range(16):
            for m in range(3):
                p(f'v_mfma_f32_16x16x32_bf16 {vr(U+4*m,4)}, {ar(s*12+4*m,4)}, {vr(4*s,4)}, {"0" if s==0 else vr(U+4*m,4)}')
        for k in range(12): p(f'v_mov_b32 v{V+k}, v{U+k}')
        for k in range(12): p(f'v_mov_b32_dpp v{V+k}, v{U+k} row_ror:8 row_mask:0xf bank_mask:0x3')
        for k in range(12): p(f'v_mov_b32_dpp v{U+k}, v{U+k} row_ror:8 row_mask:0xf bank_mask:0xc')
        self.wait_flags(1, 0)
        p.add(self.stamp('flag2'))
        p(f's_lshl_b32 s{sT0}, s{sW}, 14')
        p(f's_add_u32 s{sT1}, s{sT0}, s{sXB}')
        for q in range(4):
            p(f's_add_u32 m0, s{sT0}, {4096*q}')
            for i in range(4):
                p(f'buffer_load_dwordx4 v{vL16}, {srd(S_WS)}, s{sT1} offen offset:{1024*i} sc1 lds', f'x1{q}')
            if q < 3: p(f's_add_u32 s{sT1}, s{sT1}, 4096')
        p(f's_lshl_b32 s{sT0}, s{sCL}, 12')
        p(f's_add_u32 s{sT0}, s{sT0}, {WS_ST}')
        STT = 152
        for t in range(4):
            p(f'buffer_load_dwordx4 {vr(STT+4*t,4)}, v{vL16}, {srd(S_WS)}, s{sT0} offen offset:{1024*t} sc1')
        w2reg = lambda i: ('a', 192+16*i) if i < 4 else ('a', 16*(i-4))
        setup2 = [f's_mul_i32 s{sMW}, s{sW}, 20480', f's_add_u32 s{sMW}, s{sMW}, 65536',
                  f's_mul_i32 s{sD0}, s{sW}, {11*32768}', f's_lshl_b32 s{sT0}, s{sJ}, 7', f's_add_u32 s{sD0}, s{sD0}, s{sT0}',
                  f'v_add_u32 v226, s{sMW}, v{vTP}', f'v_xor_b32 v227, 64, v226']
        p.add(setup2)
        dw2 = lambda i: self.dma_priv(S_W2, sD0, 4096*(i % 5), f'w2{i}')
        aw2 = lambda i: [WVM(f'w2{i}')] + self.absorb_priv(226, 4096*(i % 5), w2reg(i), f'aw2{i}')
        FR = 48
        def rd(t, s): return f'ds_read_b128 {vr(FR+16*(s&1)+4*t,4)}, v{vL16} offset:{t*16384+s*1024}'
        st = []
        for t in range(4):
            st += [f'v_add_f32 v{STT+4*t}, v{STT+4*t}, v{STT+4*t+2}', f'v_add_f32 v{STT+4*t+1}, v{STT+4*t+1}, v{STT+4*t+3}']
        for k in range(2):
            a = STT+k
            st += [f'v_permlane32_swap_b32 v{a}, v{a+4}', f'v_permlane32_swap_b32 v{a+8}, v{a+12}',
                   f'v_add_f32 v{a}, v{a}, v{a+4}', f'v_add_f32 v{a+8}, v{a+8}, v{a+12}',
                   f'v_permlane16_swap_b32 v{a}, v{a+8}', f'v_add_f32 v{a}, v{a}, v{a+8}']
        a = STT
        st += [f'v_mul_f32 v{a}, 0x3b000000, v{a}', f'v_mul_f32 v{a+1}, 0x3b000000, v{a+1}',
               f'v_fma_f32 v{a+1}, -v{a}, v{a}, v{a+1}', f'v_max_f32 v{a+1}, 0, v{a+1}', f'v_add_f32 v{a+1}, 0x3727c5ac, v{a+1}',
               f'v_rsq_f32 v{a+1}, v{a+1}', f'v_mul_f32_e64 v{a}, -v{a}, v{a+1}']
        for k in range(2):
            a = STT+k
            st += [f'v_mov_b32 v{a+8}, v{a}', f'v_permlane16_swap_b32 v{a}, v{a+8}',
                   f'v_mov_b32 v{a+4}, v{a}', f'v_mov_b32 v{a+12}, v{a+8}',
                   f'v_permlane32_swap_b32 v{a}, v{a+4}', f'v_permlane32_swap_b32 v{a+8}, v{a+12}']
        TT = 80
        for t in range(4):
            for k in range(12):
                st += [f'v_fma_f32 v{TT+12*t+k}, v{STT+4*t}, v{U+k}, v{V+k}']
        st += [f'v_and_b32 v{vST}, 1, v{vG}', f'v_mul_u32_u24 v{vST}, {H_TILE}, v{vST}', f'v_lshrrev_b32 v224, 1, v{vG}',
               f'v_lshl_add_u32 v{vST}, v224, 8, v{vST}', f'v_lshl_add_u32 v{vST}, v{vC}, 4, v{vST}']
        main = []
        for s in range(16):
            ms = []
            for t in range(4):
                for m in range(3):
                    a = 12*t+4*m
                    ms.append(f'v_mfma_f32_16x16x32_bf16 {vr(a,4)}, {ar(s*12+4*m,4)}, {vr(FR+16*(s&1)+4*t,4)}, {"0" if s==0 else vr(a,4)}')
            nxt = []
            if s < 15:
                nxt = [rd(t, s+1) for t in range(4)]
                if (s+1) % 4 == 0:
                    nxt = [[WVM(f'x1{(s+1)//4}'), 's_barrier', nxt[0]]] + nxt[1:]
            ms = spread(ms, nxt, 1, 9)
            main.append(ms)
        p.add([WVM('x10'), 's_barrier'])
        p.add([rd(t, 0) for t in range(4)])
        for s in range(16):
            f = []
            if s < 5: f += dw2(s)
            if 5 <= s < 12:
                n = len(st); f += st[(s-5)*n//7:(s-4)*n//7]
            if s >= 12:
                f += aw2(s-12) + [WLG(f'aw2{s-12}')] + dw2(s-12+5)
            p.add(spread(main[s], f, 0, len(main[s])))
        p.add(self.stamp('p3gemm'))
        p(f's_cmp_ge_u32 s{sJ}, 3')
        p(f's_cselect_b32 s{sT2}, 3, 99')
        p(f's_mul_i32 s{sT0}, s{sW}, {3*512}')
        p(f's_lshl_b32 s{sT1}, s{sU0}, 10')
        p(f's_add_u32 s{sT0}, s{sT0}, s{sT1}')
        p(f's_add_u32 s{sT0}, s{sT0}, s{sHB}')
        p(f's_cmp_eq_u32 s{sW}, s{sT2}')
        p(f's_cselect_b32 s{sT1}, {OOB}, s{sT0}')
        for pr in range(2):
            for m in range(3):
                b = FR+12*pr+4*m
                for tt in range(2):
                    t = 2*pr+tt
                    a = 12*t+4*m
                    for hh in range(2):
                        p(f'v_pk_fma_f32 {vr(a+2*hh,2)}, {vr(a+2*hh,2)}, {vr(STT+4*t,2)}, {vr(TT+a+2*hh,2)} op_sel:[0,1,0] op_sel_hi:[1,1,1]')
                    for hh in range(2):
                        p(f'v_cvt_pk_bf16_f32 v{b+2*tt+hh}, v{a+2*hh}, v{a+2*hh+1}')
                for k in range(4): p(f'v_pk_max_i16 v{b+k}, v{b+k}, 0')
                p(f'v_permlane16_swap_b32 v{b}, v{b+2}')
                p(f'v_permlane16_swap_b32 v{b+1}, v{b+3}')
                p(f'buffer_store_dwordx4 {vr(b,4)}, v{vST}, {srd(S_WS)}, s{sT0 if m==0 else sT1} offen offset:{512*m} sc1')
            if pr == 0:
                p(f's_add_u32 s{sT0}, s{sT0}, {2*H_TILE}')
                p(f's_add_u32 s{sT1}, s{sT1}, {2*H_TILE}')
        ab = []
        for i in range(4, 9): ab += aw2(i)
        self.publish(2, ab)
        p.add(self.stamp('pub3'))
        if self.stop == 3: return self.finish()
        p.add(dw2(9) + dw2(10))
        p(f's_lshl_b32 s{sT0}, s2, 2')
        p(f's_add_u32 s{sT0}, s{sT0}, s{sW}')
        p(f's_cmp_lg_u32 s{sT0}, 1')
        p('s_cbranch_scc1 L_EP')
        p.cond_begin()
        p(f's_mov_b32 s{sSPIN}, 20000')
        p(f's_mov_b32 s{sT0}, {WS_HELLO}')
        p('L_EPL:')
        p(f'buffer_load_dwordx4 v[0:3], v{vL16}, {srd(S_WS)}, s{sT0} offen sc1')
        p('s_waitcnt vmcnt(0)')
        for k in range(4): p(f'v_xor_b32 v{k}, s{sTAG}, v{k}')
        p('v_or3_b32 v0, v0, v1, v2')
        p('v_or_b32 v0, v0, v3')
        p('v_cmp_ne_u32 vcc, 0, v0')
        p('s_cbranch_vccz L_EPD')
        p(f's_sub_u32 s{sSPIN}, s{sSPIN}, 1')
        p('s_cbranch_scc0 L_EPL')
        p('L_EPD:')
        p('s_mov_b64 exec, 1')
        p(f'buffer_store_dword v{vTAG}, v{vL16}, {srd(S_WS)}, 0 offen sc1')
        p('s_mov_b64 exec, -1')
        p.cond_end()
        p('L_EP:')
        p.add(aw2(9) + aw2(10))
        p.add(self.unpack8(184, GBP))
        p.add(self.unpack8(200, vX2))
        self.wait_flags(2, 0)
        p.add(self.stamp('flag3'))
        def breg(n, i):
            k = 11*n+i
            return ('a', 112+4*k) if k < 20 else ('v', 64+4*(k-20))
        w2op = lambda i, ct: rr((w2reg(i)[0], w2reg(i)[1]+4*ct), 4)
        self.ksplit(11, w2op, breg, 0, sHB, H_TILE, 11*1024, 0, 64, 160, True)
        p.add(self.stamp('p4gemm'))
        Y = 48
        for k in range(8): p(f'v_pk_fma_f32 {vr(Y+2*k,2)}, {vr(Y+2*k,2)}, {vr(184+2*k,2)}, {vr(200+2*k,2)}')
        for k in range(8): p(f'v_cvt_pk_bf16_f32 v{Y+k}, v{Y+2*k}, v{Y+2*k+1}')
        for pp in range(2):
            p(f'buffer_store_dwordx4 {vr(Y+4*pp,4)}, v228, {srd(S_OUT)}, s43 offen offset:{64*pp}')
        return self.finish()

    def ksplit(self, nsteps, wreg, breg, acc, base_sreg, tile_stride, wave_stride, scr, part, areg, last_oob, mid=()):
        p = self.p
        p(f's_mul_i32 s{sT0}, s{sW}, {wave_stride}')
        p(f's_add_u32 s{sT0}, s{sT0}, s{base_sreg}')
        if last_oob:
            p(f's_cmp_eq_u32 s{sW}, 3')
            p(f's_cselect_b32 s{sT3}, {OOB}, 0')
        for n in range(4):
            p(f's_add_u32 s{sT1}, s{sW}, {n+1}')
            p(f's_and_b32 s{sT1}, s{sT1}, 3')
            p(f's_mul_i32 s{sT1}, s{sT1}, {tile_stride}')
            p(f's_add_u32 s{sT1}, s{sT1}, s{sT0}')
            for i in range(nsteps):
                if i and i % 4 == 0: p(f's_add_u32 s{sT1}, s{sT1}, 4096')
                if last_oob and i == nsteps-1: p(f's_add_u32 s{sT1}, s{sT1}, s{sT3}')
                p(f'buffer_load_dwordx4 {rr(breg(n,i),4)}, v{vL16}, {srd(S_WS)}, s{sT1} offen offset:{(i%4)*1024} sc1')
        p.add(mid)
        for n in range(3):
            p(f's_add_u32 s{sT1}, s{sW}, {n+1}')
            p(f's_and_b32 s{sT1}, s{sT1}, 3')
            p(f's_mul_i32 s{sT1}, s{sT1}, {3*4096}')
            p(f's_add_u32 s{sT1}, s{sT1}, {scr+n*4096}')
            p(f'v_add_u32 v{areg+n}, s{sT1}, v{vL16}')
        p(f's_mul_i32 s{sT1}, s{sW}, {3*4096}')
        p(f's_add_u32 s{sT1}, s{sT1}, {scr}')
        p(f'v_add_u32 v{areg+3}, s{sT1}, v{vL16}')
        pend = []
        for n in range(4):
            ms = []
            for i in range(nsteps):
                for ct in range(4):
                    a = acc+16*n+4*ct
                    ms.append(f'v_mfma_f32_16x16x32_bf16 {vr(a,4)}, {wreg(i,ct)}, {rr(breg(n,i),4)}, {"0" if i==0 else vr(a,4)}')
            ms = interleave(ms, pend, every=2, per=1, start=4)
            p.add(ms)
            pend = [f'ds_write_b128 v{areg+n}, {vr(acc+16*n+4*ct,4)} offset:{1024*ct}' for ct in range(4)] if n < 3 else []
        p.add(self.bar())
        for n in range(3):
            for ct in range(4):
                p(f'ds_read_b128 {vr(part+16*n+4*ct,4)}, v{areg+3} offset:{4096*n+1024*ct}')
        for n in range(3):
            for k in range(8):
                p(f'v_pk_add_f32 {vr(acc+48+2*k,2)}, {vr(acc+48+2*k,2)}, {vr(part+16*n+2*k,2)}')

    def finish(self):
        p = self.p
        if self.diag:
            p.add([WVMA()])
            p.add(self.stamp('end'))
            p.add(self.flush())
            p(f's_getreg_b32 s{sT1}, hwreg(HW_REG_XCC_ID)')
            p(f'v_writelane_b32 v217, s{sT1}, 63')
            p(f's_lshl_b32 s{sT0}, s2, 2')
            p(f's_add_u32 s{sT0}, s{sT0}, s{sW}')
            p(f's_lshl_b32 s{sT0}, s{sT0}, 8')
            p(f's_add_u32 s{sT0}, s{sT0}, {WS_DIAG}')
            p(f'v_lshlrev_b32 v1, 2, v{vLANE}')
            p(f'buffer_store_dword v217, v1, {srd(S_WS)}, s{sT0} offen')
        p('L_END:')
        p('s_endpgm')
        return p.finalize()


HEADER = open(os.path.join(os.path.dirname(os.path.abspath(__file__)), '..', 'cdna_kernels',
              'adaLN_cond__sliding_local_dilated__dense_activation_relu__prompt.s.ref')).read()

def emit(diag=False, stop=None):
    g = Gen(diag, stop)
    ins = g.build()
    head = HEADER.split(KNAME + ':')[0].replace('grid=(4096,1,1) block=(256,1,1) lds=0', 'grid=(256,1,1) block=(256,1,1) lds=163840')
    tail = HEADER.split('s_endpgm\n')[1].replace('next_free_vgpr 256', 'next_free_vgpr 512')
    body = '\n'.join(('' if i.is_label else '    ') + i.text for i in ins)
    txt = head + KNAME + ':\n' + body + '\n' + tail
    if diag: txt += '\n; STAMPS ' + ' '.join(g.stamp_names) + '\n'
    return txt

if __name__ == '__main__':
    import argparse
    ap = argparse.ArgumentParser()
    ap.add_argument('out'); ap.add_argument('--diag', action='store_true'); ap.add_argument('--stop', type=int)
    a = ap.parse_args()
    open(a.out, 'w').write(emit(a.diag, a.stop))
```

```python
import sys, os
sys.path.insert(0, os.path.dirname(os.path.abspath(__file__)))
from asmlib import *

KNAME = 'adaLN_cond__sliding_local_dilated__dense_activation_relu__prompt_kernel'

WS_EPOCH = 0
WS_HELLO = 0x400
WS_FLAG = 0x1000
WS_MOD = 0x8000
WS_O = 0x100000
WS_X1 = 0x300000
WS_ST = 0x500000
WS_H = 0x600000
H_TILE = 45056
H_CL = 4 * H_TILE
WS_DIAG = 0xE00000
WS_SIZE = 0x1000000
OOB = 0x40000000

L_H = 0
L_RING = 81920
L_MISC = 155648
SLOT = 12288

S_X, S_WQ, S_WO, S_W1, S_W2, S_WM, S_OUT, S_WS, S_C = 4, 8, 12, 16, 20, 24, 28, 32, 36
sW, sCL, sJ, sTAG = 60, 61, 62, 63
sT0, sT1, sT2, sT3, sT4, sT5 = 64, 65, 66, 67, 68, 69
sSPIN = 40
sONES = 41
sR0 = 42
sK = 44
sU0 = 46
sOB = 47
sXB = 48
sHB = 49
sFL = 50
sD0 = 51
sD1 = 52
sMW = 53
sHV = 54
sP = 55
STAMP0 = 70


def srd(b): return f's[{b}:{b+3}]'
def vr(a, n=1): return f'v{a}' if n == 1 else f'v[{a}:{a+n-1}]'
def ar(a, n=1): return f'a{a}' if n == 1 else f'a[{a}:{a+n-1}]'
def rr(r, n=1):
    return (vr if r[0] == 'v' else ar)(r[1], n)

def WVM(tag): return Marker('wait_vm', tag)
def WLG(tag): return Marker('wait_lgkm', tag)
WVMA = lambda: Marker('wait_vm_all')
WLGA = lambda: Marker('wait_lgkm_all')
def CMT(c): return Marker('comment', c)

vL16 = 255
vTAG = 254
vDP = 250
vTS = 248
vDQ = 247
vTP = 246
vLANE = 245
vG = 244
vC = 243
vHW = 241
vX2 = 232
vST = 240


class Gen:
    def __init__(self, diag=False, stop=None, hdiag=None):
        self.p = Prog()
        self.hdiag = hdiag
        self.diag = diag
        self.stop = stop
        self.nst = 0
        self.flushed = 0
        self.stamp_names = []

    def stamp(self, name):
        if not self.diag: return []
        if self.hdiag and name not in self.hdiag and name not in ('rt0', 'start', 'end', 'rt1'): return []
        k = self.nst; self.nst += 1
        assert k - self.flushed < 16
        self.stamp_names.append(name)
        op = 's_memrealtime' if name.startswith('rt') else 's_memtime'
        k %= 16
        return [f'{op} s[{STAMP0+2*k}:{STAMP0+2*k+1}]']

    def flush(self):
        if not self.diag: return []
        o = ['s_waitcnt lgkmcnt(0)']
        for k in range(self.flushed, self.nst):
            o.append(f'v_writelane_b32 v217, s{STAMP0+2*(k%16)}, {k}')
        self.flushed = self.nst
        return o

    def bar(self):
        return [WLGA(), 's_barrier']

    def prologue(self):
        p = self.p
        p(f's_cmp_ge_u32 s2, 256')
        p(f's_cbranch_scc1 L_END')
        p.add(self.stamp('rt0'))
        p.add(self.stamp('start'))
        p('s_load_dwordx16 s[40:55], s[0:1], 0')
        p('s_load_dwordx2 s[56:57], s[0:1], 64')
        p('s_load_dwordx2 s[58:59], s[0:1], 80')
        p(f'v_and_b32 v{vLANE}, 63, v0')
        p(f'v_lshrrev_b32 v1, 6, v0')
        p(f'v_lshlrev_b32 v{vL16}, 4, v{vLANE}')
        p(f'v_readfirstlane_b32 s{sW}, v1')
        p(f'v_lshrrev_b32 v{vG}, 4, v{vLANE}')
        p(f'v_and_b32 v{vC}, 15, v{vLANE}')
        for b, sz in ((S_X, 2048*1024), (S_WQ, 512*3072), (S_WO, 512*1024), (S_W1, 512*2752), (S_W2, 1376*1024),
                      (S_WM, 512*6144), (S_OUT, 2048*1024), (S_WS, WS_SIZE), (S_C, 1024)):
            p(f's_mov_b32 s{b+2}, {sz}')
            p(f's_mov_b32 s{b+3}, 0x00020000')
        p(f's_and_b32 s{sT0}, s2, 7')
        p(f's_lshr_b32 s{sT1}, s2, 6')
        p(f's_lshl_b32 s{sT0}, s{sT0}, 2')
        p(f's_add_u32 s{sCL}, s{sT0}, s{sT1}')
        p(f's_bfe_u32 s{sJ}, s2, 0x30003')
        p(f'v_lshlrev_b32 v1, 11, v{vG}')
        p(f'v_lshl_add_u32 v1, v{vC}, 4, v1')
        p(f'v_lshrrev_b32 v2, 3, v{vLANE}')
        p(f'v_lshrrev_b32 v3, 1, v2')
        p(f'v_lshlrev_b32 v3, 5, v3')
        p(f'v_and_b32 v4, 0x70, v{vL16}')
        p(f'v_xor_b32 v3, v3, v4')
        p(f'v_and_b32 v4, 4, v2')
        p(f'v_add_u32 v2, v2, v4')
        p(f'v_mul_u32_u24 v4, 3072, v2')
        p(f'v_add_u32 v{vDQ}, v4, v3')
        p(f'v_lshl_add_u32 v{vDP}, v2, 10, v3')
        p(f'v_add_u32 v{vDP+1}, {15*1024}, v{vDP}')
        p(f'v_add_u32 v{vDP+2}, {2*1024}, v{vDP}')
        p(f'v_add_u32 v{vDP+3}, {17*1024}, v{vDP}')
        p(f'v_mul_u32_u24 v4, 2752, v2')
        p(f'v_add_u32 v231, v4, v3')
        p.add([WLGA()])
        for b, k in ((S_X, 40), (S_WQ, 42), (S_WO, 44), (S_W1, 48), (S_W2, 50), (S_C, 52), (S_WM, 54), (S_OUT, 56), (S_WS, 58)):
            p(f's_mov_b64 s[{b}:{b+1}], s[{k}:{k+1}]')
        p(f's_load_dword s{sTAG}, s[58:59], {WS_EPOCH}')
        p(f's_lshl_b32 s{sR0}, s{sCL}, 6')

    def p0_loads(self):
        p = self.p
        p('s_cmp_ge_u32 s2, 96')
        p('s_cbranch_scc1 L_P0A')
        p.cond_begin()
        p(f'v_lshrrev_b32 v2, 2, v{vLANE}')
        p(f'v_and_b32 v3, 0x30, v{vL16}')
        p(f'v_mul_u32_u24 v2, {8*6144}, v2')
        p(f'v_add_u32 v2, v2, v3')
        p(f'v_lshlrev_b32 v3, 2, v{vLANE}')
        p(f's_lshl_b32 s{sT0}, s{sW}, 8')
        p(f'buffer_load_dword v200, v3, {srd(S_C)}, s{sT0} offen')
        p(f's_mul_i32 s{sT0}, s{sW}, {128*6144}')
        p(f's_lshl_b32 s{sT1}, s2, 6')
        p(f's_add_u32 s{sT0}, s{sT0}, s{sT1}')
        for i in range(8):
            p(f'buffer_load_dwordx4 {vr(160+4*i,4)}, v2, {srd(S_WM)}, s{sT0} offen')
            if i < 7: p(f's_add_u32 s{sT0}, s{sT0}, 6144')
        p.cond_end()
        p('L_P0A:')

    def x_loads(self):
        p = self.p
        p(f's_lshl_b32 s{sT0}, s{sW}, 3')
        p(f's_add_u32 s{sT0}, s{sT0}, s{sR0}')
        p(f's_cmp_lt_u32 s{sW}, 2')
        p(f's_cselect_b32 s{sT1}, 15, 32')
        p(f's_sub_i32 s{sT1}, s{sT0}, s{sT1}')
        p(f's_max_i32 s{sT1}, s{sT1}, 0')
        p(f's_lshl_b32 s{sT1}, s{sT1}, 10')
        p(f's_lshl_b32 s{sT0}, s{sT0}, 10')
        p(f's_add_u32 s{sT2}, s{sT0}, 32768')
        for T, (so, io) in enumerate(((sT1, 0), (sT0, 0), (sT0, 1024), (sT2, 0), (sT2, 1024))):
            for i in range(4):
                p(f'buffer_load_dwordx4 {vr(32*T+16+4*i,4)}, v1, {srd(S_X)}, s{so} offen offset:{io+256*i}')

    def dma_wq(self, s, slot):
        out = []
        if s == 0:
            out += [f's_and_b32 s{sT0}, s{sW}, 1', f's_lshl_b32 s{sT0}, s{sT0}, 4', f's_lshr_b32 s{sT1}, s{sW}, 1',
                    f's_lshl_b32 s{sT1}, s{sT1}, 2', f's_add_u32 s{sP}, s{sT0}, s{sT1}',
                    f's_mul_i32 s{sD0}, s{sP}, 3072', f's_lshl_b32 s{sT0}, s{sJ}, 7', f's_add_u32 s{sD0}, s{sD0}, s{sT0}',
                    f's_mul_i32 s{sD1}, s{sW}, 3072']
        else:
            out += [f's_add_u32 s{sD0}, s{sD0}, {32*3072}']
        out += [f's_add_u32 m0, s{sD1}, {L_RING + slot*SLOT}']
        for sec in range(3):
            out += [(f'buffer_load_dwordx4 v{vDQ}, {srd(S_WQ)}, s{sD0} offen offset:{1024*sec} lds', f'wq{s}')]
        return out

    def shared_tr_setup(self, colunit_expr_is_wave=True):
        o = []
        o += [f'v_lshrrev_b32 v2, 2, v{vLANE}', f'v_and_b32 v2, 7, v2',
              f'v_lshrrev_b32 v3, 1, v2', f'v_lshlrev_b32 v3, 5, v3',
              f'v_and_b32 v4, 3, v{vLANE}', f'v_lshlrev_b32 v4, 3, v4',
              f'v_lshl_add_u32 v4, v2, 7, v4',
              f'v_lshrrev_b32 v2, 5, v{vLANE}']
        o += [f'v_and_b32 v5, 0x30, v{vL16}', f'v_xor_b32 v5, v5, v3', f'v_and_b32 v6, 0x380, v4',
              f'v_add_u32 v5, v5, v6', f'v_lshl_add_u32 v{vTP}, v2, 10, v5']
        o += [f'v_mul_u32_u24 v2, 3072, v2', f'v_add_u32 v230, v4, v2',
              f'v_mov_b32 v229, v3',
              f's_lshl_b32 s{sT0}, s{sW}, 5', f'v_xor_b32 v3, s{sT0}, v3',
              f'v_add3_u32 v{vTS}, v230, v3, 0', f'v_add_u32 v{vTS}, {L_RING}, v{vTS}',
              f'v_add_u32 v{vTS+1}, {3*SLOT}, v{vTS}']
        return o

    def absorb_wq(self, s, slot):
        out = []
        base = vTS + (1 if slot >= 3 else 0)
        so = (slot % 3) * SLOT
        for sec in range(3):
            for h in range(2):
                out.append((f'ds_read_b64_tr_b16 {ar(s*12+sec*4+2*h,2)}, v{base} offset:{so+h*6144+sec*1024}', f'awq{s}'))
        return out

    def p0_compute(self):
        p = self.p
        p('s_cmp_ge_u32 s2, 96')
        p('s_cbranch_scc1 L_P0B')
        p.cond_begin()
        p('v_lshlrev_b32 v202, 16, v200')
        p('v_and_b32 v203, 0xffff0000, v200')
        p('v_mul_f32 v204, 0xbfb8aa3b, v202')
        p('v_mul_f32 v205, 0xbfb8aa3b, v203')
        p('v_exp_f32 v204, v204')
        p('v_exp_f32 v205, v205')
        for a in range(8): p(f'v_mov_b32 v{208+a}, 0')
        p('v_add_f32 v204, 1.0, v204')
        p('v_add_f32 v205, 1.0, v205')
        p('v_rcp_f32 v204, v204')
        p('v_rcp_f32 v205, v205')
        p('s_nop 0')
        p('v_mul_f32 v202, v202, v204')
        p('v_mul_f32 v203, v203, v205')
        p('v_cvt_pk_bf16_f32 v200, v202, v203')
        p('v_and_b32 v202, 0xffff, v200')
        p('v_lshlrev_b32 v203, 16, v200')
        p('v_lshrrev_b32 v204, 16, v200')
        p('v_and_b32 v205, 0xffff0000, v200')
        for i in range(8):
            q = i >> 1
            for d in range(4):
                for hh in range(2):
                    p(f'v_dot2c_f32_bf16_dpp v{208+2*d+hh}, v{202+2*(i&1)+hh}, v{160+4*i+d} quad_perm:[{q},{q},{q},{q}] row_mask:0xf bank_mask:0xf')
        for m in range(4): p(f'v_permlane32_swap_b32 v{208+m}, v{212+m}')
        for m in range(4): p(f'v_add_f32 v{208+m}, v{208+m}, v{212+m}')
        for m in range(2): p(f'v_permlane16_swap_b32 v{208+m}, v{210+m}')
        for m in range(2): p(f'v_add_f32 v{208+m}, v{208+m}, v{210+m}')
        p(f'v_and_b32 v202, 3, v{vLANE}')
        p(f'v_lshlrev_b32 v202, 5, v202')
        for sh in (8, 4):
            for m in range(2): p(f'v_add_f32_dpp v{208+m}, v{208+m}, v{208+m} row_ror:{sh} row_mask:0xf bank_mask:0xf')
            if sh == 8:
                p(f'v_lshl_add_u32 v202, v{vG}, 3, v202')
                p(f's_lshl_b32 s{sT0}, s{sW}, 7')
                p(f's_add_u32 s{sT0}, s{sT0}, {L_MISC+4096}')
                p(f'v_add_u32 v202, s{sT0}, v202')
        p(f'ds_write_b64 v202, v[208:209]')
        p.add(self.bar())
        p(f's_cmp_lg_u32 s{sW}, 0')
        p('s_cbranch_scc1 L_P0B')
        p(f'v_add_u32 v202, {L_MISC+4096}, v{vL16}')
        p('s_mov_b64 exec, 0xff')
        for k in range(4): p(f'ds_read_b128 {vr(208+4*k,4)}, v202 offset:{128*k}')
        p(f's_lshr_b32 s{sT0}, s2, 4')
        p(f's_cmp_eq_u32 s{sT0}, 1')
        p(f's_cselect_b32 s{sT1}, 1.0, 0')
        p(f's_cmp_eq_u32 s{sT0}, 4')
        p(f's_cselect_b32 s{sT1}, 1.0, s{sT1}')
        p(f's_lshl_b32 s{sT0}, s2, 7')
        p(f's_add_u32 s{sT0}, s{sT0}, {WS_MOD}')
        p('v_pk_add_f32 v[208:209], v[208:209], v[212:213]')
        p('v_pk_add_f32 v[210:211], v[210:211], v[214:215]')
        p('v_pk_add_f32 v[216:217], v[216:217], v[220:221]')
        p('v_pk_add_f32 v[218:219], v[218:219], v[222:223]')
        p('v_pk_add_f32 v[208:209], v[208:209], v[216:217]')
        p('v_pk_add_f32 v[210:211], v[210:211], v[218:219]')
        p('v_cvt_pk_bf16_f32 v208, v208, v209')
        p('v_cvt_pk_bf16_f32 v210, v210, v211')
        p('v_and_b32 v209, 0xffff0000, v208')
        p('v_lshlrev_b32 v208, 16, v208')
        p('v_and_b32 v211, 0xffff0000, v210')
        p('v_lshlrev_b32 v210, 16, v210')
        for k in range(4): p(f'v_add_f32 v{208+k}, s{sT1}, v{208+k}')
        p('v_cvt_pk_bf16_f32 v208, v208, v209')
        p('v_cvt_pk_bf16_f32 v209, v210, v211')
        p(f'v_mov_b32 v210, v{vTAG}')
        p(f'v_mov_b32 v211, v{vTAG}')
        p(f'buffer_store_dwordx4 v[208:211], v{vL16}, {srd(S_WS)}, s{sT0} offen sc1')
        p('s_mov_b64 exec, -1')
        p.cond_end()
        p('L_P0B:')

    def tag_and_hello(self):
        p = self.p
        p.add([WLGA()])
        p(f's_mul_i32 s{sTAG}, s{sTAG}, 1664525')
        p(f's_add_u32 s{sTAG}, s{sTAG}, 1013904223')
        p(f'v_mov_b32 v{vTAG}, s{sTAG}')
        p(f's_mov_b32 s{sONES}, 0x3f803f80')
        p(f's_lshl_b32 s{sOB}, s{sCL}, 16')
        p(f's_add_u32 s{sXB}, s{sOB}, {WS_X1}')
        p(f's_add_u32 s{sOB}, s{sOB}, {WS_O}')
        p(f's_mul_i32 s{sHB}, s{sCL}, {H_CL}')
        p(f's_add_u32 s{sHB}, s{sHB}, {WS_H}')
        p(f's_lshl_b32 s{sFL}, s{sCL}, 7')
        p(f's_add_u32 s{sFL}, s{sFL}, {WS_FLAG}')
        p(f's_min_u32 s{sT0}, s{sJ}, 3')
        p(f's_mul_i32 s{sU0}, s{sJ}, 5')
        p(f's_add_u32 s{sU0}, s{sU0}, s{sT0}')

    def hello_store(self):
        p = self.p
        p(f's_cmp_lg_u32 s{sW}, 3')
        p('s_cbranch_scc1 L_HEL')
        p.cond_begin()
        p(f's_lshl_b32 s{sT0}, s2, 2')
        p(f's_add_u32 s{sT0}, s{sT0}, {WS_HELLO}')
        p('s_mov_b64 exec, 1')
        p(f'buffer_store_dword v{vTAG}, v{vL16}, {srd(S_WS)}, s{sT0} offen sc1')
        p('s_mov_b64 exec, -1')
        p.cond_end()
        p('L_HEL:')

    def ln_stats(self):
        o = []
        SB = 208
        for T in range(5):
            o += [f'v_mov_b32 v{SB+2*T}, 0', f'v_mov_b32 v{SB+2*T+1}, 0']
        for T in range(5):
            for m in range(16):
                x = 32*T+16+m
                o += [f'v_dot2c_f32_bf16 v{SB+2*T}, s{sONES}, v{x}', f'v_dot2c_f32_bf16 v{SB+2*T+1}, v{x}, v{x}']
        for sh in (8, 4, 2, 1):
            for k in range(10):
                o += [f'v_add_f32_dpp v{SB+k}, v{SB+k}, v{SB+k} row_ror:{sh} row_mask:0xf bank_mask:0xf']
        inv = '0x3b000000'
        for T in range(5): o += [f'v_mul_f32 v{SB+2*T}, {inv}, v{SB+2*T}']
        for T in range(5): o += [f'v_mul_f32 v{SB+2*T+1}, {inv}, v{SB+2*T+1}']
        for T in range(5): o += [f'v_fma_f32 v{SB+2*T+1}, -v{SB+2*T}, v{SB+2*T}, v{SB+2*T+1}']
        for T in range(5): o += [f'v_max_f32 v{SB+2*T+1}, 0, v{SB+2*T+1}']
        for T in range(5): o += [f'v_add_f32 v{SB+2*T+1}, 0x3727c5ac, v{SB+2*T+1}']
        for T in range(5): o += [f'v_rsq_f32 v{SB+2*T+1}, v{SB+2*T+1}']
        for T in range(5): o += [f'v_mul_f32_e64 v{SB+2*T}, -v{SB+2*T}, v{SB+2*T+1}']
        for T in range(5):
            for m in range(16):
                x = 32*T+16+m; d = 32*T+2*m
                o += [f'v_lshlrev_b32 v{d}, 16, v{x}', f'v_and_b32 v{d+1}, 0xffff0000, v{x}']
            for m in range(16):
                d = 32*T+2*m
                o += [f'v_pk_fma_f32 {vr(d,2)}, {vr(d,2)}, {vr(SB+2*T,2)}, {vr(SB+2*T,2)} op_sel:[0,1,0] op_sel_hi:[1,1,0]']
        return o

    def poll_tagged(self, dsts, soffs, name):
        p = self.p
        L = p.label('L_PT'); D = p.label('L_PD')
        p(f's_mov_b32 s{sSPIN}, 20000')
        p(f'{L}:')
        for d, so in zip(dsts, soffs):
            p(f'buffer_load_dwordx4 {vr(d,4)}, v{vL16}, {srd(S_WS)}, s{so} offen sc1')
        p('s_waitcnt vmcnt(0)')
        p(f'v_cmp_ne_u32 vcc, s{sTAG}, v{dsts[0]+2}')
        for d in dsts[1:]:
            p(f'v_cmp_ne_u32 s[{sT4}:{sT5}], s{sTAG}, v{d+2}')
            p(f's_or_b64 vcc, vcc, s[{sT4}:{sT5}]')
        p(f's_cbranch_vccz {D}')
        p(f's_sub_u32 s{sSPIN}, s{sSPIN}, 1')
        p(f's_cbranch_scc0 {L}')
        p(f'{D}:')

    def mod_a(self):
        p = self.p
        p(f's_lshl_b32 s{sT0}, s{sW}, 10')
        p(f's_add_u32 s{sT1}, s{sT0}, {WS_MOD}')
        p(f's_add_u32 s{sT0}, s{sT0}, {L_MISC}')
        p(f'v_add_u32 v224, s{sT0}, v{vL16}')
        p(f'v_lshlrev_b32 v225, 5, v{vC}')
        p(f'v_add_u32 v225, {L_MISC}, v225')
        p(f's_lshl_b32 s{sT2}, s{sW}, 2')
        p(f'v_add_u32 v226, s{sT2}, v{vG}')
        p(f'v_and_b32 v227, 7, v{vC}')
        p(f'v_xor_b32 v226, v226, v227')
        p(f'v_lshlrev_b32 v226, 4, v226')
        p(f'v_lshl_add_u32 v{vHW}, v{vC}, 8, v226')
        p(f'v_add_u32 v{vHW+1}, 65536, v{vHW}')
        self.poll_tagged([160], [sT1], 'moda')
        p.add(self.stamp('moda'))
        p('v_and_b32 v163, 0xffff0000, v161')
        p('v_lshlrev_b32 v162, 16, v161')
        p('v_and_b32 v161, 0xffff0000, v160')
        p('v_lshlrev_b32 v160, 16, v160')
        p('ds_write_b128 v224, v[160:163]')
        p.add(self.bar())
        for i in range(4):
            for v in (1, 0):
                for hh in range(2):
                    p(f'ds_read_b128 {vr(160+32*v+8*i+4*hh,4)}, v225 offset:{2048*v+512*i+16*hh}')
        for i in range(4):
            for T in range(5):
                b = 32*T+8*i
                for m in range(4):
                    p(f'v_pk_fma_f32 {vr(b+2*m,2)}, {vr(b+2*m,2)}, {vr(192+8*i+2*m,2)}, {vr(160+8*i+2*m,2)}')
                for m in range(4):
                    p(f'v_cvt_pk_bf16_f32 v{b+m}, v{b+2*m}, v{b+2*m+1}')
                base = vHW + (1 if T == 4 else 0)
                p(f'ds_write_b128 v{base}, {vr(b,4)} offset:{(T%4)*16384+i*4096}')

    def dma_priv(self, S, soff_reg, lds_off, tag):
        out = [f's_add_u32 m0, s{sMW}, {lds_off}']
        for b in range(4):
            out.append((f'buffer_load_dwordx4 v{vDP+b}, {srd(S)}, s{soff_reg} offen offset:{1024*b} lds', tag))
        out.append(f's_add_u32 s{soff_reg}, s{soff_reg}, 32768')
        return out

    def absorb_priv(self, basereg, lds_off, dst, tag):
        out = []
        for ct in range(4):
            pp, t = ct >> 1, ct & 1
            for h in range(2):
                out.append((f'ds_read_b64_tr_b16 {rr((dst[0], dst[1]+4*ct+2*h),2)}, v{basereg+pp} offset:{lds_off+h*2048+8*t}', tag))
        return out

    def p1_gemm(self, fill):
        o = []
        FR = 56
        rb = [96, 97, 98, 99]
        pre = [f'v_xor_b32 v{rb[0]}, v{vC}, v{vG}', f'v_lshlrev_b32 v{rb[0]}, 4, v{rb[0]}',
               f'v_lshl_add_u32 v{rb[0]}, v{vG}, 8, v{rb[0]}', f'v_xor_b32 v{rb[1]}, 64, v{rb[0]}',
               f'v_add_u32 v{rb[2]}, 65536, v{rb[0]}', f'v_add_u32 v{rb[3]}, 65536, v{rb[1]}']
        def rd(T, s):
            return f'ds_read_b128 {vr(FR+20*(s&1)+4*T,4)}, v{rb[(s&1)+(2 if T==4 else 0)]} offset:{(T%4)*16384+s*1024}'
        main = []
        first = [rd(T, 0) for T in range(5)]
        for s in range(16):
            ms = []
            for T in range(5):
                h = vr(FR+20*(s&1)+4*T, 4)
                def C(a): return '0' if s == 0 else vr(a, 4)
                ms.append(f'v_mfma_f32_16x16x32_bf16 {vr(16+4*T,4)}, {ar(s*12+4,4)}, {h}, {C(16+4*T)}')
                ms.append(f'v_mfma_f32_16x16x32_bf16 {vr(36+4*T,4)}, {h}, {ar(s*12+8,4)}, {C(36+4*T)}')
                if T > 0:
                    ms.append(f'v_mfma_f32_16x16x32_bf16 {vr(4*(T-1),4)}, {ar(s*12,4)}, {h}, {C(4*(T-1))}')
            if s < 15:
                ms = interleave(ms, [rd(T, s+1) for T in range(5)], every=2, per=1, start=0)
            main += ms
        return pre, first, main

    def attn_masks(self):
        o = []
        o += [f'v_lshlrev_b32 v120, 2, v{vG}', f'v_sub_u32 v120, v120, v{vC}',
              f'v_mov_b32 v121, 0xf149f2ca',
              f's_cmp_eq_u32 s{sCL}, 0', f's_cselect_b32 s{sT0}, 100, 9', f's_cselect_b32 s{sT1}, 100, 1',
              f'v_and_b32 v122, 2, v{vG}', f'v_lshlrev_b32 v122, 6, v122', f'v_sub_u32 v122, v120, v122']
        g = []
        for r in range(4):
            g.append([f'v_add_u32 v123, {r+7}, v120', f'v_cmp_gt_u32 vcc, 8, v123', f'v_cndmask_b32 v{100+r}, v121, 0, vcc',
                      f'v_cndmask_b32 v{124+r}, 0, -1, vcc'])
            g.append([f'v_add_u32 v123, {r}, v120', f'v_cmp_le_i32 vcc, 9, v123', f'v_cndmask_b32 v{104+r}, v121, 0, vcc',
                      f'v_cmp_le_i32 vcc, s{sT0}, v123', f'v_cndmask_b32 v{108+r}, v121, 0, vcc'])
            g.append([f'v_add_u32 v123, {r}, v122', f'v_cmp_le_i32 vcc, s{sT1}, v123', f'v_cndmask_b32 v{112+r}, v121, 0, vcc'])
        for x in g: o += x
        o += [f'v_mov_b32 v123, 0xffff', 'v_bfi_b32 v116, v123, v124, v125', 'v_bfi_b32 v117, v123, v126, v127',
              'v_not_b32 v118, v116', 'v_not_b32 v119, v117',
              f'v_mov_b32 v120, s{sONES}', f'v_mov_b32 v121, s{sONES}',
              f's_mov_b32 s{sK}, 0x3eb8aa3b', f's_mov_b32 s{sK+1}, 0x3eb8aa3b']
        o += [f'v_and_b32 v{vST}, 1, v{vG}', f'v_lshlrev_b32 v{vST}, 14, v{vST}', f'v_lshrrev_b32 v123, 1, v{vG}',
              f'v_lshl_add_u32 v{vST}, v123, 8, v{vST}', f'v_lshl_add_u32 v{vST}, v{vC}, 4, v{vST}']
        return o

    def attention(self):
        p = self.p
        QB, KB, VB = 128, 136, 146
        vpos = {4: 0, 2: 2, 0: 4, 1: 6, 3: 8}
        SP, SC = 56, 72
        prevT = [0, 0, 1, 2]; biasP = [108, 112, 104, 104]
        def cv(d, a): return [f'v_cvt_pk_bf16_f32 v{d}, v{a}, v{a+1}', f'v_cvt_pk_bf16_f32 v{d+1}, v{a+2}, v{a+3}']
        p.add(cv(KB, 16))
        for t in range(4):
            p.add(cv(KB+2*(t+1), 16+4*(t+1)) + cv(QB+2*t, 4*t))
        for t in range(4):
            p(f'v_mfma_f32_16x16x16_bf16 {vr(SP+4*t,4)}, {vr(KB+2*prevT[t],2)}, {vr(QB+2*t,2)}, {vr(biasP[t],4)}')
            p(f'v_mfma_f32_16x16x16_bf16 {vr(SC+4*t,4)}, {vr(KB+2*(t+1),2)}, {vr(QB+2*t,2)}, {vr(100,4)}')
        for T in range(5): p.add(cv(VB+vpos[T], 36+4*T))
        M = 88
        for t in range(4):
            for r in range(4): p(f'v_max_f32 v{SP+4*t+r}, v{SP+4*t+r}, v{SC+4*t+r}')
            p(f'v_max3_f32 v{M+t}, v{SP+4*t}, v{SP+4*t+1}, v{SP+4*t+2}')
            p(f'v_max_f32 v{M+t}, v{M+t}, v{SP+4*t+3}')
        p(f'v_permlane32_swap_b32 v{M}, v{M+1}')
        p(f'v_permlane32_swap_b32 v{M+2}, v{M+3}')
        p(f'v_max_f32 v{M}, v{M}, v{M+1}')
        p(f'v_max_f32 v{M+2}, v{M+2}, v{M+3}')
        p(f'v_permlane16_swap_b32 v{M}, v{M+2}')
        p(f'v_max_f32 v{M}, v{M}, v{M+2}')
        p(f'v_mul_f32 v{M}, 0xbeb8aa3b, v{M}')
        p(f'v_mov_b32 v{M+4}, v{M}')
        p(f'v_permlane16_swap_b32 v{M}, v{M+4}')
        p(f'v_mov_b32 v{M+2}, v{M}')
        p(f'v_mov_b32 v{M+6}, v{M+4}')
        p(f'v_permlane32_swap_b32 v{M}, v{M+2}')
        p(f'v_permlane32_swap_b32 v{M+4}, v{M+6}')
        PB = 0
        for t in range(4):
            for hh in range(2):
                a = SP+4*t+2*hh
                p(f'v_pk_fma_f32 {vr(a,2)}, {vr(a,2)}, s[{sK}:{sK+1}], {vr(M+2*t,2)} op_sel_hi:[1,1,0]')
            for r in range(4): p(f'v_exp_f32 v{SP+4*t+r}, v{SP+4*t+r}')
        for t in range(4):
            p.add(cv(16+2*t, SP+4*t))
            e = (t & 1) == 0
            pp, pc = (PB+4*t, PB+4*t+2) if e else (PB+4*t+2, PB+4*t)
            for hh in range(2):
                p(f'v_and_b32 v{pp+hh}, v{118+hh}, v{16+2*t+hh}')
                p(f'v_and_b32 v{pc+hh}, v{116+hh}, v{16+2*t+hh}')
        OA = [VB+4, VB+2, VB+6, VB+0]
        for t in range(4):
            p(f'v_mfma_f32_16x16x16_bf16 {vr(SC+4*t,4)}, v[120:121], {vr(16+2*t,2)}, 0')
            p(f'v_mfma_f32_16x16x32_bf16 {vr(SP+4*t,4)}, {vr(OA[t],4)}, {vr(PB+4*t,4)}, 0')
        p(f's_lshl_b32 s{sT0}, s{sJ}, 11')
        p(f's_lshl_b32 s{sT1}, s{sW}, 9')
        p(f's_add_u32 s{sT0}, s{sT0}, s{sT1}')
        p(f's_add_u32 s{sT0}, s{sT0}, s{sOB}')
        p(f's_add_u32 s{sT1}, s{sT0}, 32768')
        for t in range(4): p(f'v_rcp_f32 v{SC+4*t}, v{SC+4*t}')
        for t in range(4):
            for hh in range(2):
                a = SP+4*t+2*hh
                p(f'v_pk_mul_f32 {vr(a,2)}, {vr(a,2)}, {vr(SC+4*t,2)} op_sel_hi:[1,0]')
            p.add(cv(24+2*t, SP+4*t))
            if t & 1:
                b = 24+2*(t-1)
                p(f'v_permlane16_swap_b32 v{b}, v{b+2}')
                p(f'v_permlane16_swap_b32 v{b+1}, v{b+3}')
                p(f'buffer_store_dwordx4 {vr(b,4)}, v{vST}, {srd(S_WS)}, s{sT0 if t==1 else sT1} offen sc1')

    def publish(self, ph, between=()):
        p = self.p
        p.add(between)
        p.add([WVMA()])
        p.add(self.bar())
        L = p.label('L_PUB')
        p(f's_cmp_lg_u32 s{sW}, 0')
        p(f's_cbranch_scc1 {L}')
        p.cond_begin()
        p(f's_lshl_b32 s{sT0}, s{sJ}, 2')
        p(f's_add_u32 s{sT0}, s{sT0}, s{sFL}')
        p(f's_add_u32 s{sT0}, s{sT0}, {ph*4096}')
        p('s_mov_b64 exec, 1')
        p(f'buffer_store_dword v{vTAG}, v{vL16}, {srd(S_WS)}, s{sT0} offen sc1')
        p('s_mov_b64 exec, -1')
        p.cond_end()
        p(f'{L}:')

    def wait_flags(self, ph, tmp):
        p = self.p
        L = p.label('L_WF'); D = p.label('L_WD'); D2 = p.label('L_WE')
        p(f's_cmp_lg_u32 s{sW}, 0')
        p(f's_cbranch_scc1 {D2}')
        p.cond_begin()
        p(f's_add_u32 s{sT0}, s{sFL}, {ph*4096}')
        p(f'v_lshlrev_b32 v{tmp+1}, 2, v{vLANE}')
        p(f's_mov_b32 s{sSPIN}, 20000')
        p('s_mov_b64 exec, 0xff')
        p(f'{L}:')
        p(f'buffer_load_dword v{tmp}, v{tmp+1}, {srd(S_WS)}, s{sT0} offen sc1')
        p('s_waitcnt vmcnt(0)')
        p(f'v_cmp_ne_u32 vcc, s{sTAG}, v{tmp}')
        p(f's_cbranch_vccz {D}')
        p(f's_sub_u32 s{sSPIN}, s{sSPIN}, 1')
        p(f's_cbranch_scc0 {L}')
        p(f'{D}:')
        p('s_mov_b64 exec, -1')
        p.cond_end()
        p(f'{D2}:')
        p.add(self.bar())

    def unpack8(self, dst, src):
        o = []
        for k in range(8):
            o += [f'v_lshlrev_b32 v{dst+2*k}, 16, v{src+k}', f'v_and_b32 v{dst+2*k+1}, 0xffff0000, v{src+k}']
        return o

    def build(self):
        p = self.p
        self.prologue()
        p.add(self.stamp('karg'))
        self.p0_loads()
        p.add(self.stamp('p0iss'))
        self.x_loads()
        p.add(self.stamp('xiss'))
        for s in range(6): p.add(self.dma_wq(s, s))
        p.add(self.shared_tr_setup())
        p.add(self.stamp('issued'))
        self.tag_and_hello()
        p.add(self.stamp('epoch'))
        self.p0_compute()
        self.hello_store()
        p.add(self.stamp('p0done'))
        p.add(self.ln_stats())
        p.add(self.stamp('lndone'))
        for s in range(16):
            p.add([WVM(f'wq{s}')])
            p.add(self.bar())
            if s >= 1 and s+5 < 16: p.add(self.dma_wq(s+5, (s+5) % 6))
            p.add(self.absorb_wq(s, s % 6))
        p.add(self.stamp('wqdone'))
        self.mod_a()
        pre, first, main = self.p1_gemm([])
        p.add(pre)
        p.add(self.bar())
        p.add(self.stamp('hready'))
        p.add(first)
        fill = []
        fill.append([f's_lshl_b32 s{sMW}, s{sW}, 14', f's_add_u32 s{sMW}, s{sMW}, {L_RING}',
                     f's_lshl_b32 s{sD0}, s{sW}, 17', f's_lshl_b32 s{sT0}, s{sJ}, 7', f's_add_u32 s{sD0}, s{sD0}, s{sT0}'])
        for i in range(4):
            for x in self.dma_priv(S_WO, sD0, 4096*i, f'wo{i}'): fill.append(x)
        fill += [f'v_lshlrev_b32 v228, 11, v{vC}', f'v_lshl_add_u32 v228, v{vG}, 4, v228',
                 f's_lshr_b32 s{sT0}, s{sW}, 1', f's_lshl_b32 s{sT0}, s{sT0}, 5', f's_and_b32 s{sT1}, s{sW}, 1',
                 f's_add_u32 s{sT0}, s{sT0}, s{sT1}', f's_add_u32 s{sT0}, s{sT0}, s{sR0}', f's_lshl_b32 s{sT0}, s{sT0}, 10',
                 f's_lshl_b32 s{sT1}, s{sJ}, 7', f's_add_u32 s43, s{sT0}, s{sT1}']
        fill += [f'buffer_load_dwordx4 {vr(vX2+4*pp,4)}, v228, {srd(S_X)}, s43 offen offset:{64*pp}' for pp in range(2)]
        fill += self.attn_masks()
        fill += [f'v_add_u32 v226, s{sMW}, v{vTP}', f'v_xor_b32 v227, 64, v226']
        p.add(spread(main, fill, 4, 150))
        p.add(self.stamp('p1gemm'))
        self.attention()
        p.add(self.stamp('attn'))
        ab = []
        for i in range(4):
            ab += [WVM(f'wo{i}')] + self.absorb_priv(226, 4096*i, ('a', 192+16*i), f'awo{i}')
        p.add(ab)
        p(f's_lshl_b32 s{sT0}, s{sW}, 10')
        p(f's_add_u32 s{sT0}, s{sT0}, {WS_MOD+4096}')
        p(f's_add_u32 s{sT1}, s{sT0}, 4096')
        p(f's_lshl_b32 s{sT2}, s{sW}, 9')
        p(f's_add_u32 s{sT2}, s{sT2}, {L_MISC}')
        p(f'v_lshlrev_b32 v224, 3, v{vLANE}')
        p(f'v_add_u32 v224, s{sT2}, v224')
        self.poll_tagged([160, 164], [sT0, sT1], 'modb')
        p('ds_write_b64 v224, v[160:161]')
        p('ds_write_b64 v224, v[164:165] offset:2048')
        self.publish(0)
        p.add(self.stamp('pub1'))
        p.add(self.flush())
        if self.stop == 1: return self.finish()
        w1slot = lambda k: (L_RING + (k % 8)*SLOT) if (k % 8) < 6 else (49152 + ((k % 8)-6)*SLOT)
        def dma_w1(s):
            o = []
            if s == 0:
                o += [f's_mul_i32 s{sD0}, s{sP}, 2752', f's_lshl_b32 s{sT0}, s{sU0}, 6', f's_add_u32 s{sD0}, s{sD0}, s{sT0}']
            else:
                o += [f's_add_u32 s{sD0}, s{sD0}, {32*2752}']
            for sec in range(3):
                o += [f's_add_u32 m0, s{sD1}, {w1slot(s) + sec*896}',
                      (f'buffer_load_dwordx4 v231, {srd(S_W1)}, s{sD0} offen offset:{128*sec} lds', f'w1{s}')]
            return o
        w1b = []
        for m in range(3):
            w1b += [f's_mul_i32 s{sT0}, s{sW}, 3', f's_add_u32 s{sT0}, s{sT0}, {m}', f's_and_b32 s{sT1}, s{sT0}, 3',
                    f's_lshl_b32 s{sT1}, s{sT1}, 5', f's_lshr_b32 s{sT0}, s{sT0}, 2', f's_lshl_b32 s{sT0}, s{sT0}, 10',
                    f's_add_u32 s{sT0}, s{sT0}, 49152',
                    f'v_xor_b32 v{218+m}, s{sT1}, v229', f'v_add3_u32 v{218+m}, v{218+m}, v230, s{sT0}',
                    f'v_add_u32 v{221+m}, {5*SLOT}, v{218+m}']
        def absorb_w1(s):
            o = []
            off = w1slot(s) - 49152
            hi = off + 6144 > 65535
            if hi: off -= 5*SLOT
            assert 0 <= off and off + 6144 <= 65535
            for m in range(3):
                for h in range(2):
                    o.append((f'ds_read_b64_tr_b16 {ar(s*12+m*4+2*h,2)}, v{218+m+(3 if hi else 0)} offset:{off+h*6144}', f'aw1{s}'))
            return o
        for s in range(8): p.add(dma_w1(s))
        p.add(w1b)
        p(f's_lshl_b32 s{sT0}, s{sJ}, 7')
        p(f's_add_u32 s{sT0}, s{sT0}, {L_MISC}')
        p(f'v_lshlrev_b32 v224, 4, v{vG}')
        p(f'v_add_u32 v224, s{sT0}, v224')
        for k, off in enumerate((0, 2048, 3072)):
            for pp in range(2):
                p(f'ds_read_b128 {vr(128+8*k+4*pp,4)}, v224 offset:{off+64*pp}')
        p.add(self.unpack8(184, 128) + self.unpack8(200, 136))
        GBP = 176
        for k in range(8): p(f'v_mov_b32 v{GBP+k}, v{144+k}')
        p.add([WVMA()])
        self.wait_flags(0, 128)
        p.add(self.stamp('flag1'))
        mid = []
        for s in range(8): mid += absorb_w1(s)
        self.ksplit(4, lambda i, ct: ar(192+16*i+4*ct, 4), lambda n, i: ('v', 16*n+4*i), 64, sOB, 16384, 4096, 0, 0, 160, False, mid=mid)
        p.add(self.stamp('p2gemm'))
        Y = 112
        p.add(self.unpack8(128, vX2))
        for k in range(8): p(f'v_pk_fma_f32 {vr(Y+2*k,2)}, {vr(Y+2*k,2)}, {vr(184+2*k,2)}, {vr(128+2*k,2)}')
        for k in range(8): p(f'v_cvt_pk_bf16_f32 v{vX2+k}, v{Y+2*k}, v{Y+2*k+1}')
        p.add(self.unpack8(128, vX2))
        p('v_mov_b32 v144, 0')
        p('v_mov_b32 v145, 0')
        for k in range(8): p(f'v_pk_mul_f32 {vr(128+2*k,2)}, {vr(128+2*k,2)}, {vr(200+2*k,2)}')
        for k in range(8): p(f'v_cvt_pk_bf16_f32 v{Y+k}, v{128+2*k}, v{128+2*k+1}')
        p(f's_lshl_b32 s{sT0}, s{sW}, 14')
        p(f's_lshl_b32 s{sT1}, s{sJ}, 11')
        p(f's_add_u32 s{sT0}, s{sT0}, s{sT1}')
        p(f's_add_u32 s{sT0}, s{sT0}, s{sXB}')
        for pp in range(2):
            p(f'buffer_store_dwordx4 {vr(Y+4*pp,4)}, v{vL16}, {srd(S_WS)}, s{sT0} offen offset:{1024*pp} sc1')
        for k in range(8):
            p(f'v_dot2c_f32_bf16 v144, s{sONES}, v{vX2+k}')
            p(f'v_dot2c_f32_bf16 v145, v{vX2+k}, v{vX2+k}')
        p(f'v_lshrrev_b32 v146, 1, v{vG}')
        p(f'v_lshlrev_b32 v146, 2, v146')
        p(f'v_lshl_add_u32 v146, v{vC}, 4, v146')
        p('v_permlane32_swap_b32 v144, v145')
        p(f's_lshl_b32 s{sT0}, s{sCL}, 12')
        p(f's_lshl_b32 s{sT1}, s{sW}, 10')
        p(f's_add_u32 s{sT0}, s{sT0}, s{sT1}')
        p('v_add_f32 v144, v144, v145')
        p(f's_lshr_b32 s{sT1}, s{sJ}, 1')
        p(f's_lshl_b32 s{sT1}, s{sT1}, 8')
        p('v_mov_b32 v145, v144')
        p(f's_add_u32 s{sT0}, s{sT0}, s{sT1}')
        p(f's_and_b32 s{sT1}, s{sJ}, 1')
        p(f's_lshl_b32 s{sT1}, s{sT1}, 3')
        p('v_permlane16_swap_b32 v144, v145')
        p(f's_add_u32 s{sT0}, s{sT0}, s{sT1}')
        p(f's_add_u32 s{sT0}, s{sT0}, {WS_ST}')
        p('v_add_f32 v144, v144, v145')
        p(f'buffer_store_dword v144, v146, {srd(S_WS)}, s{sT0} offen sc1')
        self.publish(1)
        p.add(self.stamp('pub2'))
        if self.stop == 2: return self.finish()
        for s in range(8, 16): p.add(dma_w1(s))
        p.add([WVMA()])
        p.add(self.bar())
        for s in range(8, 16): p.add(absorb_w1(s))
        p(f'v_and_b32 v224, 8, v{vC}')
        p(f'v_lshlrev_b32 v224, 7, v224')
        p(f'v_sub_u32 v224, {L_MISC+2048}, v224')
        p(f'v_lshl_add_u32 v224, v{vG}, 4, v224')
        for s in range(16): p(f'ds_read_b128 {vr(4*s,4)}, v224 offset:{64*s}')
        U, V = 128, 140
        for s in range(16):
            for m in range(3):
                p(f'v_mfma_f32_16x16x32_bf16 {vr(U+4*m,4)}, {ar(s*12+4*m,4)}, {vr(4*s,4)}, {"0" if s==0 else vr(U+4*m,4)}')
        for k in range(12): p(f'v_mov_b32 v{V+k}, v{U+k}')
        for k in range(12): p(f'v_mov_b32_dpp v{V+k}, v{U+k} row_ror:8 row_mask:0xf bank_mask:0x3')
        for k in range(12): p(f'v_mov_b32_dpp v{U+k}, v{U+k} row_ror:8 row_mask:0xf bank_mask:0xc')
        self.wait_flags(1, 0)
        p.add(self.stamp('flag2'))
        p(f's_lshl_b32 s{sT0}, s{sW}, 14')
        p(f's_add_u32 s{sT1}, s{sT0}, s{sXB}')
        for q in range(4):
            p(f's_add_u32 m0, s{sT0}, {4096*q}')
            for i in range(4):
                p(f'buffer_load_dwordx4 v{vL16}, {srd(S_WS)}, s{sT1} offen offset:{1024*i} sc1 lds', f'x1{q}')
            if q < 3: p(f's_add_u32 s{sT1}, s{sT1}, 4096')
        p(f's_lshl_b32 s{sT0}, s{sCL}, 12')
        p(f's_add_u32 s{sT0}, s{sT0}, {WS_ST}')
        STT = 152
        for t in range(4):
            p(f'buffer_load_dwordx4 {vr(STT+4*t,4)}, v{vL16}, {srd(S_WS)}, s{sT0} offen offset:{1024*t} sc1')
        w2reg = lambda i: ('a', 192+16*i) if i < 4 else ('a', 16*(i-4))
        setup2 = [f's_mul_i32 s{sMW}, s{sW}, 20480', f's_add_u32 s{sMW}, s{sMW}, 65536',
                  f's_mul_i32 s{sD0}, s{sW}, {11*32768}', f's_lshl_b32 s{sT0}, s{sJ}, 7', f's_add_u32 s{sD0}, s{sD0}, s{sT0}',
                  f'v_add_u32 v226, s{sMW}, v{vTP}', f'v_xor_b32 v227, 64, v226']
        p.add(setup2)
        dw2 = lambda i: self.dma_priv(S_W2, sD0, 4096*(i % 5), f'w2{i}')
        aw2 = lambda i: [WVM(f'w2{i}')] + self.absorb_priv(226, 4096*(i % 5), w2reg(i), f'aw2{i}')
        FR = 48
        def rd(t, s): return f'ds_read_b128 {vr(FR+16*(s&1)+4*t,4)}, v{vL16} offset:{t*16384+s*1024}'
        st = []
        for t in range(4):
            st += [f'v_add_f32 v{STT+4*t}, v{STT+4*t}, v{STT+4*t+2}', f'v_add_f32 v{STT+4*t+1}, v{STT+4*t+1}, v{STT+4*t+3}']
        for k in range(2):
            a = STT+k
            st += [f'v_permlane32_swap_b32 v{a}, v{a+4}', f'v_permlane32_swap_b32 v{a+8}, v{a+12}',
                   f'v_add_f32 v{a}, v{a}, v{a+4}', f'v_add_f32 v{a+8}, v{a+8}, v{a+12}',
                   f'v_permlane16_swap_b32 v{a}, v{a+8}', f'v_add_f32 v{a}, v{a}, v{a+8}']
        a = STT
        st += [f'v_mul_f32 v{a}, 0x3b000000, v{a}', f'v_mul_f32 v{a+1}, 0x3b000000, v{a+1}',
               f'v_fma_f32 v{a+1}, -v{a}, v{a}, v{a+1}', f'v_max_f32 v{a+1}, 0, v{a+1}', f'v_add_f32 v{a+1}, 0x3727c5ac, v{a+1}',
               f'v_rsq_f32 v{a+1}, v{a+1}', f'v_mul_f32_e64 v{a}, -v{a}, v{a+1}']
        for k in range(2):
            a = STT+k
            st += [f'v_mov_b32 v{a+8}, v{a}', f'v_permlane16_swap_b32 v{a}, v{a+8}',
                   f'v_mov_b32 v{a+4}, v{a}', f'v_mov_b32 v{a+12}, v{a+8}',
                   f'v_permlane32_swap_b32 v{a}, v{a+4}', f'v_permlane32_swap_b32 v{a+8}, v{a+12}']
        TT = 80
        for t in range(4):
            for k in range(12):
                st += [f'v_fma_f32 v{TT+12*t+k}, v{STT+4*t}, v{U+k}, v{V+k}']
        st += [f'v_and_b32 v{vST}, 1, v{vG}', f'v_mul_u32_u24 v{vST}, {H_TILE}, v{vST}', f'v_lshrrev_b32 v224, 1, v{vG}',
               f'v_lshl_add_u32 v{vST}, v224, 8, v{vST}', f'v_lshl_add_u32 v{vST}, v{vC}, 4, v{vST}']
        main = []
        for s in range(16):
            ms = []
            for t in range(4):
                for m in range(3):
                    a = 12*t+4*m
                    ms.append(f'v_mfma_f32_16x16x32_bf16 {vr(a,4)}, {ar(s*12+4*m,4)}, {vr(FR+16*(s&1)+4*t,4)}, {"0" if s==0 else vr(a,4)}')
            nxt = []
            if s < 15:
                nxt = [rd(t, s+1) for t in range(4)]
                if (s+1) % 4 == 0:
                    nxt = [[WVM(f'x1{(s+1)//4}'), 's_barrier', nxt[0]]] + nxt[1:]
            ms = spread(ms, nxt, 1, 9)
            main.append(ms)
        p.add([WVM('x10'), 's_barrier'])
        p.add([rd(t, 0) for t in range(4)])
        for s in range(16):
            f = []
            if s < 5: f += dw2(s)
            if 5 <= s < 12:
                n = len(st); f += st[(s-5)*n//7:(s-4)*n//7]
            if s >= 12:
                f += aw2(s-12) + [WLG(f'aw2{s-12}')] + dw2(s-12+5)
            p.add(spread(main[s], f, 0, len(main[s])))
        p.add(self.stamp('p3gemm'))
        p(f's_cmp_ge_u32 s{sJ}, 3')
        p(f's_cselect_b32 s{sT2}, 3, 99')
        p(f's_mul_i32 s{sT0}, s{sW}, {3*512}')
        p(f's_lshl_b32 s{sT1}, s{sU0}, 10')
        p(f's_add_u32 s{sT0}, s{sT0}, s{sT1}')
        p(f's_add_u32 s{sT0}, s{sT0}, s{sHB}')
        p(f's_cmp_eq_u32 s{sW}, s{sT2}')
        p(f's_cselect_b32 s{sT1}, {OOB}, s{sT0}')
        for pr in range(2):
            for m in range(3):
                b = FR+12*pr+4*m
                for tt in range(2):
                    t = 2*pr+tt
                    a = 12*t+4*m
                    for hh in range(2):
                        p(f'v_pk_fma_f32 {vr(a+2*hh,2)}, {vr(a+2*hh,2)}, {vr(STT+4*t,2)}, {vr(TT+a+2*hh,2)} op_sel:[0,1,0] op_sel_hi:[1,1,1]')
                    for hh in range(2):
                        p(f'v_cvt_pk_bf16_f32 v{b+2*tt+hh}, v{a+2*hh}, v{a+2*hh+1}')
                for k in range(4): p(f'v_pk_max_i16 v{b+k}, v{b+k}, 0')
                p(f'v_permlane16_swap_b32 v{b}, v{b+2}')
                p(f'v_permlane16_swap_b32 v{b+1}, v{b+3}')
                p(f'buffer_store_dwordx4 {vr(b,4)}, v{vST}, {srd(S_WS)}, s{sT0 if m==0 else sT1} offen offset:{512*m} sc1')
            if pr == 0:
                p(f's_add_u32 s{sT0}, s{sT0}, {2*H_TILE}')
                p(f's_add_u32 s{sT1}, s{sT1}, {2*H_TILE}')
        ab = []
        for i in range(4, 9): ab += aw2(i)
        self.publish(2, ab)
        p.add(self.stamp('pub3'))
        if self.stop == 3: return self.finish()
        p.add(dw2(9) + dw2(10))
        p(f's_lshl_b32 s{sT0}, s2, 2')
        p(f's_add_u32 s{sT0}, s{sT0}, s{sW}')
        p(f's_cmp_lg_u32 s{sT0}, 1')
        p('s_cbranch_scc1 L_EP')
        p.cond_begin()
        p(f's_mov_b32 s{sSPIN}, 20000')
        p(f's_mov_b32 s{sT0}, {WS_HELLO}')
        p('L_EPL:')
        p(f'buffer_load_dwordx4 v[0:3], v{vL16}, {srd(S_WS)}, s{sT0} offen sc1')
        p('s_waitcnt vmcnt(0)')
        for k in range(4): p(f'v_xor_b32 v{k}, s{sTAG}, v{k}')
        p('v_or3_b32 v0, v0, v1, v2')
        p('v_or_b32 v0, v0, v3')
        p('v_cmp_ne_u32 vcc, 0, v0')
        p('s_cbranch_vccz L_EPD')
        p(f's_sub_u32 s{sSPIN}, s{sSPIN}, 1')
        p('s_cbranch_scc0 L_EPL')
        p('L_EPD:')
        p('s_mov_b64 exec, 1')
        p(f'buffer_store_dword v{vTAG}, v{vL16}, {srd(S_WS)}, 0 offen sc1')
        p('s_mov_b64 exec, -1')
        p.cond_end()
        p('L_EP:')
        p.add(aw2(9) + aw2(10))
        p.add(self.unpack8(184, GBP))
        p.add(self.unpack8(200, vX2))
        self.wait_flags(2, 0)
        p.add(self.stamp('flag3'))
        def breg(n, i):
            k = 11*n+i
            return ('a', 112+4*k) if k < 20 else ('v', 64+4*(k-20))
        w2op = lambda i, ct: rr((w2reg(i)[0], w2reg(i)[1]+4*ct), 4)
        self.ksplit(11, w2op, breg, 0, sHB, H_TILE, 11*1024, 0, 64, 160, True)
        p.add(self.stamp('p4gemm'))
        Y = 48
        for k in range(8): p(f'v_pk_fma_f32 {vr(Y+2*k,2)}, {vr(Y+2*k,2)}, {vr(184+2*k,2)}, {vr(200+2*k,2)}')
        for k in range(8): p(f'v_cvt_pk_bf16_f32 v{Y+k}, v{Y+2*k}, v{Y+2*k+1}')
        for pp in range(2):
            p(f'buffer_store_dwordx4 {vr(Y+4*pp,4)}, v228, {srd(S_OUT)}, s43 offen offset:{64*pp}')
        return self.finish()

    def ksplit(self, nsteps, wreg, breg, acc, base_sreg, tile_stride, wave_stride, scr, part, areg, last_oob, mid=()):
        p = self.p
        p(f's_mul_i32 s{sT0}, s{sW}, {wave_stride}')
        p(f's_add_u32 s{sT0}, s{sT0}, s{base_sreg}')
        if last_oob:
            p(f's_cmp_eq_u32 s{sW}, 3')
            p(f's_cselect_b32 s{sT3}, {OOB}, 0')
        for n in range(4):
            p(f's_add_u32 s{sT1}, s{sW}, {n+1}')
            p(f's_and_b32 s{sT1}, s{sT1}, 3')
            p(f's_mul_i32 s{sT1}, s{sT1}, {tile_stride}')
            p(f's_add_u32 s{sT1}, s{sT1}, s{sT0}')
            for i in range(nsteps):
                if i and i % 4 == 0: p(f's_add_u32 s{sT1}, s{sT1}, 4096')
                if last_oob and i == nsteps-1: p(f's_add_u32 s{sT1}, s{sT1}, s{sT3}')
                p(f'buffer_load_dwordx4 {rr(breg(n,i),4)}, v{vL16}, {srd(S_WS)}, s{sT1} offen offset:{(i%4)*1024} sc1')
        p.add(mid)
        for n in range(3):
            p(f's_add_u32 s{sT1}, s{sW}, {n+1}')
            p(f's_and_b32 s{sT1}, s{sT1}, 3')
            p(f's_mul_i32 s{sT1}, s{sT1}, {3*4096}')
            p(f's_add_u32 s{sT1}, s{sT1}, {scr+n*4096}')
            p(f'v_add_u32 v{areg+n}, s{sT1}, v{vL16}')
        p(f's_mul_i32 s{sT1}, s{sW}, {3*4096}')
        p(f's_add_u32 s{sT1}, s{sT1}, {scr}')
        p(f'v_add_u32 v{areg+3}, s{sT1}, v{vL16}')
        pend = []
        for n in range(4):
            ms = []
            for i in range(nsteps):
                for ct in range(4):
                    a = acc+16*n+4*ct
                    ms.append(f'v_mfma_f32_16x16x32_bf16 {vr(a,4)}, {wreg(i,ct)}, {rr(breg(n,i),4)}, {"0" if i==0 else vr(a,4)}')
            ms = interleave(ms, pend, every=2, per=1, start=4)
            p.add(ms)
            pend = [f'ds_write_b128 v{areg+n}, {vr(acc+16*n+4*ct,4)} offset:{1024*ct}' for ct in range(4)] if n < 3 else []
        p.add(self.bar())
        for n in range(3):
            for ct in range(4):
                p(f'ds_read_b128 {vr(part+16*n+4*ct,4)}, v{areg+3} offset:{4096*n+1024*ct}')
        for n in range(3):
            for k in range(8):
                p(f'v_pk_add_f32 {vr(acc+48+2*k,2)}, {vr(acc+48+2*k,2)}, {vr(part+16*n+2*k,2)}')

    def finish(self):
        p = self.p
        if self.diag:
            p.add([WVMA()])
            p.add(self.stamp('end'))
            if self.hdiag:
                p.add(self.stamp('rt1'))
                p.add(self.flush())
                assert self.nst <= 17
                p('s_load_dwordx2 s[72:73], s[0:1], 72')
                p('s_mov_b32 s74, 256')
                p('s_mov_b32 s75, 0x00020000')
                p(f'v_readlane_b32 s{sT0}, v217, 1')
                p(f'v_readlane_b32 s{sT1}, v217, 0')
                p(f'v_readlane_b32 s{sT2}, v217, {self.nst-1}')
                p(f'v_subrev_u32 v217, s{sT0}, v217')
                p(f's_not_b32 s{sT1}, s{sT1}')
                p(f'v_writelane_b32 v217, s{sT1}, 0')
                p(f'v_writelane_b32 v217, s{sT2}, 1')
                p(f'v_lshlrev_b32 v1, 2, v{vLANE}')
                p(f's_mov_b64 exec, {(1 << (self.nst-1)) - 1}')
                p(f'buffer_atomic_umax v217, v1, s[72:75], 0 offen sc1')
                p('L_END:')
                p('s_endpgm')
                return p.finalize()
            p.add(self.flush())
            p(f's_getreg_b32 s{sT1}, hwreg(HW_REG_XCC_ID)')
            p(f'v_writelane_b32 v217, s{sT1}, 63')
            p(f's_lshl_b32 s{sT0}, s2, 2')
            p(f's_add_u32 s{sT0}, s{sT0}, s{sW}')
            p(f's_lshl_b32 s{sT0}, s{sT0}, 8')
            p(f's_add_u32 s{sT0}, s{sT0}, {WS_DIAG}')
            p(f'v_lshlrev_b32 v1, 2, v{vLANE}')
            p(f'buffer_store_dword v217, v1, {srd(S_WS)}, s{sT0} offen')
        p('L_END:')
        p('s_endpgm')
        return p.finalize()


HEADER = open(os.path.join(os.path.dirname(os.path.abspath(__file__)), '..', 'cdna_kernels',
              'adaLN_cond__sliding_local_dilated__dense_activation_relu__prompt.s.ref')).read()

def emit(diag=False, stop=None, hdiag=None):
    g = Gen(diag or bool(hdiag), stop, hdiag)
    ins = g.build()
    head = HEADER.split(KNAME + ':')[0].replace('grid=(4096,1,1) block=(256,1,1) lds=0', 'grid=(256,1,1) block=(256,1,1) lds=163840')
    tail = HEADER.split('s_endpgm\n')[1].replace('next_free_vgpr 256', 'next_free_vgpr 512')
    body = '\n'.join(('' if i.is_label else '    ') + i.text for i in ins)
    txt = head + KNAME + ':\n' + body + '\n' + tail
    if g.diag: txt += '\n; STAMPS ' + ' '.join(g.stamp_names) + '\n'
    return txt

if __name__ == '__main__':
    import argparse
    ap = argparse.ArgumentParser()
    ap.add_argument('out'); ap.add_argument('--diag', action='store_true'); ap.add_argument('--stop', type=int); ap.add_argument('--hdiag')
    a = ap.parse_args()
    open(a.out, 'w').write(emit(a.diag, a.stop, a.hdiag.split(',') if a.hdiag else None))
```

```python
import re

REG_RE = re.compile(r'(?<![\w.])([vas])(\d+)(?![\w])|(?<![\w.])([vas])\[(\d+):(\d+)\]')
TRANS = ('v_exp_f32', 'v_log_f32', 'v_rcp_f32', 'v_rsq_f32', 'v_sqrt_f32', 'v_sin_f32', 'v_cos_f32')

def regs_of(tok):
    out = set()
    for m in REG_RE.finditer(tok):
        if m.group(1):
            out.add((m.group(1), int(m.group(2))))
        else:
            for i in range(int(m.group(4)), int(m.group(5)) + 1):
                out.add((m.group(3), i))
    t = tok.strip().lstrip('-')
    if t in ('vcc', 'vcc_lo', 'vcc_hi'): out.add(('x', 'vcc'))
    if t in ('exec', 'exec_lo', 'exec_hi'): out.add(('x', 'exec'))
    if t == 'm0': out.add(('x', 'm0'))
    return out

def split_ops(s):
    ops, depth, cur = [], 0, ''
    for ch in s:
        if ch in '[(': depth += 1
        if ch in '])': depth -= 1
        if ch == ',' and depth == 0:
            ops.append(cur.strip()); cur = ''
        else:
            cur += ch
    if cur.strip(): ops.append(cur.strip())
    return ops

class Ins:
    __slots__ = ('text', 'op', 'kind', 'dst', 'src', 'srcC', 'srcAB', 'tag', 'maybe', 'wide', 'dpp', 'data', 'is_label', 'cond', 'nowait')
    def __init__(self, text, tag=None):
        self.text = text; self.tag = tag; self.maybe = False; self.is_label = False
        self.cond = None; self.nowait = False
        self.dst = set(); self.src = set(); self.srcC = set(); self.srcAB = set(); self.data = set()
        self.wide = False; self.dpp = False
        t = text.split(';')[0].strip()
        if t.endswith(':'):
            self.is_label = True; self.kind = 'label'; self.op = t; return
        if t.startswith('.') or not t:
            self.kind = 'dir'; self.op = t; return
        parts = t.split(None, 1)
        op = parts[0]; self.op = op
        rest = parts[1] if len(parts) > 1 else ''
        ops = split_ops(rest)
        if ops:
            last = ops[-1].split()
            mods = ' '.join(last[1:]); ops[-1] = last[0]
        else:
            mods = ''
        R = [regs_of(o) for o in ops]
        allr = set().union(*R) if R else set()
        if op.startswith('v_mfma'):
            self.kind = 'mfma'; self.dst = R[0]; self.srcAB = R[1] | R[2]; self.srcC = R[3]; self.src = R[1] | R[2] | R[3]
        elif op.startswith('v_'):
            self.kind = 'valu'
            base = op.replace('_e32', '').replace('_e64', '').replace('_dpp', '').replace('_sdwa', '')
            self.dpp = ('_dpp' in op) or ('row_' in mods) or ('quad_perm' in mods)
            if base.startswith('v_permlane') or base == 'v_swap_b32':
                self.dst = R[0] | R[1]; self.src = R[0] | R[1]
            elif base in ('v_add_co_u32', 'v_sub_co_u32', 'v_addc_co_u32', 'v_subb_co_u32', 'v_mad_u64_u32'):
                self.dst = R[0] | R[1]; self.src = set().union(*R[2:])
            elif base == 'v_nop':
                pass
            else:
                self.dst = R[0]; self.src = set().union(*R[1:]) if len(R) > 1 else set()
                if base in ('v_fmac_f32', 'v_dot2c_f32_bf16', 'v_writelane_b32', 'v_pk_fmac_f16') or self.dpp:
                    self.src |= R[0]
                if base.startswith('v_cmpx'): self.dst |= {('x', 'exec')}
                if base.startswith('v_dot'): self.srcAB = R[1] | R[2]
        elif op.startswith('ds_'):
            self.kind = 'ds'
            if op.startswith('ds_read') or op.startswith('ds_bpermute') or op.startswith('ds_permute') or op.startswith('ds_swizzle'):
                self.dst = R[0]; self.src = set().union(*R[1:])
            else:
                self.src = allr; self.data = set().union(*R[1:])
        elif op.startswith('buffer_') or op.startswith('global_'):
            self.kind = 'vmem'
            lds = (' lds' in (' ' + mods)) or ('_lds_' in op)
            if lds:
                self.src = allr | {('x', 'm0')}; self.kind = 'vmem'; self.tag = tag
                self.op = op + '@lds'
            elif '_load' in op:
                self.dst = R[0]; self.src = set().union(*R[1:])
            elif '_store' in op:
                self.src = allr
                self.data = R[0] if op.startswith('buffer_') else R[1]
                self.wide = op.endswith('x3') or op.endswith('x4')
            elif '_atomic' in op:
                self.src = allr
                if 'sc0' in mods: self.dst = R[0]
            else:
                self.src = allr
        elif op.startswith('s_load') or op.startswith('s_buffer_load') or op in ('s_memtime', 's_memrealtime'):
            self.kind = 'smem'; self.dst = R[0]; self.src = set().union(*R[1:]) if len(R) > 1 else set()
        elif op in ('s_waitcnt',):
            self.kind = 'wait'
        elif op == 's_nop':
            self.kind = 'nop'
        elif op.startswith('s_cbranch') or op == 's_branch':
            self.kind = 'branch'
            if 'vcc' in op: self.src = {('x', 'vcc')}
        elif op in ('s_barrier', 's_endpgm', 's_sleep', 's_setprio'):
            self.kind = 'misc'
        elif op.startswith('s_cmp') or op.startswith('s_bitcmp'):
            self.kind = 'salu'; self.src = allr
        elif op.startswith('s_'):
            self.kind = 'salu'; self.dst = R[0]; self.src = set().union(*R[1:]) if len(R) > 1 else set()
            if 'saveexec' in op: self.dst |= {('x', 'exec')}; self.src |= {('x', 'exec')}
            if op in ('s_addk_i32', 's_mulk_i32', 's_cmov_b32', 's_cmov_b64'): self.src |= R[0]
        else:
            raise ValueError('unknown instr: ' + text)

    def states(self):
        if self.kind in ('label', 'dir'): return 0
        if self.kind == 'nop': return int(self.text.split()[1], 0) + 1
        return 1

class Marker:
    def __init__(self, what, arg=None): self.what = what; self.arg = arg

class Prog:
    def __init__(self):
        self.items = []
        self.nlabel = 0
    def e(self, text, tag=None):
        for line in text.split('\n'):
            line = line.strip()
            if not line: continue
            self.items.append(Ins(line, tag))
    __call__ = e
    def add(self, items):
        for it in items:
            if isinstance(it, str): self.e(it)
            elif isinstance(it, tuple): self.e(it[0], it[1])
            elif isinstance(it, list): self.add(it)
            else: self.items.append(it)
    def label(self, base='L'):
        self.nlabel += 1
        return f'{base}_{self.nlabel}'
    def wait_vm(self, tag): self.items.append(Marker('wait_vm', tag))
    def wait_vm_all(self): self.items.append(Marker('wait_vm_all'))
    def wait_lgkm_all(self): self.items.append(Marker('wait_lgkm_all'))
    def wait_lgkm(self, tag): self.items.append(Marker('wait_lgkm', tag))
    def cond_begin(self): self.items.append(Marker('cond_begin'))
    def cond_end(self): self.items.append(Marker('cond_end'))
    def comment(self, c): self.items.append(Marker('comment', c))
    def save(self, name): self.items.append(Marker('save', name))
    def restore(self, name): self.items.append(Marker('restore', name))

    def finalize(self):
        ins = self._insert_waits()
        ins = self._insert_nops(ins)
        return ins

    def _insert_waits(self):
        out = []
        vm = []
        lg = []
        cond_stack = []
        saved = {}
        def emit_wait(v=None, l=None):
            parts = []
            if v is not None: parts.append(f'vmcnt({min(v,63)})')
            if l is not None: parts.append(f'lgkmcnt({min(l,15)})')
            if out and out[-1].kind == 'wait' and getattr(out[-1], 'nowait', False):
                m = re.search(r'vmcnt\((\d+)\)', out[-1].text)
                if m: v = int(m.group(1)) if v is None else min(v, int(m.group(1)))
                m = re.search(r'lgkmcnt\((\d+)\)', out[-1].text)
                if m: l = int(m.group(1)) if l is None else min(l, int(m.group(1)))
                out.pop()
                parts = []
                if v is not None: parts.append(f'vmcnt({min(v,63)})')
                if l is not None: parts.append(f'lgkmcnt({min(l,15)})')
            w = Ins('s_waitcnt ' + ' '.join(parts)); w.nowait = True
            out.append(w)
        def need(queue, idx):
            return sum(1 for e in queue[idx + 1:] if not e['maybe'])
        def retire(queue, idx):
            del queue[:idx + 1]
        for it in self.items:
            if isinstance(it, Marker):
                if it.what == 'comment':
                    out.append(Ins('; ' + it.arg)); continue
                if it.what == 'save':
                    saved[it.arg] = (list(vm), list(lg)); continue
                if it.what == 'restore':
                    vm, lg = list(saved[it.arg][0]), list(saved[it.arg][1]); continue
                if it.what == 'cond_begin':
                    cond_stack.append((list(vm), list(lg))); continue
                if it.what == 'cond_end':
                    svm, slg = cond_stack.pop()
                    newvm = [dict(e, maybe=True) for e in vm if not any(e is s for s in svm)]
                    newlg = [dict(e, maybe=True) for e in lg if not any(e is s for s in slg)]
                    vm = svm + newvm; lg = slg + newlg
                    continue
                if it.what == 'wait_vm':
                    idx = max([i for i, e in enumerate(vm) if e['tag'] == it.arg], default=-1)
                    if idx >= 0:
                        emit_wait(v=need(vm, idx)); retire(vm, idx)
                    continue
                if it.what == 'wait_lgkm':
                    idx = max([i for i, e in enumerate(lg) if e['tag'] == it.arg], default=-1)
                    if idx >= 0:
                        if any(e['smem'] for e in lg): emit_wait(l=0); lg = []
                        else: emit_wait(l=need(lg, idx)); retire(lg, idx)
                    continue
                if it.what == 'wait_vm_all':
                    emit_wait(v=0); vm = []; continue
                if it.what == 'wait_lgkm_all':
                    if lg: emit_wait(l=0)
                    lg = []; continue
                raise ValueError(it.what)
            ins = it
            if ins.kind in ('label', 'dir'):
                out.append(ins); continue
            if ins.kind == 'wait':
                m = re.search(r'vmcnt\((\d+)\)', ins.text)
                if m and int(m.group(1)) == 0: vm = []
                m = re.search(r'lgkmcnt\((\d+)\)', ins.text)
                if m and int(m.group(1)) == 0: lg = []
                out.append(ins); continue
            touched = ins.src | ins.dst
            vi = max([i for i, e in enumerate(vm) if e['dst'] & touched], default=-1)
            li = max([i for i, e in enumerate(lg) if e['dst'] & touched], default=-1)
            if vi >= 0 and ins.kind == 'vmem' and not (vm[vi]['dst'] & ins.src) and all(not (e['dst'] & ins.src) for e in vm):
                vi = -1
            if li >= 0 and ins.kind == 'ds' and all(not (e['dst'] & ins.src) for e in lg) and not any(e['smem'] for e in lg):
                li = -1
            v = l = None
            if vi >= 0:
                v = need(vm, vi); retire(vm, vi)
            if li >= 0:
                if any(e['smem'] for e in lg): l = 0; lg = []
                else: l = need(lg, li); retire(lg, li)
            if v is not None or l is not None: emit_wait(v, l)
            out.append(ins)
            if ins.kind == 'vmem': vm.append(dict(dst=set(ins.dst), tag=ins.tag, maybe=False))
            elif ins.kind == 'ds': lg.append(dict(dst=set(ins.dst), tag=ins.tag, maybe=False, smem=False))
            elif ins.kind == 'smem': lg.append(dict(dst=set(ins.dst), tag=ins.tag, maybe=False, smem=True))
        return out

    @staticmethod
    def _required(p, c):
        req = 0
        isv = lambda s: {r for r in s if r[0] in 'va'}
        iss = lambda s: {r for r in s if r[0] == 's' or r == ('x', 'vcc')}
        if p.kind == 'valu':
            pv = isv(p.dst); ps = iss(p.dst)
            if c.kind == 'mfma' and pv & c.src: req = max(req, 2)
            if c.kind == 'valu':
                if c.dpp and pv & c.src: req = max(req, 2)
                if c.op.startswith('v_permlane') and pv & c.src: req = max(req, 2)
                if (c.op.startswith('v_readlane') or c.op.startswith('v_readfirstlane')) and pv & c.src: req = max(req, 1)
                if p.op.replace('_e32', '').replace('_e64', '') in TRANS and pv & c.src: req = max(req, 1)
                if ps & c.src:
                    req = max(req, 4 if (c.op.startswith('v_readlane') or c.op.startswith('v_writelane')) else 2)
                if ('x', 'vcc') in ps and c.op.startswith('v_cndmask') : req = max(req, 2)
                if ('dst_sel' in p.text and 'dst_sel:DWORD' not in p.text) and pv & (c.src | c.dst): req = max(req, 1)
                if ('x', 'exec') in p.dst: req = max(req, 5)
            if c.kind == 'vmem' and ps & c.src: req = max(req, 5)
            if c.kind in ('salu', 'branch', 'smem') and ps & c.src: req = max(req, 2)
            if c.kind == 'mfma' and ('x', 'exec') in p.dst: req = max(req, 4)
        if p.kind == 'valu' and p.op.startswith('v_dot'):
            pv = isv(p.dst)
            pb = p.op.replace('_e32', '').replace('_e64', '').replace('_dpp', '')
            cb = c.op.replace('_e32', '').replace('_e64', '').replace('_dpp', '')
            if pv & (c.src | c.dst):
                if pb == cb and not (pv & c.srcAB): pass
                else: req = max(req, 3)
        if p.kind == 'mfma':
            n8 = '32x32' in p.op
            if c.kind == 'mfma':
                if p.dst & c.srcAB: req = max(req, 12 if n8 else 8)
                if p.dst & c.srcC:
                    if not (p.dst == c.srcC and p.op == c.op): req = max(req, 10 if n8 else 6)
                elif p.dst & c.dst:
                    req = max(req, 10 if n8 else 6)
            elif c.kind in ('valu', 'vmem', 'ds'):
                if p.dst & (c.src | c.dst): req = max(req, 12 if n8 else 8)
            if c.kind == 'valu' and isv(p.srcC) & c.dst: req = max(req, 7 if n8 else 3)
        if p.kind == 'salu':
            if ('x', 'm0') in p.dst and ('x', 'm0') in c.src and c.kind == 'vmem': req = max(req, 1)
        if p.kind == 'vmem' and p.wide and p.data & c.dst:
            req = max(req, 2 if c.kind in ('valu', 'mfma') else 1)
        return req

    def _insert_nops(self, ins):
        out = []
        WIN = 14
        for c in ins:
            if c.kind in ('dir',):
                out.append(c); continue
            boundary = c.kind in ('label', 'branch')
            dist = 0; need = 0
            for p in reversed(out):
                if dist >= WIN: break
                if p.kind in ('label', 'dir'): continue
                if boundary:
                    worst = {'mfma': 8, 'valu': 2}.get(p.kind, 0)
                    if p.kind == 'valu' and p.op.startswith('v_dot'): worst = 3
                    if p.kind == 'valu' and any(r[0] == 's' or r == ('x', 'vcc') for r in p.dst): worst = 5
                    if p.kind == 'salu' and ('x', 'm0') in p.dst: worst = 1
                    if p.kind == 'vmem' and p.wide: worst = 2
                    if c.kind == 'branch': worst -= 1
                    r = max(worst, self._required(p, c) if c.kind == 'branch' else 0)
                else:
                    r = self._required(p, c)
                need = max(need, r - dist)
                dist += p.states()
            while need > 0:
                n = min(need, 16)
                out.append(Ins(f's_nop {n-1}')); need -= n
            out.append(c)
        return out

def interleave(main, fill, every=1, per=1, start=0):
    out = []; fi = 0
    for i, m in enumerate(main):
        out.append(m)
        if i >= start and (i - start) % every == every - 1:
            for _ in range(per):
                if fi < len(fill): out.append(fill[fi]); fi += 1
    out.extend(fill[fi:])
    return out

def spread(main, fill, start=0, end=None):
    if end is None: end = len(main)
    n = end - start
    out = list(main[:start]); fi = 0
    for i in range(n):
        out.append(main[start + i])
        tgt = (i + 1) * len(fill) // n
        while fi < tgt:
            f = fill[fi]; fi += 1
            if isinstance(f, list): out.extend(f)
            else: out.append(f)
    out.extend(main[end:])
    return out
```

```python
import sys, os
sys.path.insert(0, os.path.dirname(os.path.abspath(__file__)))
from asmlib import *

KNAME = 'adaLN_cond__sliding_local_dilated__dense_activation_relu__prompt_kernel'

WS_HELLO = 0x400
WS_MOD = 0x8000
WS_CL = 0x100000
CL_STRIDE = 0x50000
C_O, C_X1, C_H, C_ST, C_FL = 0, 0x10000, 0x20000, 0x4C000, 0x4D000
H_TILE = 45056
WS_DIAG = 0xE00000
WS_SIZE = 0x1000000
OOB = 0x40000000

SLOT = 12288
L_H = 73728
L_MISC = 155648
L_DUMMY = L_MISC + 7168
L_WO = 49152
L_W2 = 65536

S_X, S_WQ, S_WO, S_W1, S_W2, S_WM, S_OUT, S_WS, S_C, S_CODE = 4, 8, 12, 16, 20, 24, 28, 32, 36, 68
sW, sCL, sJ, sTAG = 60, 61, 62, 63
sT0, sT1, sT2, sT3 = 64, 65, 66, 67
sT4, sT5 = 56, 57
sSPIN, sONES, sR0, sXO = 40, 41, 42, 43
sK = 44
sU0, sCB, sXCC, sXA = 46, 47, 48, 49
sXB, sD0, sD1, sMW, sD2, sP = 50, 51, 52, 53, 54, 55
sN = 72
sA0, sA1 = 76, 77
STAMP0 = 78
NSTAMP = 12


def srd(b): return f's[{b}:{b+3}]'
def vr(a, n=1): return f'v{a}' if n == 1 else f'v[{a}:{a+n-1}]'
def ar(a, n=1): return f'a{a}' if n == 1 else f'a[{a}:{a+n-1}]'
def rr(r, n=1, off=0): return (vr if r[0] == 'v' else ar)(r[1]+off, n)

def WVM(tag): return Marker('wait_vm', tag)
def WLG(tag): return Marker('wait_lgkm', tag)
WVMA = lambda: Marker('wait_vm_all')
WLGA = lambda: Marker('wait_lgkm_all')

vL16, vTAG, vDP, vTS, vDQ, vDW1, vTP, vG, vC, vLANE = 255, 254, 250, 247, 246, 245, 244, 243, 242, 241
vHW, vHR, vXO, vSTO, vSTH, vT1, vMR, vMW, vPB, vDIAG = 239, 235, 234, 233, 232, 229, 228, 227, 225, 224
vXV = 223
vPOLL = 208
MFMA = 'v_mfma_f32_16x16x32_bf16'

def X(i, T): return 40*i + 8*T


class Gen:
    def __init__(self, diag=False, hdiag=None, **opt):
        self.p = Prog()
        self.diag = diag; self.hdiag = hdiag
        self.nst = 0; self.flushed = 0; self.stamp_names = []
        self.o = dict(pollpos=0.6, nC=5, touch=1, fast=1, ba=0.72)
        self.o.update(opt)

    def stamp(self, name):
        if not self.diag: return []
        if self.hdiag and name not in self.hdiag and name not in ('rt0', 'start', 'end', 'rt1'): return []
        k = self.nst; self.nst += 1
        assert k - self.flushed < NSTAMP, name
        if len(self.stamp_names) <= k: self.stamp_names.append(name)
        op = 's_memrealtime' if name.startswith('rt') else 's_memtime'
        k %= NSTAMP
        return [f'{op} s[{STAMP0+2*k}:{STAMP0+2*k+1}]']

    def flush(self):
        if not self.diag: return []
        o = ['s_waitcnt lgkmcnt(0)']
        for k in range(self.flushed, self.nst):
            o.append(f'v_writelane_b32 v{vDIAG}, s{STAMP0+2*(k%NSTAMP)}, {k}')
        self.flushed = self.nst
        return o

    def bar(self): return [WLGA(), 's_barrier']

    def entry(self):
        p = self.p
        p('s_load_dwordx16 s[40:55], s[0:1], 0')
        p('s_load_dwordx2 s[56:57], s[0:1], 64')
        p('s_load_dwordx2 s[58:59], s[0:1], 80')
        p('s_cmp_ge_u32 s2, 256')
        p('s_cbranch_scc1 L_END')
        p.add(self.stamp('rt0'))
        p.add(self.stamp('start'))
        p(f'v_lshrrev_b32 v1, 6, v0')
        p(f'v_and_b32 v{vLANE}, 63, v0')
        p(f's_getpc_b64 s[{S_CODE}:{S_CODE+1}]')
        p('L_PC:')
        p(f'v_readfirstlane_b32 s{sW}, v1')
        p(f's_mov_b32 s{S_CODE+2}, L_FASTEND-L_PC')
        p(f's_mov_b32 s{S_CODE+3}, 0x00020000')
        p(f'v_lshlrev_b32 v2, 7, v{vLANE}')
        p(f's_lshr_b32 s{sT0}, s2, 3')
        p(f's_lshl_b32 s{sT0}, s{sT0}, 2')
        p(f's_add_u32 s{sT0}, s{sT0}, s{sW}')
        p(f's_lshl_b32 s{sT0}, s{sT0}, 13')
        p(f's_mov_b32 m0, {L_DUMMY}')
        p(f'v_lshlrev_b32 v{vL16}, 4, v{vLANE}')
        if self.o['touch']:
            p(f'buffer_load_dword v2, {srd(S_CODE)}, s{sT0} offen lds')
        p(f'v_lshrrev_b32 v{vG}, 4, v{vLANE}')
        p(f'v_and_b32 v{vC}, 15, v{vLANE}')
        for b, sz in ((S_X, 2048*1024), (S_WQ, 512*3072), (S_WO, 512*1024), (S_W1, 512*2752), (S_W2, 1376*1024),
                      (S_WM, 512*6144), (S_OUT, 2048*1024), (S_WS, WS_SIZE), (S_C, 1024)):
            p(f's_mov_b32 s{b+2}, {sz}')
            p(f's_mov_b32 s{b+3}, 0x00020000')
        p(f's_and_b32 s{sT0}, s2, 7')
        p(f's_lshr_b32 s{sT1}, s2, 6')
        p(f's_lshl_b32 s{sT0}, s{sT0}, 2')
        p(f's_add_u32 s{sCL}, s{sT0}, s{sT1}')
        p(f's_bfe_u32 s{sJ}, s2, 0x30003')
        p(f'v_lshlrev_b32 v{vXV}, 11, v{vG}')
        p(f'v_lshl_add_u32 v{vXV}, v{vC}, 4, v{vXV}')
        p(f'v_lshrrev_b32 v3, 2, v{vLANE}')
        p(f'v_and_b32 v4, 0x30, v{vL16}')
        p(f'v_mul_u32_u24 v3, {8*6144}, v3')
        p(f'v_add_u32 v3, v3, v4')
        p(f'v_lshlrev_b32 v1, 2, v{vLANE}')
        p(f's_lshl_b32 s{sT2}, s{sCL}, 6')
        p(f's_lshl_b32 s{sT0}, s{sW}, 3')
        p(f's_add_u32 s{sT0}, s{sT0}, s{sT2}')
        p(f's_cmp_lt_u32 s{sW}, 2')
        p(f's_cselect_b32 s{sT1}, 15, 32')
        p(f's_sub_i32 s{sT1}, s{sT0}, s{sT1}')
        p(f's_max_i32 s{sT1}, s{sT1}, 0')
        p(f's_lshl_b32 s{sA0}, s{sT1}, 10')
        p(f's_lshl_b32 s{sA1}, s{sT0}, 10')
        p(f's_mul_i32 s{sT0}, s{sW}, {128*6144}')
        p(f's_lshl_b32 s{sT1}, s2, 6')
        p(f's_add_u32 s{sT0}, s{sT0}, s{sT1}')
        p(f's_lshl_b32 s{sT1}, s{sW}, 8')
        p.add([WLGA()])
        for b, k in ((S_C, 52), (S_WM, 54), (S_X, 40), (S_WS, 58), (S_WQ, 42), (S_WO, 44), (S_W1, 48), (S_W2, 50), (S_OUT, 56)):
            p(f's_mov_b64 s[{b}:{b+1}], s[{k}:{k+1}]')
        p(f's_load_dword s{sTAG}, s[58:59], 0')
        p(f's_mov_b32 s{sR0}, s{sT2}')

    def xload(self, T):
        so, io = ((sA0, 0), (sA1, 0), (sA1, 1024), (sXA, 0), (sXA, 1024))[T]
        return [f'buffer_load_dwordx4 {vr(X(i,T)+4,4)}, v{vXV}, {srd(S_X)}, s{so} offen offset:{io+256*i}' for i in range(4)]

    def touches(self):
        p = self.p
        p(f's_mul_i32 s{sCB}, s{sCL}, {CL_STRIDE}')
        p(f's_add_u32 s{sCB}, s{sCB}, {WS_CL}')
        if not self.o['touch']: return
        p(f's_sub_u32 s{sT0}, 255, s2')
        p(f's_lshl_b32 s{sT0}, s{sT0}, 13')
        for w, ops in enumerate((
                [f'buffer_load_dword v2, {srd(S_W1)}, s{sT0} offen lds'],
                [f'buffer_load_dword v2, {srd(S_W2)}, s{sT0} offen lds'],
                [f'buffer_load_dword v2, {srd(S_WO)}, s{sT0} offen lds',
                 f'buffer_load_dword v1, {srd(S_OUT)}, s{sA1} offen lds'],
                [f's_add_u32 s{sT1}, s{sCB}, {C_ST}',
                 f'buffer_load_dword v2, {srd(S_WS)}, s{sT1} offen sc1 lds',
                 f'buffer_load_dword v1, {srd(S_WS)}, s{sCB} offen sc1 lds'])):
            L = p.label('L_TC')
            p(f's_cmp_lg_u32 s{sW}, {w}')
            p(f's_cbranch_scc1 {L}')
            p.cond_begin(); p.add(ops); p.cond_end()
            p(f'{L}:')

    def precompute(self):
        o = []
        t = 208
        o += [f'v_lshrrev_b32 v{t}, 3, v{vLANE}', f'v_lshrrev_b32 v{t+1}, 1, v{t}', f'v_lshlrev_b32 v{t+1}, 5, v{t+1}',
              f'v_and_b32 v{t+2}, 0x70, v{vL16}', f'v_xor_b32 v{t+1}, v{t+1}, v{t+2}',
              f'v_and_b32 v{t+2}, 4, v{t}', f'v_add_u32 v{t}, v{t}, v{t+2}',
              f'v_mul_u32_u24 v{t+2}, 3072, v{t}', f'v_add_u32 v{vDQ}, v{t+2}, v{t+1}',
              f'v_lshl_add_u32 v{vDP}, v{t}, 10, v{t+1}', f'v_add_u32 v{vDP+1}, {15*1024}, v{vDP}',
              f'v_add_u32 v{vDP+2}, {2*1024}, v{vDP}', f'v_add_u32 v{vDP+3}, {17*1024}, v{vDP}',
              f'v_mul_u32_u24 v{t+2}, 2752, v{t}', f'v_add_u32 v{vDW1}, v{t+2}, v{t+1}']
        o += [f's_add_u32 s{sXA}, s{sA1}, 32768',
              f's_and_b32 s{sT0}, s{sW}, 1', f's_lshl_b32 s{sT0}, s{sT0}, 4', f's_lshr_b32 s{sT1}, s{sW}, 1',
              f's_lshl_b32 s{sT1}, s{sT1}, 2', f's_add_u32 s{sP}, s{sT0}, s{sT1}',
              f's_mul_i32 s{sD0}, s{sP}, 3072', f's_lshl_b32 s{sT0}, s{sJ}, 7', f's_add_u32 s{sD0}, s{sD0}, s{sT0}',
              f's_mul_i32 s{sD1}, s{sW}, 3072',
              f's_min_u32 s{sT0}, s{sJ}, 3', f's_mul_i32 s{sU0}, s{sJ}, 5', f's_add_u32 s{sU0}, s{sU0}, s{sT0}',
              f's_mul_i32 s{sD2}, s{sP}, 2752', f's_lshl_b32 s{sT0}, s{sU0}, 6', f's_add_u32 s{sD2}, s{sD2}, s{sT0}',
              f's_mov_b32 s{sONES}, 0x3f803f80', f's_mov_b32 s{sK}, 0x3eb8aa3b', f's_mov_b32 s{sK+1}, 0x3eb8aa3b',
              f's_getreg_b32 s{sXCC}, hwreg(HW_REG_XCC_ID, 0, 4)']
        o += [f'v_lshrrev_b32 v{t}, 2, v{vLANE}', f'v_and_b32 v{t}, 7, v{t}',
              f'v_lshrrev_b32 v{t+1}, 1, v{t}', f'v_lshlrev_b32 v{t+1}, 5, v{t+1}',
              f'v_and_b32 v{t+2}, 3, v{vLANE}', f'v_lshlrev_b32 v{t+2}, 3, v{t+2}',
              f'v_lshl_add_u32 v{t+2}, v{t}, 7, v{t+2}',
              f'v_lshrrev_b32 v{t+3}, 5, v{vLANE}',
              f'v_and_b32 v{t+4}, 0x30, v{vL16}', f'v_xor_b32 v{t+4}, v{t+4}, v{t+1}',
              f'v_lshl_add_u32 v{t+4}, v{t}, 7, v{t+4}', f'v_lshl_add_u32 v{vTP}, v{t+3}, 10, v{t+4}',
              f'v_mul_u32_u24 v{t+3}, 3072, v{t+3}', f'v_add_u32 v{t+2}, v{t+2}, v{t+3}',
              f's_lshl_b32 s{sT0}, s{sW}, 5', f'v_xor_b32 v{t+3}, s{sT0}, v{t+1}',
              f'v_add_u32 v{vTS}, v{t+2}, v{t+3}', f'v_add_u32 v{vTS+1}, {4*SLOT}, v{vTS}', f'v_add_u32 v{vTS+2}, {8*SLOT}, v{vTS}']
        for m in range(3):
            o += [f's_mul_i32 s{sT0}, s{sW}, 3', f's_add_u32 s{sT0}, s{sT0}, {m}', f's_and_b32 s{sT1}, s{sT0}, 3',
                  f's_lshl_b32 s{sT1}, s{sT1}, 5', f's_lshr_b32 s{sT0}, s{sT0}, 2', f's_lshl_b32 s{sT0}, s{sT0}, 10',
                  f'v_xor_b32 v{vT1+m}, s{sT1}, v{t+1}', f'v_add3_u32 v{vT1+m}, v{vT1+m}, v{t+2}, s{sT0}']
        o += [f's_lshl_b32 s{sMW}, s{sW}, 14', f's_add_u32 s{sMW}, s{sMW}, {L_WO}',
              f'v_add_u32 v{vPB}, s{sMW}, v{vTP}', f'v_xor_b32 v{vPB+1}, 64, v{vPB}']
        o += [f's_lshl_b32 s{sT0}, s{sW}, 2', f'v_add_u32 v{t}, s{sT0}, v{vG}', f'v_and_b32 v{t+1}, 7, v{vC}',
              f'v_xor_b32 v{t}, v{t}, v{t+1}', f'v_lshlrev_b32 v{t}, 4, v{t}', f'v_lshl_add_u32 v{t}, v{vC}, 8, v{t}',
              f'v_add_u32 v{vHW}, {L_H}, v{t}', f'v_add_u32 v{vHW+1}, {L_H+40960}, v{t}',
              f'v_xor_b32 v{t}, v{vC}, v{vG}', f'v_lshlrev_b32 v{t}, 4, v{t}', f'v_lshl_add_u32 v{t}, v{vG}, 8, v{t}',
              f'v_add_u32 v{vHR}, {L_H}, v{t}', f'v_xor_b32 v{vHR+1}, 64, v{vHR}',
              f'v_add_u32 v{vHR+2}, 40960, v{vHR}', f'v_add_u32 v{vHR+3}, 40960, v{vHR+1}']
        o += [f's_lshl_b32 s{sT0}, s{sW}, 10', f's_add_u32 s{sXB}, s{sT0}, {WS_MOD}', f's_add_u32 s{sT0}, s{sT0}, {L_MISC}',
              f'v_add_u32 v{vMW}, s{sT0}, v{vL16}', f'v_lshlrev_b32 v{vMR}, 5, v{vC}', f'v_add_u32 v{vMR}, {L_MISC}, v{vMR}']
        o += [f'v_lshlrev_b32 v{vXO}, 11, v{vC}', f'v_lshl_add_u32 v{vXO}, v{vG}, 4, v{vXO}',
              f's_lshr_b32 s{sT0}, s{sW}, 1', f's_lshl_b32 s{sT0}, s{sT0}, 5', f's_and_b32 s{sT1}, s{sW}, 1',
              f's_add_u32 s{sT0}, s{sT0}, s{sT1}', f's_add_u32 s{sT0}, s{sT0}, s{sR0}', f's_lshl_b32 s{sT0}, s{sT0}, 10',
              f's_lshl_b32 s{sT1}, s{sJ}, 7', f's_add_u32 s{sXO}, s{sT0}, s{sT1}',
              f'v_lshrrev_b32 v{t}, 1, v{vG}', f'v_lshlrev_b32 v{t}, 8, v{t}', f'v_lshl_add_u32 v{t}, v{vC}, 4, v{t}',
              f'v_and_b32 v{t+1}, 1, v{vG}', f'v_lshl_add_u32 v{vSTO}, v{t+1}, 14, v{t}',
              f'v_mul_u32_u24 v{t+1}, {H_TILE}, v{t+1}', f'v_add_u32 v{vSTH}, v{t+1}, v{t}']
        o += [f'v_lshlrev_b32 v{t}, 2, v{vG}', f'v_sub_u32 v{t}, v{t}, v{vC}', f'v_mov_b32 v{t+1}, 0xf149f2ca',
              f's_cmp_eq_u32 s{sCL}, 0', f's_cselect_b32 s{sT0}, 100, 9', f's_cselect_b32 s{sT1}, 100, 1',
              f'v_and_b32 v{t+2}, 2, v{vG}', f'v_lshlrev_b32 v{t+2}, 6, v{t+2}', f'v_sub_u32 v{t+2}, v{t}, v{t+2}']
        for r in range(4):
            o += [f'v_add_u32 v{t+3}, {r+7}, v{t}', f'v_add_u32 v{t+4}, {r}, v{t}', f'v_add_u32 v{t+5}, {r}, v{t+2}',
                  f'v_cmp_gt_u32 vcc, 8, v{t+3}', f'v_cmp_le_i32 s[{sN}:{sN+1}], 9, v{t+4}',
                  f'v_cmp_le_i32 s[{sN+2}:{sN+3}], s{sT0}, v{t+4}', f'v_cmp_le_i32 s[{sT2}:{sT3}], s{sT1}, v{t+5}',
                  f'v_cndmask_b32 v{t+3}, v{t+1}, 0, vcc', f'v_cndmask_b32 v{t+8+r}, 0, -1, vcc',
                  f'v_cndmask_b32 v{t+4}, v{t+1}, 0, s[{sN}:{sN+1}]', f'v_cndmask_b32 v{t+5}, v{t+1}, 0, s[{sN+2}:{sN+3}]',
                  f'v_cndmask_b32 v{t+6}, v{t+1}, 0, s[{sT2}:{sT3}]']
            o += [f'v_accvgpr_write_b32 a{232+4*k+r}, v{t+3+k}' for k in range(4)]
        o += [f'v_mov_b32 v{t+3}, 0xffff', f'v_bfi_b32 v{t+4}, v{t+3}, v{t+8}, v{t+9}', f'v_bfi_b32 v{t+5}, v{t+3}, v{t+10}, v{t+11}',
              f'v_accvgpr_write_b32 a248, v{t+4}', f'v_accvgpr_write_b32 a249, v{t+5}']
        return o

    def tag(self):
        p = self.p
        p.add([WLGA()])
        p(f's_mul_i32 s{sTAG}, s{sTAG}, 1664525')
        p(f's_add_u32 s{sTAG}, s{sTAG}, 1013904223')
        p(f'v_mov_b32 v{vTAG}, s{sTAG}')
        p(f's_add_u32 s{sXCC}, s{sXCC}, s{sTAG}')
        p(f's_cmp_lg_u32 s{sW}, 3')
        p('s_cbranch_scc1 L_HEL')
        p.cond_begin()
        p(f's_lshl_b32 s{sT0}, s{sCL}, 3')
        p(f's_add_u32 s{sT0}, s{sT0}, s{sJ}')
        p(f's_lshl_b32 s{sT0}, s{sT0}, 2')
        p(f'v_mov_b32 v208, s{sXCC}')
        p('s_mov_b64 exec, 1')
        p(f'buffer_store_dword v208, v{vL16}, {srd(S_WS)}, s{sT0} offen offset:{WS_HELLO} sc1')
        p('s_mov_b64 exec, -1')
        p.cond_end()
        p('L_HEL:')

    def p0_compute(self):
        p = self.p
        A, F = 192, 200
        p(f'v_lshlrev_b32 v{F}, 16, v206')
        p(f'v_and_b32 v{F+1}, 0xffff0000, v206')
        p(f'v_mul_f32 v{F+2}, 0xbfb8aa3b, v{F}')
        p(f'v_mul_f32 v{F+3}, 0xbfb8aa3b, v{F+1}')
        p(f'v_exp_f32 v{F+2}, v{F+2}')
        p(f'v_exp_f32 v{F+3}, v{F+3}')
        p(f'v_add_f32 v{F+2}, 1.0, v{F+2}')
        p(f'v_add_f32 v{F+3}, 1.0, v{F+3}')
        p(f'v_rcp_f32 v{F+2}, v{F+2}')
        p(f'v_rcp_f32 v{F+3}, v{F+3}')
        p(f'v_mul_f32 v{F}, v{F}, v{F+2}')
        p(f'v_mul_f32 v{F+1}, v{F+1}, v{F+3}')
        p(f'v_cvt_pk_bf16_f32 v206, v{F}, v{F+1}')
        p(f'v_and_b32 v{F}, 0xffff, v206')
        p(f'v_lshlrev_b32 v{F+1}, 16, v206')
        p(f'v_lshrrev_b32 v{F+2}, 16, v206')
        p(f'v_and_b32 v{F+3}, 0xffff0000, v206')
        for i in range(8):
            q = i >> 1
            for d in range(4):
                for hh in range(2):
                    p(f'v_dot2c_f32_bf16_dpp v{A+2*d+hh}, v{F+2*(i&1)+hh}, v{160+4*i+d} quad_perm:[{q},{q},{q},{q}] row_mask:0xf bank_mask:0xf')
        for m in range(4): p(f'v_permlane32_swap_b32 v{A+m}, v{A+4+m}')
        for m in range(2): p(f'v_pk_add_f32 {vr(A+2*m,2)}, {vr(A+2*m,2)}, {vr(A+4+2*m,2)}')
        for m in range(2): p(f'v_permlane16_swap_b32 v{A+m}, v{A+2+m}')
        p(f'v_pk_add_f32 {vr(A,2)}, {vr(A,2)}, {vr(A+2,2)}')
        for sh in (8, 4):
            for m in range(2): p(f'v_add_f32_dpp v{A+m}, v{A+m}, v{A+m} row_ror:{sh} row_mask:0xf bank_mask:0xf')
        p(f'ds_write_b64 v207, {vr(A,2)}')
        p.add(self.bar())
        p(f's_cmp_lg_u32 s{sW}, 0')
        p('s_cbranch_scc1 L_P0X')
        p.cond_begin()
        p('s_mov_b64 exec, 0xff')
        for k in range(4): p(f'ds_read_b128 {vr(160+4*k,4)}, v{vMW} offset:{4096+128*k}')
        p('v_pk_add_f32 v[160:161], v[160:161], v[164:165]')
        p('v_pk_add_f32 v[162:163], v[162:163], v[166:167]')
        p('v_pk_add_f32 v[168:169], v[168:169], v[172:173]')
        p('v_pk_add_f32 v[170:171], v[170:171], v[174:175]')
        p('v_pk_add_f32 v[160:161], v[160:161], v[168:169]')
        p('v_pk_add_f32 v[162:163], v[162:163], v[170:171]')
        p('v_cvt_pk_bf16_f32 v160, v160, v161')
        p('v_cvt_pk_bf16_f32 v162, v162, v163')
        p('v_and_b32 v161, 0xffff0000, v160')
        p('v_lshlrev_b32 v160, 16, v160')
        p('v_and_b32 v163, 0xffff0000, v162')
        p('v_lshlrev_b32 v162, 16, v162')
        p(f'v_pk_add_f32 v[160:161], v[160:161], s[{sT2}:{sT3}]')
        p(f'v_pk_add_f32 v[162:163], v[162:163], s[{sT2}:{sT3}]')
        p('v_cvt_pk_bf16_f32 v208, v160, v161')
        p('v_cvt_pk_bf16_f32 v209, v162, v163')
        p(f'buffer_store_dwordx4 v[208:211], v{vL16}, {srd(S_WS)}, s{sT0} offen sc1')
        p('s_mov_b64 exec, -1')
        p.cond_end()
        p('L_P0X:')

    def p0_pre(self):
        A = 192
        o = [f'v_mov_b32 v{A+a}, 0' for a in range(8)]
        o += [f'v_and_b32 v207, 3, v{vLANE}', f'v_lshlrev_b32 v207, 5, v207', f'v_lshl_add_u32 v207, v{vG}, 3, v207',
              f's_lshl_b32 s{sT0}, s{sW}, 7', f's_add_u32 s{sT0}, s{sT0}, {L_MISC+4096}', f'v_add_u32 v207, s{sT0}, v207',
              f's_lshr_b32 s{sT0}, s2, 4', f's_cmp_eq_u32 s{sT0}, 1', f's_cselect_b32 s{sT2}, 1.0, 0',
              f's_cmp_eq_u32 s{sT0}, 4', f's_cselect_b32 s{sT2}, 1.0, s{sT2}', f's_mov_b32 s{sT3}, s{sT2}',
              f's_lshl_b32 s{sT0}, s2, 7', f's_add_u32 s{sT0}, s{sT0}, {WS_MOD}',
              f'v_mov_b32 v210, v{vTAG}', f'v_mov_b32 v211, v{vTAG}']
        return o

    @staticmethod
    def wq_slot(k): return (k + 6) % 12 if k < 12 else k - 12

    def dma_wq(self, k):
        o = [f's_add_u32 m0, s{sD1}, {self.wq_slot(k)*SLOT}']
        for sec in range(3):
            o.append((f'buffer_load_dwordx4 v{vDQ}, {srd(S_WQ)}, s{sD0} offen offset:{1024*sec} lds', f'wq{k}'))
        if k < 15: o.append(f's_add_u32 s{sD0}, s{sD0}, {32*3072}')
        return o

    def absorb_wq(self, k):
        sl = self.wq_slot(k)
        return [(f'ds_read_b64_tr_b16 {ar(k*12+sec*4+2*h,2)}, v{vTS+sl//4} offset:{(sl%4)*SLOT+h*6144+sec*1024}', f'awq{k}')
                for sec in range(3) for h in range(2)]

    def ln(self):
        o = []
        SB = 192
        for k in range(10): o.append(f'v_mov_b32 v{SB+k}, 0')
        for T in range(5):
            for i in range(4):
                for m in range(4):
                    x = X(i, T)+4+m
                    o += [f'v_dot2c_f32_bf16 v{SB+2*T}, s{sONES}, v{x}', f'v_dot2c_f32_bf16 v{SB+2*T+1}, v{x}, v{x}']
            for i in range(4):
                for m in range(4):
                    x = X(i, T)+4+m; d = X(i, T)+2*m
                    o += [f'v_lshlrev_b32 v{d}, 16, v{x}', f'v_and_b32 v{d+1}, 0xffff0000, v{x}']
        for sh in (8, 4, 2, 1):
            for k in range(10):
                o.append(f'v_add_f32_dpp v{SB+k}, v{SB+k}, v{SB+k} row_ror:{sh} row_mask:0xf bank_mask:0xf')
        inv = '0x3b000000'
        for T in range(5): o.append(f'v_mul_f32 v{SB+2*T}, {inv}, v{SB+2*T}')
        for T in range(5): o.append(f'v_mul_f32 v{SB+2*T+1}, {inv}, v{SB+2*T+1}')
        for T in range(5): o.append(f'v_fma_f32 v{SB+2*T+1}, -v{SB+2*T}, v{SB+2*T}, v{SB+2*T+1}')
        for T in range(5): o.append(f'v_max_f32 v{SB+2*T+1}, 0, v{SB+2*T+1}')
        for T in range(5): o.append(f'v_add_f32 v{SB+2*T+1}, 0x3727c5ac, v{SB+2*T+1}')
        for T in range(5): o.append(f'v_rsq_f32 v{SB+2*T+1}, v{SB+2*T+1}')
        for T in range(5): o.append(f'v_mul_f32_e64 v{SB+2*T}, -v{SB+2*T}, v{SB+2*T+1}')
        for i in range(4):
            for T in range(5):
                for m in range(4):
                    d = X(i, T)+2*m
                    o.append(f'v_pk_fma_f32 {vr(d,2)}, {vr(d,2)}, {vr(SB+2*T,2)}, {vr(SB+2*T,2)} op_sel:[0,1,0] op_sel_hi:[1,1,0]')
        return o

    def tagged_loads(self, dsts, soff, offs):
        return [f'buffer_load_dwordx4 {vr(d,4)}, v{vL16}, {srd(S_WS)}, s{so} offen sc1' for d, so in zip(dsts, soff)]

    def tagged_check(self, dsts, soff):
        p = self.p
        L = p.label('L_PT'); D = p.label('L_PD')
        def chk():
            p(f'v_cmp_ne_u32 vcc, s{sTAG}, v{dsts[0]+2}')
            for d in dsts[1:]:
                p(f'v_cmp_ne_u32 s[{sT4}:{sT5}], s{sTAG}, v{d+2}')
                p(f's_or_b64 vcc, vcc, s[{sT4}:{sT5}]')
            p(f's_cbranch_vccz {D}')
        chk()
        p.cond_begin()
        p(f's_mov_b32 s{sSPIN}, 20000')
        p(f'{L}:')
        p.add(self.tagged_loads(dsts, soff, None))
        p('s_waitcnt vmcnt(0)')
        chk()
        p(f's_sub_u32 s{sSPIN}, s{sSPIN}, 1')
        p(f's_cbranch_scc0 {L}')
        p.cond_end()
        p(f'{D}:')

    def mod_read(self, i):
        b = 176 + 16*(i & 1)
        return [(f'ds_read_b128 {vr(b+8*v+4*hh,4)}, v{vMR} offset:{2048*v+512*i+16*hh}', f'mr{i}') for v in (1, 0) for hh in range(2)]

    def modulate(self, i, packed):
        o = []
        b = 176 + 16*(i & 1)
        for T in range(5):
            x = X(i, T)
            if packed:
                o += [f'v_pk_fma_f32 {vr(x+2*m,2)}, {vr(x+2*m,2)}, {vr(b+8+2*m,2)}, {vr(b+2*m,2)}' for m in range(4)]
            else:
                o += [f'v_fma_f32 v{x+m}, v{x+m}, v{b+8+m}, v{b+m}' for m in range(8)]
            o += [f'v_cvt_pk_bf16_f32 v{x+m}, v{x+2*m}, v{x+2*m+1}' for m in range(4)]
            o.append(f'ds_write_b128 v{vHW+(i>>1)}, {vr(x,4)} offset:{(i&1)*20480+T*4096}')
        return o

    def dma_priv(self, S, soff_reg, lds_off, tag):
        out = [f's_add_u32 m0, s{sMW}, {lds_off}']
        for b in range(4):
            out.append((f'buffer_load_dwordx4 v{vDP+b}, {srd(S)}, s{soff_reg} offen offset:{1024*b} lds', tag))
        out.append(f's_add_u32 s{soff_reg}, s{soff_reg}, 32768')
        return out

    def absorb_priv(self, lds_off, dst, tag):
        return [(f'ds_read_b64_tr_b16 {rr(dst,2,4*ct+2*h)}, v{vPB+(ct>>1)} offset:{lds_off+h*2048+8*(ct&1)}', tag)
                for ct in range(4) for h in range(2)]

    W1ADDR = [0, SLOT, 2*SLOT, 3*SLOT, 114688, 114688+SLOT, 114688+2*SLOT]
    def w1_addr(self, k):
        nC = self.o['nC']
        if k < 7: return self.W1ADDR[k]
        if k < 7+nC: return L_WO + (k-7)*SLOT
        if k < 10+nC: return 114688 + (k-7-nC)*SLOT
        return (k-10-nC)*SLOT
    def dma_w1(self, k):
        o = []
        for sec in range(3):
            o += [f's_add_u32 m0, s{sD1}, {self.w1_addr(k) + sec*896}',
                  (f'buffer_load_dwordx4 v{vDW1}, {srd(S_W1)}, s{sD2} offen offset:{128*sec} lds', f'w1{k}')]
        if k < 15: o.append(f's_add_u32 s{sD2}, s{sD2}, {32*2752}')
        return o
    def absorb_w1(self, ks, tmp):
        o = []; cur = None
        for k in ks:
            a = self.w1_addr(k)
            if a + 6144 <= 65535: base, br = 0, vT1
            else:
                if cur is None or not (0 <= a - cur and a - cur + 6144 <= 65535):
                    cur = a
                    o += [f'v_add_u32 v{tmp+m}, {cur}, v{vT1+m}' for m in range(3)]
                base, br = cur, tmp
            o += [(f'ds_read_b64_tr_b16 {ar(k*12+m*4+2*h,2)}, v{br+m} offset:{a-base+h*6144}', f'aw1{k}') for m in range(3) for h in range(2)]
        return o

    ACCQ = [0, 4, 8, 12]; ACCK = [16, 20, 24, 28, 32]; ACCV = [36, 160, 164, 168, 172]
    MK = 80
    def p1_gemm(self):
        p = self.p
        def fr(T, s): return ('a', 192+20*(s & 1)+4*T) if s < 5 else ('v', 40+20*(s & 1)+4*T)
        def rd(T, s):
            i = s >> 2
            return (f'ds_read_b128 {rr(fr(T,s),4)}, v{vHR+(s&1)+2*(i>>1)} offset:{(i&1)*20480+T*4096+(s&3)*1024}', f'fr{s}')
        p.add([rd(T, 0) for T in range(5)])
        steps = []
        for s in range(16):
            ms = []
            for T in range(5):
                h = rr(fr(T, s), 4)
                C = lambda a: '0' if s == 0 else vr(a, 4)
                ms.append(f'{MFMA} {vr(self.ACCK[T],4)}, {ar(s*12+4,4)}, {h}, {C(self.ACCK[T])}')
                ms.append(f'{MFMA} {vr(self.ACCV[T],4)}, {h}, {ar(s*12+8,4)}, {C(self.ACCV[T])}')
                if T > 0: ms.append(f'{MFMA} {vr(self.ACCQ[T-1],4)}, {ar(s*12,4)}, {h}, {C(self.ACCQ[T-1])}')
            steps.append(ms)
        head = [[] for _ in range(16)]; tail = [[] for _ in range(16)]
        def split(lst, n): return [lst[k*len(lst)//n:(k+1)*len(lst)//n] for k in range(n)]
        for i in (1, 2, 3):
            parts = split(self.modulate(i, False), 3)
            if i > 1: tail[4*(i-1)-1] += self.mod_read(i)
            for k in range(3): tail[4*(i-1)+k] += parts[k]
        tail[1] += [[WVM('wq8'), 's_barrier']]
        tail[2] += self.absorb_wq(6) + self.absorb_wq(7)
        head[3] += self.absorb_wq(8) + [[WVM('wq11'), WLGA(), 's_barrier']]
        tail[3] += self.dma_wq(12)
        tail[4] += self.dma_wq(13) + self.absorb_wq(9)
        tail[5] += self.dma_wq(14) + self.absorb_wq(10)
        tail[6] += self.absorb_wq(11)
        head[7] += [[WVM('wq14'), WLGA(), 's_barrier']]
        wo = [f's_lshl_b32 s{sD0}, s{sW}, 17', f's_lshl_b32 s{sT0}, s{sJ}, 7', f's_add_u32 s{sD0}, s{sD0}, s{sT0}']
        tail[7] += self.dma_wq(15) + wo + self.dma_priv(S_WO, sD0, 0, 'wo0')
        for k in range(3):
            tail[8+k] += self.dma_priv(S_WO, sD0, 4096*(k+1), f'wo{k+1}') + self.absorb_wq(12+k)
        head[11] += [[WVM('wq15'), WLGA(), 's_barrier']]
        tail[11] += self.absorb_wq(15) + self.dma_w1(0)
        tail[12] += self.dma_w1(1) + [f'v_accvgpr_read_b32 v{self.MK+k}, a{232+k}' for k in range(18)]
        hello = [f'v_and_b32 v98, 7, v{vLANE}', f'v_lshlrev_b32 v98, 2, v98', f's_lshl_b32 s{sT0}, s{sCL}, 5',
                 f'buffer_load_dword v98, v98, {srd(S_WS)}, s{sT0} offen offset:{WS_HELLO} sc1']
        tail[13] += hello + self.dma_w1(2) + [f'v_mov_b32 v100, s{sONES}', f'v_mov_b32 v101, s{sONES}']
        tail[14] += [f's_add_u32 s{sA0}, s{sXB}, 4096', f's_add_u32 s{sA1}, s{sXB}, 8192'] + self.tagged_loads([208, 212], [sA0, sA1], None)
        tail[14] += [f'buffer_load_dwordx4 {vr(216+4*pp,4)}, v{vXO}, {srd(S_X)}, s{sXO} offen offset:{64*pp}' for pp in range(2)]
        tail[15] += [f's_lshl_b32 s{sT0}, s{sJ}, 11', f's_lshl_b32 s{sT1}, s{sW}, 9', f's_add_u32 s{sT0}, s{sT0}, s{sT1}',
                     f's_add_u32 s{sT2}, s{sT0}, s{sCB}', f's_add_u32 s{sT3}, s{sT2}, 32768']
        for s in range(16):
            f = head[s] + ([rd(T, s+1) for T in range(5)] if s < 15 else []) + tail[s]
            if s == 0:
                p.add(spread(steps[s], f, 0, 14))
            else:
                p.add([WLG(f'fr{s}')])
                p.add(spread(steps[s], f, 0, 14))

    def attention(self, sc):
        p = self.p
        QB, KB, VB = 104, 112, 122
        MK = self.MK
        vpos = {4: 0, 2: 2, 0: 4, 1: 6, 3: 8}
        SP, SC = 40, 56
        prevT = [0, 0, 1, 2]; biasP = [MK+8, MK+12, MK+4, MK+4]
        def cv(d, a): return [f'v_cvt_pk_bf16_f32 v{d}, v{a}, v{a+1}', f'v_cvt_pk_bf16_f32 v{d+1}, v{a+2}, v{a+3}']
        o = []
        o += cv(KB, self.ACCK[0])
        for t in range(4):
            o += cv(KB+2*(t+1), self.ACCK[t+1]) + cv(QB+2*t, self.ACCQ[t])
        vc = []
        for T in range(5): vc += cv(VB+vpos[T], self.ACCV[T])
        ms = []
        for t in range(4):
            ms.append(f'v_mfma_f32_16x16x16_bf16 {vr(SP+4*t,4)}, {vr(KB+2*prevT[t],2)}, {vr(QB+2*t,2)}, {vr(biasP[t],4)}')
            ms.append(f'v_mfma_f32_16x16x16_bf16 {vr(SC+4*t,4)}, {vr(KB+2*(t+1),2)}, {vr(QB+2*t,2)}, {vr(MK,4)}')
        o += interleave(ms, vc, every=1, per=2)
        M = 72
        for t in range(4):
            o += [f'v_max_f32 v{SP+4*t+r}, v{SP+4*t+r}, v{SC+4*t+r}' for r in range(4)]
            o += [f'v_max3_f32 v{M+t}, v{SP+4*t}, v{SP+4*t+1}, v{SP+4*t+2}', f'v_max_f32 v{M+t}, v{M+t}, v{SP+4*t+3}']
            if t == 1: hold = [f'v_permlane32_swap_b32 v{M}, v{M+1}', f'v_max_f32 v{M}, v{M}, v{M+1}']
            if t == 2: o += hold
        o += [f'v_permlane32_swap_b32 v{M+2}, v{M+3}', f'v_max_f32 v{M+2}, v{M+2}, v{M+3}',
              f'v_permlane16_swap_b32 v{M}, v{M+2}', f'v_max_f32 v{M}, v{M}, v{M+2}',
              f'v_mul_f32 v{M+4}, 0xbeb8aa3b, v{M}', f'v_mul_f32 v{M}, 0xbeb8aa3b, v{M}',
              f'v_permlane16_swap_b32 v{M}, v{M+4}', f'v_mov_b32 v{M+2}, v{M}', f'v_mov_b32 v{M+6}, v{M+4}',
              f'v_permlane32_swap_b32 v{M}, v{M+2}', f'v_permlane32_swap_b32 v{M+4}, v{M+6}']
        PB = 0
        OA = [VB+4, VB+2, VB+6, VB+0]
        for t in range(4):
            o += [f'v_pk_fma_f32 {vr(SP+4*t+2*hh,2)}, {vr(SP+4*t+2*hh,2)}, s[{sK}:{sK+1}], {vr(M+2*t,2)} op_sel_hi:[1,1,0]' for hh in range(2)]
        for t in range(4):
            o += [f'v_exp_f32 v{SP+4*t+r}, v{SP+4*t+r}' for r in range(4)]
            if t > 0:
                u = t-1
                o += [f'v_mfma_f32_16x16x16_bf16 {vr(SC+4*u,4)}, v[100:101], {vr(16+2*u,2)}, 0',
                      f'{MFMA} {vr(SP+4*u,4)}, {vr(OA[u],4)}, {vr(PB+4*u,4)}, 0']
            o += cv(16+2*t, SP+4*t)
            pp, pc = (PB+4*t, PB+4*t+2) if (t & 1) == 0 else (PB+4*t+2, PB+4*t)
            for hh in range(2):
                o += [f'v_bfi_b32 v{pp+hh}, v{MK+16+hh}, 0, v{16+2*t+hh}', f'v_and_b32 v{pc+hh}, v{MK+16+hh}, v{16+2*t+hh}']
        o += [f'v_rcp_f32 v{SC}, v{SC}', f'v_rcp_f32 v{SC+4}, v{SC+4}',
              f'v_mfma_f32_16x16x16_bf16 {vr(SC+12,4)}, v[100:101], {vr(22,2)}, 0',
              f'{MFMA} {vr(SP+12,4)}, {vr(OA[3],4)}, {vr(PB+12,4)}, 0']
        for t in range(4):
            if t == 2: o += [f'v_rcp_f32 v{SC+8}, v{SC+8}', f'v_rcp_f32 v{SC+12}, v{SC+12}']
            o += [f'v_mul_f32 v{SP+4*t+r}, v{SP+4*t+r}, v{SC+4*t}' for r in range(4)] if t < 2 else \
                 [f'v_pk_mul_f32 {vr(SP+4*t+2*hh,2)}, {vr(SP+4*t+2*hh,2)}, {vr(SC+4*t,2)} op_sel_hi:[1,0]' for hh in range(2)]
            o += cv(24+2*t, SP+4*t)
            if t & 1:
                b = 24+2*(t-1)
                o += [f'v_permlane16_swap_b32 v{b}, v{b+2}', f'v_permlane16_swap_b32 v{b+1}, v{b+3}',
                      f'buffer_store_dwordx4 {vr(b,4)}, v{vSTO}, {srd(S_WS)}, s{sT2 if t==1 else sT3} offen{sc}']
        return o

    def publish(self, ph, sc, between=()):
        p = self.p
        p(f's_lshl_b32 s{sT0}, s{sJ}, 2')
        p(f's_add_u32 s{sT0}, s{sT0}, s{sCB}')
        p(f's_add_u32 s{sT0}, s{sT0}, {C_FL}')
        p.add(between)
        p(f's_cmp_lg_u32 s{sW}, 0')
        p.add([WVMA()])
        p.add(self.bar())
        L = p.label('L_PUB')
        p(f's_cbranch_scc1 {L}')
        p.cond_begin()
        p('s_mov_b64 exec, 1')
        p(f'buffer_store_dword v{vTAG}, v{vL16}, {srd(S_WS)}, s{sT0} offen offset:{ph*128}{sc}')
        p('s_mov_b64 exec, -1')
        p.cond_end()
        p(f'{L}:')

    def wait_flags(self, ph, tmp):
        p = self.p
        L = p.label('L_WF'); D = p.label('L_WD'); D2 = p.label('L_WE')
        p(f's_cmp_lg_u32 s{sW}, 0')
        p(f's_cbranch_scc1 {D2}')
        p.cond_begin()
        p(f's_add_u32 s{sT0}, s{sCB}, {C_FL}')
        p(f'v_lshlrev_b32 v{tmp+1}, 2, v{vLANE}')
        p(f's_mov_b32 s{sSPIN}, 20000')
        p('s_mov_b64 exec, 0xff')
        p(f'{L}:')
        p(f'buffer_load_dword v{tmp}, v{tmp+1}, {srd(S_WS)}, s{sT0} offen offset:{ph*128} sc1')
        p('s_waitcnt vmcnt(0)')
        p(f'v_cmp_ne_u32 vcc, s{sTAG}, v{tmp}')
        p(f's_cbranch_vccz {D}')
        p(f's_sub_u32 s{sSPIN}, s{sSPIN}, 1')
        p(f's_cbranch_scc0 {L}')
        p(f'{D}:')
        p('s_mov_b64 exec, -1')
        p.cond_end()
        p(f'{D2}:')
        p.add([WVMA()])
        p.add(self.bar())

    def ks_setup(self, region, tile_stride, wave_stride, areg):
        o = [f's_mul_i32 s{sT0}, s{sW}, {wave_stride}', f's_add_u32 s{sT0}, s{sT0}, s{sCB}', f's_add_u32 s{sT0}, s{sT0}, {region}']
        for n in range(4):
            o += [f's_add_u32 s{sT1}, s{sW}, {n+1}', f's_and_b32 s{sT1}, s{sT1}, 3', f's_mul_i32 s{sN+n}, s{sT1}, {tile_stride}',
                  f's_add_u32 s{sN+n}, s{sN+n}, s{sT0}', f's_mul_i32 s{sT1}, s{sT1}, {3*4096}',
                  f'v_add_u32 v{areg+n}, s{sT1}, v{vL16}']
        return o

    def ksplit(self, nsteps, wreg, breg, acc, part, areg, lead, latfill, extra_vm=(), last_oob=False, base=None):
        p = self.p
        loads = []
        for n in range(4):
            for i in range(nsteps):
                l = []
                if i and i % 4 == 0: l.append(f's_add_u32 s{sN+n}, s{sN+n}, 4096')
                if last_oob and i == nsteps-1: l.append(f's_add_u32 s{sN+n}, s{sN+n}, s{sA0}')
                l.append(f'buffer_load_dwordx4 {rr(breg(n*nsteps+i),4)}, v{vL16}, {srd(S_WS)}, s{sN+n} offen offset:{(i%4)*1024} sc1')
                loads.append(l)
        loads += list(extra_vm)
        p.add(spread(loads[:lead], latfill))
        li = lead
        wr = lambda n: [f'ds_write_b128 v{areg+n}, {vr(acc+16*n+4*ct,4)} offset:{4096*n+1024*ct}' for ct in range(4)]
        rdp = lambda n, dst: [f'ds_read_b128 {vr(dst+4*ct,4)}, v{areg+3} offset:{4096*n+1024*ct}' for ct in range(4)]
        for n in range(4):
            ms = []
            for i in range(nsteps):
                g = []
                for ct in range(4):
                    a = acc+16*n+4*ct
                    c0 = vr(a, 4) if (i or n == 3) else '0'
                    g.append(f'{MFMA} {vr(a,4)}, {wreg(i,ct)}, {rr(breg(n*nsteps+i),4)}, {c0}')
                if li < len(loads):
                    g.insert(1, loads[li]); li += 1
                ms += g
            f = []
            if n >= 1: f += wr(n-1)
            if n == 2: f = f + [self.bar(), rdp(0, acc+48), rdp(1, part)]
            if n == 3:
                f = f + [self.bar(), rdp(2, part+16)]
                f2 = [f'v_add_f32 v{part+k}, v{part+k}, v{part+16+k}' for k in range(16)] + (base or [])
            if n == 3 and nsteps > 4:
                h = len(ms)//2
                ms = spread(ms[:h], f, 4, h) + spread(ms[h:], f2, 8, len(ms)-h)
                p.add(ms)
            elif n == 3:
                p.add(spread(ms, f, 4, len(ms)))
                p.add([f'v_pk_add_f32 {vr(part+2*k,2)}, {vr(part+2*k,2)}, {vr(part+16+2*k,2)}' for k in range(8)])
            else:
                p.add(spread(ms, f, 4, max(len(ms)-8, 12)))
        for l in loads[li:]: p.add(l)

    def unpack8(self, dst, src):
        o = []
        for k in range(8):
            o += [f'v_lshlrev_b32 v{dst+2*k}, 16, v{src+k}', f'v_and_b32 v{dst+2*k+1}, 0xffff0000, v{src+k}']
        return o

    def build(self):
        p = self.p
        self.entry()
        p.add(self.stamp('karg'))
        p('s_cmp_ge_u32 s2, 96')
        p('s_cbranch_scc1 L_A')
        p(f'buffer_load_dword v206, v1, {srd(S_C)}, s{sT1} offen')
        for i in range(8):
            p(f'buffer_load_dwordx4 {vr(160+4*i,4)}, v3, {srd(S_WM)}, s{sT0} offen')
            if i < 7: p(f's_add_u32 s{sT0}, s{sT0}, 6144')
        p('L_A:')
        p.add(self.xload(0))
        p.save('prod')
        p('s_cmp_lt_u32 s2, 96')
        p('s_cbranch_scc1 L_B')
        p.add(self.xload(1) + self.xload(2))
        p('L_B:')
        self.touches()
        p.add(self.precompute())
        self.tag()
        p.add(self.stamp('pre'))
        p.save('np')
        p('s_cmp_ge_u32 s2, 96')
        p('s_cbranch_scc1 L_C')
        p.restore('prod')
        p.add(self.p0_pre())
        self.p0_compute()
        p.add(self.xload(1) + self.xload(2))
        p('L_C:')
        p.restore('np')
        p.add(self.stamp('p0done'))
        ln = self.ln()
        vm = self.xload(3) + self.xload(4)
        p.add(vm[:4])
        fill = vm[4:]
        for k in range(12):
            d = self.dma_wq(k)
            fill += [[d[0], d[1]], d[2], d[3:]]
        n = len(ln)
        body = spread(ln, fill, 10, int(n*0.92))
        nb = len(body)
        ip = int(nb*self.o['pollpos']); ib = int(nb*self.o['ba'])
        body = body[:ip] + self.tagged_loads([vPOLL], [sXB], None) + body[ip:ib] + [WVM('wq2'), 's_barrier'] + \
            spread(body[ib:], self.absorb_wq(0)+self.absorb_wq(1)+self.absorb_wq(2))
        p.add(body)
        p.add(self.stamp('lndone'))
        self.tagged_check([vPOLL], [sXB])
        p.add(self.stamp('moda'))
        p(f'v_and_b32 v{vPOLL+3}, 0xffff0000, v{vPOLL+1}')
        p(f'v_lshlrev_b32 v{vPOLL+2}, 16, v{vPOLL+1}')
        p(f'v_and_b32 v{vPOLL+1}, 0xffff0000, v{vPOLL}')
        p(f'v_lshlrev_b32 v{vPOLL}, 16, v{vPOLL}')
        p(f'ds_write_b128 v{vMW}, {vr(vPOLL,4)}')
        p.add([WVM('wq5')])
        p.add(self.bar())
        p.add(self.mod_read(0) + self.mod_read(1) + self.absorb_wq(3) + self.absorb_wq(4) + self.absorb_wq(5))
        p.add(self.modulate(0, True))
        p.add(self.bar())
        p.add(self.stamp('hready'))
        p.add(self.flush())
        self.p1_gemm()
        p.add(self.stamp('p1gemm'))
        p(f'v_cmp_ne_u32 vcc, s{sXCC}, v98')
        p.add(self.bar())
        st = (self.nst, self.flushed)
        if self.o['fast']:
            p('s_cbranch_vccnz L_SLOW')
            p.save('split')
            self.tail('')
            p('L_FASTEND:')
            p('L_SLOW:')
            p.restore('split')
            self.nst, self.flushed = st
            self.tail(' sc1')
        else:
            self.tail(' sc1')
            p('L_FASTEND:')
        p('L_END:')
        p('s_endpgm')
        return p.finalize()

    def tail(self, sc):
        p = self.p
        nC = self.o['nC']
        att = self.attention(sc)
        d = []
        for k in range(3, 7):
            x = self.dma_w1(k); d += [x[0:2], x[2:4], x[4:]]
        p.add(spread(att, d, 0, 130))
        p.add(self.stamp('attn'))
        ab = []
        for i in range(4): ab += [WVM(f'wo{i}')] + self.absorb_priv(4096*i, ('a', 192+16*i), f'awo{i}')
        self.publish(0, sc, ab)
        p.add(self.stamp('pub1'))
        d = []
        for k in range(7, 7+nC):
            x = self.dma_w1(k); d += [x[0:2], x[2:4], x[4:]]
        work = self.absorb_w1(range(0, 7), 128) + self.ks_setup(C_O, 16384, 4096, 160)
        work += [f's_lshl_b32 s{sT2}, s{sW}, 9', f's_add_u32 s{sT2}, s{sT2}, {L_MISC}', f'v_lshlrev_b32 v131, 3, v{vLANE}',
                 f'v_add_u32 v131, s{sT2}, v131',
                 f's_lshl_b32 s{sT0}, s{sJ}, 7', f's_add_u32 s{sT0}, s{sT0}, {L_MISC}', f'v_lshlrev_b32 v132, 4, v{vG}',
                 f'v_add_u32 v132, s{sT0}, v132'] + self.unpack8(144, 216)
        self.tagged_check([208, 212], [sA0, sA1])
        p.add(spread(work, d, 0, len(work)) if d else work)
        p('ds_write_b64 v131, v[208:209]')
        p('ds_write_b64 v131, v[212:213] offset:2048')
        self.wait_flags(0, 128)
        p.add(self.stamp('flag1'))
        GA, CB, GBP = 164, 180, 196
        lat = [f'ds_read_b128 {vr(208+8*k+4*pp,4)}, v132 offset:{off+64*pp}' for k, off in enumerate((0, 2048)) for pp in range(2)]
        lat += [f'ds_read_b128 {vr(GBP+4*pp,4)}, v132 offset:{3072+64*pp}' for pp in range(2)]
        lat += self.absorb_w1(range(7, 7+nC), 128) + self.unpack8(GA, 208) + self.unpack8(CB, 216)
        lat += [f's_lshl_b32 s{sT0}, s{sW}, 14', f's_lshl_b32 s{sT1}, s{sJ}, 11', f's_add_u32 s{sT0}, s{sT0}, s{sT1}',
                f's_add_u32 s{sT0}, s{sT0}, s{sCB}', f's_add_u32 s{sT2}, s{sT0}, {C_X1}',
                f's_lshl_b32 s{sT0}, s{sW}, 10', f's_lshr_b32 s{sT1}, s{sJ}, 1', f's_lshl_b32 s{sT1}, s{sT1}, 8', f's_add_u32 s{sT0}, s{sT0}, s{sT1}',
                f's_and_b32 s{sT1}, s{sJ}, 1', f's_lshl_b32 s{sT1}, s{sT1}, 3', f's_add_u32 s{sT0}, s{sT0}, s{sT1}',
                f's_add_u32 s{sT0}, s{sT0}, s{sCB}', f's_add_u32 s{sT3}, s{sT0}, {C_ST}',
                f'v_lshrrev_b32 v204, 1, v{vG}', f'v_lshlrev_b32 v204, 2, v204', f'v_lshl_add_u32 v204, v{vC}, 4, v204',
                'v_mov_b32 v206, 0', 'v_mov_b32 v207, 0']
        ex = []
        for k in range(7+nC, min(10+nC, 16)):
            x = self.dma_w1(k); ex += [x[0:2], x[2:4], x[4:]]
        self.ksplit(4, lambda i, ct: ar(192+16*i+4*ct, 4), lambda k: ('v', 4*k), 64, 0, 160, 8, lat, ex)
        p.add(self.stamp('p2gemm'))
        Y = 112; X1 = 216
        for k in range(8): p(f'v_pk_add_f32 {vr(Y+2*k,2)}, {vr(Y+2*k,2)}, {vr(2*k,2)}')
        for k in range(8): p(f'v_pk_fma_f32 {vr(Y+2*k,2)}, {vr(Y+2*k,2)}, {vr(GA+2*k,2)}, {vr(144+2*k,2)}')
        for k in range(8): p(f'v_cvt_pk_bf16_f32 v{X1+k}, v{Y+2*k}, v{Y+2*k+1}')
        for k in range(8): p(f'v_pk_mul_f32 {vr(Y+2*k,2)}, {vr(Y+2*k,2)}, {vr(CB+2*k,2)}')
        for pp in range(2):
            for k in range(4*pp, 4*pp+4): p(f'v_cvt_pk_bf16_f32 v{32+k}, v{Y+2*k}, v{Y+2*k+1}')
            p(f'buffer_store_dwordx4 {vr(32+4*pp,4)}, v{vL16}, {srd(S_WS)}, s{sT2} offen offset:{1024*pp}{sc}')
        for k in range(8):
            p(f'v_dot2c_f32_bf16 v206, s{sONES}, v{X1+k}')
            p(f'v_dot2c_f32_bf16 v207, v{X1+k}, v{X1+k}')
        p('v_permlane32_swap_b32 v206, v207')
        p('v_add_f32 v206, v206, v207')
        p('v_mov_b32 v207, v206')
        p('v_permlane16_swap_b32 v206, v207')
        p('v_add_f32 v206, v206, v207')
        p(f'buffer_store_dword v206, v204, {srd(S_WS)}, s{sT3} offen{sc}')
        U, V = 128, 140
        nready = 7+nC
        uvr = [f'v_and_b32 v204, 8, v{vC}', f'v_lshlrev_b32 v204, 7, v204', f'v_sub_u32 v204, {L_MISC+2048}, v204',
               f'v_lshl_add_u32 v204, v{vG}, 4, v204'] + [f'ds_read_b128 {vr(48+4*s,4)}, v204 offset:{64*s}' for s in range(16)]
        uvm = lambda ss: [f'{MFMA} {vr(U+4*m,4)}, {ar(s*12+4*m,4)}, {vr(48+4*s,4)}, {"0" if s==0 else vr(U+4*m,4)}' for s in ss for m in range(3)]
        setup2 = [f's_lshl_b32 s{sMW}, s{sW}, 12', f's_add_u32 s{sMW}, s{sMW}, {L_W2}',
                  f's_mul_i32 s{sD0}, s{sW}, {11*32768}', f's_lshl_b32 s{sT1}, s{sJ}, 7', f's_add_u32 s{sD0}, s{sD0}, s{sT1}',
                  f'v_add_u32 v{vPB}, s{sMW}, v{vTP}', f'v_xor_b32 v{vPB+1}, 64, v{vPB}']
        self.publish(1, sc, uvr + setup2 + uvm(range(0, 6)))
        p.add(self.stamp('pub2'))
        w2reg = lambda i: ('a', 192+16*i) if i < 4 else ('a', 16*(i-4))
        dw2 = lambda i: self.dma_priv(S_W2, sD0, 16384*(i % 4), f'w2{i}')
        aw2 = lambda i: [WVM(f'w2{i}')] + self.absorb_priv(16384*(i % 4), w2reg(i), f'aw2{i}')
        d = []
        late = list(range(10+nC, 16))
        for k in late:
            x = self.dma_w1(k); d += [x[0:2], x[2:4], x[4:]]
        for i in range(3):
            x = dw2(i); d += [x[0:2], x[2], x[3], x[4:]]
        mid = list(range(nready, min(10+nC, 16)))
        work = self.absorb_w1(mid, 0) + uvm(range(6, min(10+nC, 16)))
        p.add(spread(work, d, 0, len(work)))
        if late:
            p.add([WVM(f'w1{late[-1]}'), 's_barrier'])
            p.add(self.absorb_w1(late, 0) + uvm(late))
        p(f's_lshl_b32 s{sT2}, s{sW}, 14')
        p(f's_add_u32 s{sT3}, s{sT2}, s{sCB}')
        p(f's_add_u32 s{sT3}, s{sT3}, {C_X1}')
        p(f's_add_u32 s{sA0}, s{sCB}, {C_ST}')
        for k in range(12): p(f'v_mov_b32 v{V+k}, v{U+k}')
        for k in range(12): p(f'v_mov_b32_dpp v{V+k}, v{U+k} row_ror:8 row_mask:0xf bank_mask:0x3')
        for k in range(12): p(f'v_mov_b32_dpp v{U+k}, v{U+k} row_ror:8 row_mask:0xf bank_mask:0xc')
        self.wait_flags(1, 0)
        p.add(self.stamp('flag2'))
        p.add(self.flush())
        STT = 152; TT = 80; FR = 48
        xl = []
        for s in range(16):
            l = []
            if s % 4 == 0:
                if s: l.append(f's_add_u32 s{sT3}, s{sT3}, 4096')
                l.append(f's_add_u32 m0, s{sT2}, {1024*s}')
            l.append((f'buffer_load_dwordx4 v{vL16}, {srd(S_WS)}, s{sT3} offen offset:{1024*(s%4)} sc1 lds', f'x1{s}'))
            xl.append(l)
        stl = [f'buffer_load_dwordx4 {vr(STT+4*t,4)}, v{vL16}, {srd(S_WS)}, s{sA0} offen offset:{1024*t} sc1' for t in range(4)]
        hs = [[f's_cmp_ge_u32 s{sJ}, 3', f's_cselect_b32 s{sT1}, 3, 99'], f's_mul_i32 s{sT0}, s{sW}, {3*512}',
              f's_lshl_b32 s{sN}, s{sU0}, 10', f's_add_u32 s{sT0}, s{sT0}, s{sN}', f's_add_u32 s{sT0}, s{sT0}, s{sCB}',
              f's_add_u32 s{sN}, s{sT0}, {C_H}', [f's_cmp_eq_u32 s{sW}, s{sT1}', f's_cselect_b32 s{sN+1}, {OOB}, s{sN}'],
              f's_add_u32 s{sN+2}, s{sN}, {2*H_TILE}', f's_add_u32 s{sN+3}, s{sN+1}, {2*H_TILE}']
        p.add(spread(xl[:8], aw2(0)+aw2(1)+aw2(2)+hs))
        def rd(t, s): return (f'ds_read_b128 {vr(FR+16*(s&1)+4*t,4)}, v{vL16} offset:{t*16384+s*1024}', f'f3{s}')
        st = []
        for t in range(4):
            st += [f'v_add_f32 v{STT+4*t}, v{STT+4*t}, v{STT+4*t+2}', f'v_add_f32 v{STT+4*t+1}, v{STT+4*t+1}, v{STT+4*t+3}']
        a, b = STT, STT+1
        st += [f'v_permlane32_swap_b32 v{a}, v{a+4}', f'v_permlane32_swap_b32 v{b}, v{b+4}',
               f'v_permlane32_swap_b32 v{a+8}, v{a+12}', f'v_permlane32_swap_b32 v{b+8}, v{b+12}',
               f'v_add_f32 v{a}, v{a}, v{a+4}', f'v_add_f32 v{b}, v{b}, v{b+4}',
               f'v_add_f32 v{a+8}, v{a+8}, v{a+12}', f'v_add_f32 v{b+8}, v{b+8}, v{b+12}',
               f'v_permlane16_swap_b32 v{a}, v{a+8}', f'v_permlane16_swap_b32 v{b}, v{b+8}',
               f'v_add_f32 v{a}, v{a}, v{a+8}', f'v_add_f32 v{b}, v{b}, v{b+8}',
               f'v_mul_f32 v{a}, 0x3b000000, v{a}', f'v_mul_f32 v{b}, 0x3b000000, v{b}',
               f'v_fma_f32 v{b}, -v{a}, v{a}, v{b}', f'v_max_f32 v{b}, 0, v{b}', f'v_add_f32 v{b}, 0x3727c5ac, v{b}',
               f'v_rsq_f32 v{b}, v{b}', f'v_mul_f32_e64 v{a}, -v{a}, v{b}',
               f'v_mov_b32 v{b+8}, v{b}', f'v_mov_b32 v{a+8}, v{a}',
               f'v_permlane16_swap_b32 v{b}, v{b+8}', f'v_permlane16_swap_b32 v{a}, v{a+8}',
               f'v_mov_b32 v{b+4}, v{b}', f'v_mov_b32 v{b+12}, v{b+8}', f'v_mov_b32 v{a+4}, v{a}', f'v_mov_b32 v{a+12}, v{a+8}',
               f'v_permlane32_swap_b32 v{b}, v{b+4}', f'v_permlane32_swap_b32 v{b+8}, v{b+12}',
               f'v_permlane32_swap_b32 v{a}, v{a+4}', f'v_permlane32_swap_b32 v{a+8}, v{a+12}']
        for t in range(4):
            for k in range(12): st.append(f'v_fma_f32 v{TT+12*t+k}, v{STT+4*t}, v{U+k}, v{V+k}')
        p.add([WVM('x11'), 's_barrier'])
        p.add([rd(t, 0) for t in range(4)])
        head = [[] for _ in range(16)]; tl = [[] for _ in range(16)]
        tl[0] += xl[8:11]; tl[1] += xl[11:14]; tl[2] += xl[14:16] + stl[:1]; tl[3] += stl[1:]
        head[1] += [[WVM('x15'), 's_barrier']]
        head[5] += [[WVM('x115'), 's_barrier']]
        dstep = {3: 4, 4: 5, 5: 6, 6: 8, 7: 9, 8: 10, 9: 12, 10: 13}
        astep = {3: 8, 4: 9, 5: 10, 6: 12, 7: 13, 8: 14}
        for i, s in astep.items(): tl[s] += aw2(i)
        for i, s in dstep.items():
            if i >= 4: tl[s] += [WLG(f'aw2{i-4}')]
            tl[s] += dw2(i)
        ns = len(st)
        sts = [6, 7, 7, 11, 11, 14, 15, 15]
        for k, s in enumerate(sts): tl[s] += st[k*ns//len(sts):(k+1)*ns//len(sts)]
        for s in range(16):
            ms = [f'{MFMA} {vr(12*t+4*m,4)}, {ar(s*12+4*m,4)}, {vr(FR+16*(s&1)+4*t,4)}, {"0" if s==0 else vr(12*t+4*m,4)}'
                  for t in range(4) for m in range(3)]
            f = head[s] + ([rd(t, s+1) for t in range(4)] if s < 15 else []) + tl[s]
            if s: p.add([WLG(f'f3{s}')])
            p.add(spread(ms, f, 0, 12))
        p.add(self.stamp('p3gemm'))
        for pr in range(2):
            for m in range(3):
                b = FR+12*pr+4*m
                for tt in range(2):
                    t = 2*pr+tt; a = 12*t+4*m
                    for hh in range(2):
                        p(f'v_pk_fma_f32 {vr(a+2*hh,2)}, {vr(a+2*hh,2)}, {vr(STT+4*t,2)}, {vr(TT+a+2*hh,2)} op_sel:[0,1,0] op_sel_hi:[1,1,1]')
                    for hh in range(2):
                        p(f'v_cvt_pk_bf16_f32 v{b+2*tt+hh}, v{a+2*hh}, v{a+2*hh+1}')
                for k in (0, 2, 1, 3): p(f'v_pk_max_i16 v{b+k}, v{b+k}, 0')
                p(f'v_permlane16_swap_b32 v{b}, v{b+2}')
                p(f'v_permlane16_swap_b32 v{b+1}, v{b+3}')
                p(f'buffer_store_dwordx4 {vr(b,4)}, v{vSTH}, {srd(S_WS)}, s{sN+2*pr+(1 if m else 0)} offen offset:{512*m}{sc}')
        self.publish(2, sc, aw2(9) + aw2(10))
        p.add(self.stamp('pub3'))
        LE, LL, LD = p.label('L_EP'), p.label('L_EPL'), p.label('L_EPD')
        p(f's_lshl_b32 s{sT0}, s2, 2')
        p(f's_add_u32 s{sT0}, s{sT0}, s{sW}')
        p(f's_cmp_lg_u32 s{sT0}, 1')
        p(f's_cbranch_scc1 {LE}')
        p.cond_begin()
        p(f's_mov_b32 s{sSPIN}, 20000')
        p(f'{LL}:')
        p(f'buffer_load_dwordx4 v[0:3], v{vL16}, {srd(S_WS)}, 0 offen offset:{WS_HELLO} sc1')
        p('s_waitcnt vmcnt(0)')
        for k in range(4): p(f'v_subrev_u32 v{k}, s{sTAG}, v{k}')
        p('v_or3_b32 v0, v0, v1, v2')
        p('v_or_b32 v0, v0, v3')
        p('v_cmp_lt_u32 vcc, 15, v0')
        p(f's_cbranch_vccz {LD}')
        p(f's_sub_u32 s{sSPIN}, s{sSPIN}, 1')
        p(f's_cbranch_scc0 {LL}')
        p(f'{LD}:')
        p('s_mov_b64 exec, 1')
        p(f'buffer_store_dword v{vTAG}, v{vL16}, {srd(S_WS)}, 0 offen sc1')
        p('s_mov_b64 exec, -1')
        p.cond_end()
        p(f'{LE}:')
        p.add(self.ks_setup(C_H, H_TILE, 11*1024, 160))
        p(f's_cmp_eq_u32 s{sW}, 3')
        p(f's_cselect_b32 s{sA0}, {OOB}, 0')
        p.add(self.unpack8(GA, GBP) + self.unpack8(CB, X1))
        self.wait_flags(2, 0)
        p.add(self.stamp('flag3'))
        w2op = lambda i, ct: rr(w2reg(i), 4, 4*ct)
        base = [f'v_fma_f32 v{CB+k}, v{64+k}, v{GA+k}, v{CB+k}' for k in range(16)]
        self.ksplit(11, w2op, lambda k: ('a', 112+4*(k % 20)), 0, 64, 160, 9, [], last_oob=True, base=base)
        p.add(self.stamp('p4gemm'))
        Y = 48
        for pp in range(2):
            for k in range(4*pp, 4*pp+4): p(f'v_pk_fma_f32 {vr(Y+2*k,2)}, {vr(Y+2*k,2)}, {vr(GA+2*k,2)}, {vr(CB+2*k,2)}')
            for k in range(4*pp, 4*pp+4): p(f'v_cvt_pk_bf16_f32 v{96+k}, v{Y+2*k}, v{Y+2*k+1}')
            p(f'buffer_store_dwordx4 {vr(96+4*pp,4)}, v{vXO}, {srd(S_OUT)}, s{sXO} offen offset:{64*pp}')
        self.finish()

    def finish(self):
        p = self.p
        if self.diag:
            p.add([WVMA()])
            p.add(self.stamp('end'))
            if self.hdiag:
                p.add(self.stamp('rt1'))
                p.add(self.flush())
                assert self.nst <= 17
                p('s_load_dwordx2 s[80:81], s[0:1], 72')
                p('s_mov_b32 s82, 256')
                p('s_mov_b32 s83, 0x00020000')
                p(f'v_readlane_b32 s{sT0}, v{vDIAG}, 1')
                p(f'v_readlane_b32 s{sT1}, v{vDIAG}, 0')
                p(f'v_readlane_b32 s{sT2}, v{vDIAG}, {self.nst-1}')
                p(f'v_subrev_u32 v{vDIAG}, s{sT0}, v{vDIAG}')
                p(f's_not_b32 s{sT1}, s{sT1}')
                p(f'v_writelane_b32 v{vDIAG}, s{sT1}, 0')
                p(f'v_writelane_b32 v{vDIAG}, s{sT2}, 1')
                p(f'v_lshlrev_b32 v1, 2, v{vLANE}')
                p(f's_mov_b64 exec, {(1 << (self.nst-1)) - 1}')
                p(f'buffer_atomic_umax v{vDIAG}, v1, s[80:83], 0 offen sc1')
            else:
                p.add(self.flush())
                p(f's_lshl_b32 s{sT0}, s2, 2')
                p(f's_add_u32 s{sT0}, s{sT0}, s{sW}')
                p(f's_lshl_b32 s{sT0}, s{sT0}, 8')
                p(f's_add_u32 s{sT0}, s{sT0}, {WS_DIAG}')
                p(f'v_lshlrev_b32 v1, 2, v{vLANE}')
                p(f'buffer_store_dword v{vDIAG}, v1, {srd(S_WS)}, s{sT0} offen')
        p('s_endpgm')


HEADER = open(os.path.join(os.path.dirname(os.path.abspath(__file__)), '..', 'cdna_kernels',
              'adaLN_cond__sliding_local_dilated__dense_activation_relu__prompt.s.ref')).read()

def emit(diag=False, hdiag=None, **opt):
    g = Gen(diag or bool(hdiag), hdiag, **opt)
    ins = g.build()
    head = HEADER.split(KNAME + ':')[0].replace('grid=(4096,1,1) block=(256,1,1) lds=0', 'grid=(256,1,1) block=(256,1,1) lds=163840')
    tail = HEADER.split('s_endpgm\n')[1].replace('next_free_vgpr 256', 'next_free_vgpr 512')
    body = '\n'.join(('' if i.is_label else '    ') + i.text for i in ins)
    txt = head + KNAME + ':\n' + body + '\n' + tail
    txt += '\n; LAYOUT2\n'
    if g.diag: txt += '\n; STAMPS ' + ' '.join(g.stamp_names) + '\n'
    return txt

if __name__ == '__main__':
    import argparse
    ap = argparse.ArgumentParser()
    ap.add_argument('out'); ap.add_argument('--diag', action='store_true'); ap.add_argument('--hdiag')
    ap.add_argument('-o', action='append', default=[])
    a = ap.parse_args()
    opt = {}
    for kv in a.o:
        k, v = kv.split('='); opt[k] = float(v) if '.' in v else int(v)
    open(a.out, 'w').write(emit(a.diag, a.hdiag.split(',') if a.hdiag else None, **opt))
```

```python
import re

REG_RE = re.compile(r'(?<![\w.])([vas])(\d+)(?![\w])|(?<![\w.])([vas])\[(\d+):(\d+)\]')
TRANS = ('v_exp_f32', 'v_log_f32', 'v_rcp_f32', 'v_rsq_f32', 'v_sqrt_f32', 'v_sin_f32', 'v_cos_f32')

def regs_of(tok):
    out = set()
    for m in REG_RE.finditer(tok):
        if m.group(1):
            out.add((m.group(1), int(m.group(2))))
        else:
            for i in range(int(m.group(4)), int(m.group(5)) + 1):
                out.add((m.group(3), i))
    t = tok.strip().lstrip('-')
    if t in ('vcc', 'vcc_lo', 'vcc_hi'): out.add(('x', 'vcc'))
    if t in ('exec', 'exec_lo', 'exec_hi'): out.add(('x', 'exec'))
    if t == 'm0': out.add(('x', 'm0'))
    return out

def split_ops(s):
    ops, depth, cur = [], 0, ''
    for ch in s:
        if ch in '[(': depth += 1
        if ch in '])': depth -= 1
        if ch == ',' and depth == 0:
            ops.append(cur.strip()); cur = ''
        else:
            cur += ch
    if cur.strip(): ops.append(cur.strip())
    return ops

class Ins:
    __slots__ = ('text', 'op', 'kind', 'dst', 'src', 'srcC', 'srcAB', 'tag', 'maybe', 'wide', 'dpp', 'data', 'is_label', 'cond', 'nowait', 'mem')
    def __init__(self, text, tag=None, mem=None):
        self.mem = mem
        self.text = text; self.tag = tag; self.maybe = False; self.is_label = False
        self.cond = None; self.nowait = False
        self.dst = set(); self.src = set(); self.srcC = set(); self.srcAB = set(); self.data = set()
        self.wide = False; self.dpp = False
        t = text.split(';')[0].strip()
        if t.endswith(':'):
            self.is_label = True; self.kind = 'label'; self.op = t; return
        if t.startswith('.') or not t:
            self.kind = 'dir'; self.op = t; return
        parts = t.split(None, 1)
        op = parts[0]; self.op = op
        rest = parts[1] if len(parts) > 1 else ''
        ops = split_ops(rest)
        if ops:
            last = ops[-1].split()
            mods = ' '.join(last[1:]); ops[-1] = last[0]
        else:
            mods = ''
        R = [regs_of(o) for o in ops]
        allr = set().union(*R) if R else set()
        if op.startswith('v_mfma'):
            self.kind = 'mfma'; self.dst = R[0]; self.srcAB = R[1] | R[2]; self.srcC = R[3]; self.src = R[1] | R[2] | R[3]
        elif op.startswith('v_'):
            self.kind = 'valu'
            base = op.replace('_e32', '').replace('_e64', '').replace('_dpp', '').replace('_sdwa', '')
            self.dpp = ('_dpp' in op) or ('row_' in mods) or ('quad_perm' in mods)
            if base.startswith('v_permlane') or base == 'v_swap_b32':
                self.dst = R[0] | R[1]; self.src = R[0] | R[1]
            elif base in ('v_add_co_u32', 'v_sub_co_u32', 'v_addc_co_u32', 'v_subb_co_u32', 'v_mad_u64_u32'):
                self.dst = R[0] | R[1]; self.src = set().union(*R[2:])
            elif base == 'v_nop':
                pass
            else:
                self.dst = R[0]; self.src = set().union(*R[1:]) if len(R) > 1 else set()
                if base in ('v_fmac_f32', 'v_dot2c_f32_bf16', 'v_writelane_b32', 'v_pk_fmac_f16') or self.dpp:
                    self.src |= R[0]
                if base.startswith('v_cmpx'): self.dst |= {('x', 'exec')}
                if base.startswith('v_dot'): self.srcAB = R[1] | R[2]
        elif op.startswith('ds_'):
            self.kind = 'ds'
            if op.startswith('ds_read') or op.startswith('ds_bpermute') or op.startswith('ds_permute') or op.startswith('ds_swizzle'):
                self.dst = R[0]; self.src = set().union(*R[1:])
            else:
                self.src = allr; self.data = set().union(*R[1:])
        elif op.startswith('buffer_') or op.startswith('global_'):
            self.kind = 'vmem'
            lds = (' lds' in (' ' + mods)) or ('_lds_' in op)
            if lds:
                self.src = allr | {('x', 'm0')}; self.kind = 'vmem'; self.tag = tag
                self.op = op + '@lds'
            elif '_load' in op:
                self.dst = R[0]; self.src = set().union(*R[1:])
            elif '_store' in op:
                self.src = allr
                self.data = R[0] if op.startswith('buffer_') else R[1]
                self.wide = op.endswith('x3') or op.endswith('x4')
            elif '_atomic' in op:
                self.src = allr
                if 'sc0' in mods: self.dst = R[0]
            else:
                self.src = allr
        elif op.startswith('s_load') or op.startswith('s_buffer_load') or op in ('s_memtime', 's_memrealtime'):
            self.kind = 'smem'; self.dst = R[0]; self.src = set().union(*R[1:]) if len(R) > 1 else set()
        elif op in ('s_waitcnt',):
            self.kind = 'wait'
        elif op == 's_nop':
            self.kind = 'nop'
        elif op.startswith('s_cbranch') or op == 's_branch':
            self.kind = 'branch'
            if 'vcc' in op: self.src = {('x', 'vcc')}
        elif op in ('s_barrier', 's_endpgm', 's_sleep', 's_setprio'):
            self.kind = 'misc'
        elif op.startswith('s_cmp') or op.startswith('s_bitcmp'):
            self.kind = 'salu'; self.src = allr
        elif op.startswith('s_'):
            self.kind = 'salu'; self.dst = R[0]; self.src = set().union(*R[1:]) if len(R) > 1 else set()
            if 'saveexec' in op: self.dst |= {('x', 'exec')}; self.src |= {('x', 'exec')}
            if op in ('s_addk_i32', 's_mulk_i32', 's_cmov_b32', 's_cmov_b64'): self.src |= R[0]
        else:
            raise ValueError('unknown instr: ' + text)

    def states(self):
        if self.kind in ('label', 'dir'): return 0
        if self.kind == 'nop': return int(self.text.split()[1], 0) + 1
        return 1

class Marker:
    def __init__(self, what, arg=None): self.what = what; self.arg = arg

class Prog:
    def __init__(self):
        self.items = []
        self.nlabel = 0
        self.strict_lds = False
    def e(self, text, tag=None, mem=None):
        for line in text.split('\n'):
            line = line.strip()
            if not line: continue
            self.items.append(Ins(line, tag, mem))
    __call__ = e
    def add(self, items):
        for it in items:
            if isinstance(it, str): self.e(it)
            elif isinstance(it, tuple): self.e(*it)
            elif isinstance(it, list): self.add(it)
            else: self.items.append(it)
    def label(self, base='L'):
        self.nlabel += 1
        return f'{base}_{self.nlabel}'
    def wait_vm(self, tag): self.items.append(Marker('wait_vm', tag))
    def wait_vm_all(self): self.items.append(Marker('wait_vm_all'))
    def wait_lgkm_all(self): self.items.append(Marker('wait_lgkm_all'))
    def wait_lgkm(self, tag): self.items.append(Marker('wait_lgkm', tag))
    def cond_begin(self): self.items.append(Marker('cond_begin'))
    def cond_end(self): self.items.append(Marker('cond_end'))
    def comment(self, c): self.items.append(Marker('comment', c))
    def save(self, name): self.items.append(Marker('save', name))
    def restore(self, name): self.items.append(Marker('restore', name))

    def finalize(self):
        ins = self._insert_waits()
        ins = self._insert_nops(ins)
        return ins

    def _insert_waits(self):
        out = []
        vm = []
        lg = []
        cond_stack = []
        saved = {}
        owner = [None]*1280
        hist = []
        def pending(h): return any(h['ent'] is e or e.get('orig') is h['ent'] for e in (lg if h['ds'] else vm))
        def lds_check(ins, ent):
            rngs, mode, priv, name = ins.mem
            w = mode == 'W'; ds = ins.kind == 'ds'
            for lo, hi in rngs:
                assert 0 <= lo < hi <= 163840 and lo % 128 == 0 and hi % 128 == 0, ins.mem
                for a in range(lo >> 7, hi >> 7):
                    if w: owner[a] = name
                    elif owner[a] != name: raise ValueError(f"LDS owner mismatch: [{ins.text}] wants {name} finds {owner[a]} at {a<<7}")
                for h in hist:
                    if h['hi'] <= lo or hi <= h['lo'] or not (w or h['w']): continue
                    if h['vis']: continue
                    if w and h['w'] and h['grp'] == name: continue
                    if priv and h['priv'] == priv:
                        if ds and h['ds']: continue
                        if not pending(h): continue
                    raise ValueError(f"LDS hazard: [{ins.text}] {ins.mem} vs [{h['text']}] {(h['lo'],h['hi'],h['w'],h['priv'],h['grp'])}")
            for lo, hi in rngs:
                hist.append(dict(lo=lo, hi=hi, w=w, priv=priv, ds=ds, ent=ent, vis=False, text=ins.text, grp=name))
        def emit_wait(v=None, l=None):
            parts = []
            if v is not None: parts.append(f'vmcnt({min(v,63)})')
            if l is not None: parts.append(f'lgkmcnt({min(l,15)})')
            if out and out[-1].kind == 'wait' and getattr(out[-1], 'nowait', False):
                m = re.search(r'vmcnt\((\d+)\)', out[-1].text)
                if m: v = int(m.group(1)) if v is None else min(v, int(m.group(1)))
                m = re.search(r'lgkmcnt\((\d+)\)', out[-1].text)
                if m: l = int(m.group(1)) if l is None else min(l, int(m.group(1)))
                out.pop()
                parts = []
                if v is not None: parts.append(f'vmcnt({min(v,63)})')
                if l is not None: parts.append(f'lgkmcnt({min(l,15)})')
            w = Ins('s_waitcnt ' + ' '.join(parts)); w.nowait = True
            out.append(w)
        def need(queue, idx):
            return sum(1 for e in queue[idx + 1:] if not e['maybe'])
        def retire(queue, idx):
            del queue[:idx + 1]
        for it in self.items:
            if isinstance(it, Marker):
                if it.what == 'comment':
                    out.append(Ins('; ' + it.arg)); continue
                if it.what == 'save':
                    saved[it.arg] = (list(vm), list(lg)); continue
                if it.what == 'restore':
                    vm, lg = list(saved[it.arg][0]), list(saved[it.arg][1]); continue
                if it.what == 'cond_begin':
                    cond_stack.append((list(vm), list(lg))); continue
                if it.what == 'cond_end':
                    svm, slg = cond_stack.pop()
                    newvm = [dict(e, maybe=True, orig=e) for e in vm if not any(e is s for s in svm)]
                    newlg = [dict(e, maybe=True, orig=e) for e in lg if not any(e is s for s in slg)]
                    vm = svm + newvm; lg = slg + newlg
                    continue
                if it.what == 'wait_vm':
                    idx = max([i for i, e in enumerate(vm) if e['tag'] == it.arg], default=-1)
                    if idx >= 0:
                        emit_wait(v=need(vm, idx)); retire(vm, idx)
                    continue
                if it.what == 'wait_lgkm':
                    idx = max([i for i, e in enumerate(lg) if e['tag'] == it.arg], default=-1)
                    if idx >= 0:
                        if any(e['smem'] for e in lg): emit_wait(l=0); lg = []
                        else: emit_wait(l=need(lg, idx)); retire(lg, idx)
                    continue
                if it.what == 'wait_vm_all':
                    emit_wait(v=0); vm = []; continue
                if it.what == 'wait_lgkm_all':
                    if lg: emit_wait(l=0)
                    lg = []; continue
                raise ValueError(it.what)
            ins = it
            if ins.kind in ('label', 'dir'):
                out.append(ins); continue
            if ins.kind == 'wait':
                m = re.search(r'vmcnt\((\d+)\)', ins.text)
                if m and int(m.group(1)) == 0: vm = []
                m = re.search(r'lgkmcnt\((\d+)\)', ins.text)
                if m and int(m.group(1)) == 0: lg = []
                out.append(ins); continue
            touched = ins.src | ins.dst
            vi = max([i for i, e in enumerate(vm) if e['dst'] & touched], default=-1)
            li = max([i for i, e in enumerate(lg) if e['dst'] & touched], default=-1)
            if vi >= 0 and ins.kind == 'vmem' and not (vm[vi]['dst'] & ins.src) and all(not (e['dst'] & ins.src) for e in vm):
                vi = -1
            if li >= 0 and ins.kind == 'ds' and all(not (e['dst'] & ins.src) for e in lg) and not any(e['smem'] for e in lg):
                li = -1
            v = l = None
            if vi >= 0:
                v = need(vm, vi); retire(vm, vi)
            if li >= 0:
                if any(e['smem'] for e in lg): l = 0; lg = []
                else: l = need(lg, li); retire(lg, li)
            if v is not None or l is not None: emit_wait(v, l)
            out.append(ins)
            if ins.kind == 'vmem': vm.append(dict(dst=set(ins.dst), tag=ins.tag, maybe=False))
            elif ins.kind == 'ds': lg.append(dict(dst=set(ins.dst), tag=ins.tag, maybe=False, smem=False))
            elif ins.kind == 'smem': lg.append(dict(dst=set(ins.dst), tag=ins.tag, maybe=False, smem=True))
            if ins.mem: lds_check(ins, (vm if ins.kind == 'vmem' else lg)[-1])
            elif self.strict_lds and (ins.kind == 'ds' or ins.op.endswith('@lds')): raise ValueError('unannotated LDS access: ' + ins.text)
            if ins.op == 's_barrier':
                for h in hist:
                    if not pending(h): h['vis'] = True
                hist[:] = [h for h in hist if not h['vis']]
        return out

    @staticmethod
    def _required(p, c):
        req = 0
        isv = lambda s: {r for r in s if r[0] in 'va'}
        iss = lambda s: {r for r in s if r[0] == 's' or r == ('x', 'vcc')}
        if p.kind == 'valu':
            pv = isv(p.dst); ps = iss(p.dst)
            if c.kind == 'mfma' and pv & c.src: req = max(req, 2)
            if c.kind == 'valu':
                if c.dpp and pv & c.src: req = max(req, 2)
                if c.op.startswith('v_permlane') and pv & c.src: req = max(req, 2)
                if (c.op.startswith('v_readlane') or c.op.startswith('v_readfirstlane')) and pv & c.src: req = max(req, 1)
                if p.op.replace('_e32', '').replace('_e64', '') in TRANS and pv & c.src: req = max(req, 1)
                if ps & c.src:
                    req = max(req, 4 if (c.op.startswith('v_readlane') or c.op.startswith('v_writelane')) else 2)
                if ('x', 'vcc') in ps and c.op.startswith('v_cndmask') : req = max(req, 2)
                if ('dst_sel' in p.text and 'dst_sel:DWORD' not in p.text) and pv & (c.src | c.dst): req = max(req, 1)
                if ('x', 'exec') in p.dst: req = max(req, 5)
            if c.kind == 'vmem' and ps & c.src: req = max(req, 5)
            if c.kind in ('salu', 'branch', 'smem') and ps & c.src: req = max(req, 2)
            if c.kind == 'mfma' and ('x', 'exec') in p.dst: req = max(req, 4)
        if p.kind == 'valu' and p.op.startswith('v_dot'):
            pv = isv(p.dst)
            pb = p.op.replace('_e32', '').replace('_e64', '').replace('_dpp', '')
            cb = c.op.replace('_e32', '').replace('_e64', '').replace('_dpp', '')
            if pv & (c.src | c.dst):
                if pb == cb and not (pv & c.srcAB): pass
                else: req = max(req, 3)
        if p.kind == 'mfma':
            n8 = '32x32' in p.op
            if c.kind == 'mfma':
                if p.dst & c.srcAB: req = max(req, 12 if n8 else 8)
                if p.dst & c.srcC:
                    if not (p.dst == c.srcC and p.op == c.op): req = max(req, 10 if n8 else 6)
                elif p.dst & c.dst:
                    req = max(req, 10 if n8 else 6)
            elif c.kind in ('valu', 'vmem', 'ds'):
                if p.dst & (c.src | c.dst): req = max(req, 12 if n8 else 8)
            if c.kind == 'valu' and isv(p.srcC) & c.dst: req = max(req, 7 if n8 else 3)
        if p.kind == 'salu':
            if ('x', 'm0') in p.dst and ('x', 'm0') in c.src and c.kind == 'vmem': req = max(req, 1)
        if p.kind == 'vmem' and p.wide and p.data & c.dst:
            req = max(req, 2 if c.kind in ('valu', 'mfma') else 1)
        return req

    def _insert_nops(self, ins):
        out = []
        WIN = 14
        for c in ins:
            if c.kind in ('dir',):
                out.append(c); continue
            boundary = c.kind in ('label', 'branch')
            dist = 0; need = 0
            for p in reversed(out):
                if dist >= WIN: break
                if p.kind in ('label', 'dir'): continue
                if boundary:
                    worst = {'mfma': 8, 'valu': 2}.get(p.kind, 0)
                    if p.kind == 'valu' and p.op.startswith('v_dot'): worst = 3
                    if p.kind == 'valu' and any(r[0] == 's' or r == ('x', 'vcc') for r in p.dst): worst = 5
                    if p.kind == 'salu' and ('x', 'm0') in p.dst: worst = 1
                    if p.kind == 'vmem' and p.wide: worst = 2
                    if c.kind == 'branch': worst -= 1
                    r = max(worst, self._required(p, c) if c.kind == 'branch' else 0)
                else:
                    r = self._required(p, c)
                need = max(need, r - dist)
                dist += p.states()
            while need > 0:
                n = min(need, 16)
                out.append(Ins(f's_nop {n-1}')); need -= n
            out.append(c)
        return out

def interleave(main, fill, every=1, per=1, start=0):
    out = []; fi = 0
    for i, m in enumerate(main):
        out.append(m)
        if i >= start and (i - start) % every == every - 1:
            for _ in range(per):
                if fi < len(fill): out.append(fill[fi]); fi += 1
    out.extend(fill[fi:])
    return out

def spread(main, fill, start=0, end=None):
    if end is None: end = len(main)
    n = end - start
    out = list(main[:start]); fi = 0
    for i in range(n):
        out.append(main[start + i])
        tgt = (i + 1) * len(fill) // n
        while fi < tgt:
            f = fill[fi]; fi += 1
            if isinstance(f, list): out.extend(f)
            else: out.append(f)
    out.extend(main[end:])
    return out
```

```python
import sys, os
sys.path.insert(0, os.path.dirname(os.path.abspath(__file__)))
from asmlib import *

KNAME = 'adaLN_cond__sliding_local_dilated__dense_activation_relu__prompt_kernel'

WS_HELLO = 0x400
WS_MOD = 0x8000
WS_CL = 0x100000
CL_STRIDE = 0x50000
C_O, C_X1, C_H, C_ST, C_FL = 0, 0x10000, 0x20000, 0x4C000, 0x4D000
H_TILE = 45056
WS_DIAG = 0xE00000
WS_SIZE = 0x1000000
OOB = 0x40000000

SLOT = 12288
L_H = 73728
L_MISC = 155648
L_DUMMY = L_MISC + 7168
L_WO = 49152
L_W2 = 65536

S_X, S_WQ, S_WO, S_W1, S_W2, S_WM, S_OUT, S_WS, S_C, S_CODE = 4, 8, 12, 16, 20, 24, 28, 32, 36, 68
sW, sCL, sJ, sTAG = 60, 61, 62, 63
sT0, sT1, sT2, sT3 = 64, 65, 66, 67
sT4, sT5 = 56, 57
sSPIN, sONES, sR0, sXO = 40, 41, 42, 43
sK = 44
sU0, sCB, sXCC, sXA = 46, 47, 48, 49
sXB, sD0, sD1, sMW, sD2, sP = 50, 51, 52, 53, 54, 55
sN = 72
sA0, sA1 = 76, 77
sKW, sBLK, sTQ = 3, 78, 79
STAMP0 = 80
NSTAMP = 11


def srd(b): return f's[{b}:{b+3}]'
def vr(a, n=1): return f'v{a}' if n == 1 else f'v[{a}:{a+n-1}]'
def ar(a, n=1): return f'a{a}' if n == 1 else f'a[{a}:{a+n-1}]'
def rr(r, n=1, off=0): return (vr if r[0] == 'v' else ar)(r[1]+off, n)

def WVM(tag): return Marker('wait_vm', tag)
def WLG(tag): return Marker('wait_lgkm', tag)
WVMA = lambda: Marker('wait_vm_all')
WLGA = lambda: Marker('wait_lgkm_all')

vL16, vTAG, vDP, vTS, vDQ, vDW1, vTP, vG, vC, vLANE = 255, 254, 250, 247, 246, 245, 244, 243, 242, 241
vHW, vHR, vXO, vSTO, vSTH, vT1, vMR, vMW, vPB, vDIAG = 239, 235, 234, 233, 232, 229, 228, 227, 225, 224
vXV = 223
vPOLL = 208
vJUNK, vT128, vTQ, vTO, vTW1, vTW2, vTS2 = 222, 221, 220, 212, 213, 214, 215
MFMA = 'v_mfma_f32_16x16x32_bf16'

def X(i, T): return 40*i + 8*T


class Gen:
    def __init__(self, diag=False, hdiag=None, **opt):
        self.p = Prog()
        self.diag = diag; self.hdiag = hdiag
        self.nst = 0; self.flushed = 0; self.stamp_names = []
        self.o = dict(pollpos=0.6, nC=5, fast=0, ba=0.72, t1=0, r3=13, xp=1, xn=3, nb=2, tq0=2, lt=8, d0=0.02, d1=0.92)
        self.o.update(opt)

    def stamp(self, name):
        if not self.diag: return []
        if self.hdiag and name not in self.hdiag and name not in ('rt0', 'start', 'end', 'rt1'): return []
        k = self.nst; self.nst += 1
        assert k - self.flushed < NSTAMP, name
        if len(self.stamp_names) <= k: self.stamp_names.append(name)
        op = 's_memrealtime' if name.startswith('rt') else 's_memtime'
        k %= NSTAMP
        return [f'{op} s[{STAMP0+2*k}:{STAMP0+2*k+1}]']

    def flush(self):
        if not self.diag: return []
        o = ['s_waitcnt lgkmcnt(0)']
        for k in range(self.flushed, self.nst):
            o.append(f'v_writelane_b32 v{vDIAG}, s{STAMP0+2*(k%NSTAMP)}, {k}')
        self.flushed = self.nst
        return o

    def bar(self): return [WLGA(), 's_barrier']

    def entry(self):
        p = self.p
        p('s_load_dwordx16 s[40:55], s[0:1], 0')
        p('s_load_dwordx2 s[56:57], s[0:1], 64')
        p('s_load_dwordx2 s[58:59], s[0:1], 80')
        p('s_cmp_ge_u32 s2, 256')
        p('s_cbranch_scc1 L_END')
        p.add(self.stamp('rt0'))
        p.add(self.stamp('start'))
        p(f'v_lshrrev_b32 v1, 6, v0')
        p(f'v_and_b32 v{vLANE}, 63, v0')
        p(f's_getpc_b64 s[{S_CODE}:{S_CODE+1}]')
        p('L_PC:')
        p(f'v_readfirstlane_b32 s{sW}, v1')
        p(f's_mov_b32 s{S_CODE+2}, L_FASTEND-L_PC')
        p(f's_mov_b32 s{S_CODE+3}, 0x00020000')
        p(f'v_lshlrev_b32 v{vT128}, 7, v{vLANE}')
        p(f's_lshr_b32 s{sT2}, s2, 3')
        p(f's_lshl2_add_u32 s{sKW}, s{sT2}, s{sW}')
        p(f's_lshl_b32 s{sT0}, s{sKW}, 8')
        p('s_mov_b64 exec, 3')
        p(f'buffer_load_dword v{vJUNK}, v{vT128}, {srd(S_CODE)}, s{sT0} offen')
        p('s_mov_b64 exec, -1')
        for b, sz in ((S_WM, 512*6144), (S_X, 2048*1024), (S_C, 1024)):
            p(f's_mov_b32 s{b+2}, {sz}')
            p(f's_mov_b32 s{b+3}, 0x00020000')
        p(f'v_lshlrev_b32 v{vL16}, 4, v{vLANE}')
        p(f'v_lshrrev_b32 v{vG}, 4, v{vLANE}')
        p(f'v_and_b32 v{vC}, 15, v{vLANE}')
        p(f'v_lshrrev_b32 v2, 3, v{vLANE}')
        p(f'v_mul_u32_u24 v2, {6144-1024}, v2')
        p(f'v_add_u32 v2, v2, v{vT128}')
        p(f's_and_b32 s{sT0}, s2, 7')
        p(f's_mul_i32 s{sT3}, s{sT0}, 12')
        p(f's_add_u32 s{sBLK}, s{sT3}, s{sT2}')
        p(f's_lshl_b32 s{sT3}, s{sT3}, 6')
        p(f's_mul_i32 s{sT1}, s{sKW}, {4*6144}')
        p(f's_add_u32 s{sN}, s{sT1}, s{sT3}')
        p(f's_lshl_b32 s{sN+1}, s{sT0}, 7')
        p(f's_add_u32 s{sN+1}, s{sN+1}, s{sKW}')
        p(f's_lshl_b32 s{sN+1}, s{sN+1}, 11')
        p(f's_lshr_b32 s{sT1}, s2, 6')
        p(f's_lshl2_add_u32 s{sCL}, s{sT0}, s{sT1}')
        p(f's_and_b32 s{sJ}, s{sT2}, 7')
        p(f'v_lshlrev_b32 v{vXV}, 11, v{vG}')
        p(f'v_lshl_add_u32 v{vXV}, v{vC}, 4, v{vXV}')
        p(f'v_lshrrev_b32 v3, 2, v{vLANE}')
        p(f'v_and_b32 v4, 0x30, v{vL16}')
        p(f'v_mul_u32_u24 v3, {8*6144}, v3')
        p(f'v_add_u32 v3, v3, v4')
        p(f'v_lshlrev_b32 v1, 2, v{vLANE}')
        p(f's_lshl_b32 s{sT2}, s{sCL}, 6')
        p(f's_lshl3_add_u32 s{sT0}, s{sW}, s{sT2}')
        p(f's_cmp_lt_u32 s{sW}, 2')
        p(f's_cselect_b32 s{sT1}, 15, 32')
        p(f's_sub_i32 s{sT1}, s{sT0}, s{sT1}')
        p(f's_max_i32 s{sT1}, s{sT1}, 0')
        p(f's_lshl_b32 s{sA0}, s{sT1}, 10')
        p(f's_lshl_b32 s{sA1}, s{sT0}, 10')
        p(f's_mul_i32 s{sT0}, s{sW}, {128*6144}')
        p(f's_lshl_b32 s{sT1}, s{sBLK}, 6')
        p(f's_add_u32 s{sT0}, s{sT0}, s{sT1}')
        p(f's_lshl_b32 s{sT1}, s{sW}, 8')
        p('s_mov_b64 exec, 0x3f3f3f3f')
        p.add([WLGA()])
        p(f's_mov_b64 s[{S_WM}:{S_WM+1}], s[54:55]')
        p(f's_mov_b64 s[{S_X}:{S_X+1}], s[40:41]')
        if self.o['t1'] & 1: p(f'buffer_load_dword v{vJUNK}, v2, {srd(S_WM)}, s{sN} offen nt')
        p('s_mov_b64 exec, 0xffff')
        p(f's_mov_b64 s[{S_C}:{S_C+1}], s[52:53]')
        if self.o['t1'] & 2: p(f'buffer_load_dword v{vJUNK}, v{vT128}, {srd(S_X)}, s{sN+1} offen nt')
        p('s_mov_b64 exec, -1')

    def entry2(self):
        p = self.p
        p(f's_load_dword s{sTAG}, s[58:59], 0')
        for b, sz, k in ((S_WQ, 512*3072, 42), (S_WO, 512*1024, 44), (S_W1, 512*2752, 48), (S_W2, 1376*1024, 50),
                         (S_OUT, 2048*1024, 56), (S_WS, WS_SIZE, 58)):
            p(f's_mov_b64 s[{b}:{b+1}], s[{k}:{k+1}]')
            p(f's_mov_b32 s{b+2}, {sz}')
            p(f's_mov_b32 s{b+3}, 0x00020000')
        p(f's_mov_b32 s{sR0}, s{sT2}')
        p(f's_mul_i32 s{sCB}, s{sCL}, {CL_STRIDE}')
        p(f's_add_u32 s{sCB}, s{sCB}, {WS_CL}')

    def twq(self, b):
        nb = self.o['nb']
        o = [f'buffer_load_dword v{vJUNK}, v{vTQ}, {srd(S_WQ)}, s{sTQ} offen']
        if b < nb-1: o.append(f's_add_u32 s{sTQ}, s{sTQ}, {512*3072//nb}')
        return o

    def late_touch(self):
        return [f'buffer_load_dword v{vJUNK}, v{vTO}, {srd(S_WO)}, 0 offen',
                f'buffer_load_dword v{vJUNK}, v{vTW1}, {srd(S_W1)}, 0 offen',
                f'buffer_load_dword v{vJUNK}, v{vTW2}, {srd(S_W2)}, 0 offen',
                ['s_mov_b64 exec, 3', f'buffer_load_dword v{vJUNK}, v{vTS2}, {srd(S_WS)}, 0 offen sc1',
                 f'buffer_load_dword v{vJUNK}, v{vL16}, {srd(S_OUT)}, s{sXO} offen', 's_mov_b64 exec, -1']]

    def touch_pre(self):
        nb = self.o['nb']; nl = 96//nb
        t = 208
        o = [f'v_mov_b32 v{t}, {OOB}', f'v_cmp_gt_u32 vcc, {nl}, v{vLANE}', f'v_cndmask_b32 v{vTQ}, v{t}, v{vT128}, vcc',
             f's_mul_i32 s{sTQ}, s{sKW}, {nl*128}',
             f's_lshl2_add_u32 s{sT0}, s2, s{sW}', f's_mul_i32 s{sT1}, s{sT0}, {11*128}', f'v_add_u32 v{t+1}, s{sT1}, v{vT128}',
             f'v_cmp_gt_u32 vcc, 11, v{vLANE}', f'v_cndmask_b32 v{vTW1}, v{t}, v{t+1}, vcc',
             f's_mul_i32 s{sT1}, s{sKW}, {11*1024}', f's_add_u32 s{sT1}, s{sT1}, 384', f'v_lshl_add_u32 v{t+2}, v{vC}, 10, s{sT1}',
             f's_mov_b64 vcc, 0x07ff0000', f'v_cndmask_b32 v{vTW2}, v{vTW1}, v{t+2}, vcc',
             f's_lshl_b32 s{sT1}, s{sT0}, 9', f'v_add_u32 v{t+1}, s{sT1}, v{vT128}',
             f's_lshl_b32 s{sT1}, s{sKW}, 12', f's_add_u32 s{sT1}, s{sT1}, 384', f'v_lshl_add_u32 v{t+2}, v{vC}, 10, s{sT1}',
             f's_mov_b64 vcc, 0xf', f'v_cndmask_b32 v{vTO}, v{t}, v{t+1}, vcc',
             f's_mov_b64 vcc, 0xf0000', f'v_cndmask_b32 v{vTO}, v{vTO}, v{t+2}, vcc',
             f'v_mul_u32_u24 v{vTS2}, {0x4F080}, v{vLANE}', f's_sub_u32 s{sT1}, s{sCB}, 128', f'v_add_u32 v{vTS2}, s{sT1}, v{vTS2}']
        return o

    def xload(self, T):
        so, io = ((sA0, 0), (sA1, 0), (sA1, 1024), (sXA, 0), (sXA, 1024))[T]
        return [f'buffer_load_dwordx4 {vr(X(i,T)+4,4)}, v{vXV}, {srd(S_X)}, s{so} offen offset:{io+256*i} nt' for i in range(4)]

    def precompute(self):
        o = []
        t = 208
        o += [f'v_lshrrev_b32 v{t}, 3, v{vLANE}', f'v_lshrrev_b32 v{t+1}, 1, v{t}', f'v_lshlrev_b32 v{t+1}, 5, v{t+1}',
              f'v_and_b32 v{t+2}, 0x70, v{vL16}', f'v_xor_b32 v{t+1}, v{t+1}, v{t+2}',
              f'v_and_b32 v{t+2}, 4, v{t}', f'v_add_u32 v{t}, v{t}, v{t+2}',
              f'v_mul_u32_u24 v{t+2}, 3072, v{t}', f'v_add_u32 v{vDQ}, v{t+2}, v{t+1}',
              f'v_lshl_add_u32 v{vDP}, v{t}, 10, v{t+1}', f'v_add_u32 v{vDP+1}, {15*1024}, v{vDP}',
              f'v_add_u32 v{vDP+2}, {2*1024}, v{vDP}', f'v_add_u32 v{vDP+3}, {17*1024}, v{vDP}',
              f'v_mul_u32_u24 v{t+2}, 2752, v{t}', f'v_add_u32 v{vDW1}, v{t+2}, v{t+1}']
        o += [f's_add_u32 s{sXA}, s{sA1}, 32768',
              f's_and_b32 s{sT0}, s{sW}, 1', f's_lshl_b32 s{sT0}, s{sT0}, 4', f's_lshr_b32 s{sT1}, s{sW}, 1',
              f's_lshl_b32 s{sT1}, s{sT1}, 2', f's_add_u32 s{sP}, s{sT0}, s{sT1}',
              f's_mul_i32 s{sD0}, s{sP}, 3072', f's_lshl_b32 s{sT0}, s{sJ}, 7', f's_add_u32 s{sD0}, s{sD0}, s{sT0}',
              f's_mul_i32 s{sD1}, s{sW}, 3072',
              f's_min_u32 s{sT0}, s{sJ}, 3', f's_mul_i32 s{sU0}, s{sJ}, 5', f's_add_u32 s{sU0}, s{sU0}, s{sT0}',
              f's_mul_i32 s{sD2}, s{sP}, 2752', f's_lshl_b32 s{sT0}, s{sU0}, 6', f's_add_u32 s{sD2}, s{sD2}, s{sT0}',
              f's_mov_b32 s{sONES}, 0x3f803f80', f's_mov_b32 s{sK}, 0x3eb8aa3b', f's_mov_b32 s{sK+1}, 0x3eb8aa3b',
              f's_getreg_b32 s{sXCC}, hwreg(HW_REG_XCC_ID, 0, 4)']
        o += [f'v_lshrrev_b32 v{t}, 2, v{vLANE}', f'v_and_b32 v{t}, 7, v{t}',
              f'v_lshrrev_b32 v{t+1}, 1, v{t}', f'v_lshlrev_b32 v{t+1}, 5, v{t+1}',
              f'v_and_b32 v{t+2}, 3, v{vLANE}', f'v_lshlrev_b32 v{t+2}, 3, v{t+2}',
              f'v_lshl_add_u32 v{t+2}, v{t}, 7, v{t+2}',
              f'v_lshrrev_b32 v{t+3}, 5, v{vLANE}',
              f'v_and_b32 v{t+4}, 0x30, v{vL16}', f'v_xor_b32 v{t+4}, v{t+4}, v{t+1}',
              f'v_lshl_add_u32 v{t+4}, v{t}, 7, v{t+4}', f'v_lshl_add_u32 v{vTP}, v{t+3}, 10, v{t+4}',
              f'v_mul_u32_u24 v{t+3}, 3072, v{t+3}', f'v_add_u32 v{t+2}, v{t+2}, v{t+3}',
              f's_lshl_b32 s{sT0}, s{sW}, 5', f'v_xor_b32 v{t+3}, s{sT0}, v{t+1}',
              f'v_add_u32 v{vTS}, v{t+2}, v{t+3}', f'v_add_u32 v{vTS+1}, {4*SLOT}, v{vTS}', f'v_add_u32 v{vTS+2}, {8*SLOT}, v{vTS}']
        for m in range(3):
            o += [f's_mul_i32 s{sT0}, s{sW}, 3', f's_add_u32 s{sT0}, s{sT0}, {m}', f's_and_b32 s{sT1}, s{sT0}, 3',
                  f's_lshl_b32 s{sT1}, s{sT1}, 5', f's_lshr_b32 s{sT0}, s{sT0}, 2', f's_lshl_b32 s{sT0}, s{sT0}, 10',
                  f'v_xor_b32 v{vT1+m}, s{sT1}, v{t+1}', f'v_add3_u32 v{vT1+m}, v{vT1+m}, v{t+2}, s{sT0}']
        o += [f's_lshl_b32 s{sMW}, s{sW}, 14', f's_add_u32 s{sMW}, s{sMW}, {L_WO}',
              f'v_add_u32 v{vPB}, s{sMW}, v{vTP}', f'v_xor_b32 v{vPB+1}, 64, v{vPB}']
        o += [f's_lshl_b32 s{sT0}, s{sW}, 2', f'v_add_u32 v{t}, s{sT0}, v{vG}', f'v_and_b32 v{t+1}, 7, v{vC}',
              f'v_xor_b32 v{t}, v{t}, v{t+1}', f'v_lshlrev_b32 v{t}, 4, v{t}', f'v_lshl_add_u32 v{t}, v{vC}, 8, v{t}',
              f'v_add_u32 v{vHW}, {L_H}, v{t}', f'v_add_u32 v{vHW+1}, {L_H+40960}, v{t}',
              f'v_xor_b32 v{t}, v{vC}, v{vG}', f'v_lshlrev_b32 v{t}, 4, v{t}', f'v_lshl_add_u32 v{t}, v{vG}, 8, v{t}',
              f'v_add_u32 v{vHR}, {L_H}, v{t}', f'v_xor_b32 v{vHR+1}, 64, v{vHR}',
              f'v_add_u32 v{vHR+2}, 40960, v{vHR}', f'v_add_u32 v{vHR+3}, 40960, v{vHR+1}']
        o += [f's_lshl_b32 s{sT0}, s{sW}, 10', f's_add_u32 s{sXB}, s{sT0}, {WS_MOD}', f's_add_u32 s{sT0}, s{sT0}, {L_MISC}',
              f'v_add_u32 v{vMW}, s{sT0}, v{vL16}', f'v_lshlrev_b32 v{vMR}, 5, v{vC}', f'v_add_u32 v{vMR}, {L_MISC}, v{vMR}']
        o += [f'v_lshlrev_b32 v{vXO}, 11, v{vC}', f'v_lshl_add_u32 v{vXO}, v{vG}, 4, v{vXO}',
              f's_lshr_b32 s{sT0}, s{sW}, 1', f's_lshl_b32 s{sT0}, s{sT0}, 5', f's_and_b32 s{sT1}, s{sW}, 1',
              f's_add_u32 s{sT0}, s{sT0}, s{sT1}', f's_add_u32 s{sT0}, s{sT0}, s{sR0}', f's_lshl_b32 s{sT0}, s{sT0}, 10',
              f's_lshl_b32 s{sT1}, s{sJ}, 7', f's_add_u32 s{sXO}, s{sT0}, s{sT1}',
              f'v_lshrrev_b32 v{t}, 1, v{vG}', f'v_lshlrev_b32 v{t}, 8, v{t}', f'v_lshl_add_u32 v{t}, v{vC}, 4, v{t}',
              f'v_and_b32 v{t+1}, 1, v{vG}', f'v_lshl_add_u32 v{vSTO}, v{t+1}, 14, v{t}',
              f'v_mul_u32_u24 v{t+1}, {H_TILE}, v{t+1}', f'v_add_u32 v{vSTH}, v{t+1}, v{t}']
        o += [f'v_lshlrev_b32 v{t}, 2, v{vG}', f'v_sub_u32 v{t}, v{t}, v{vC}', f'v_mov_b32 v{t+1}, 0xf149f2ca',
              f's_cmp_eq_u32 s{sCL}, 0', f's_cselect_b32 s{sT0}, 100, 9', f's_cselect_b32 s{sT1}, 100, 1',
              f'v_and_b32 v{t+2}, 2, v{vG}', f'v_lshlrev_b32 v{t+2}, 6, v{t+2}', f'v_sub_u32 v{t+2}, v{t}, v{t+2}']
        for r in range(4):
            o += [f'v_add_u32 v{t+3}, {r+7}, v{t}', f'v_add_u32 v{t+4}, {r}, v{t}', f'v_add_u32 v{t+5}, {r}, v{t+2}',
                  f'v_cmp_gt_u32 vcc, 8, v{t+3}', f'v_cmp_le_i32 s[{sN}:{sN+1}], 9, v{t+4}',
                  f'v_cmp_le_i32 s[{sN+2}:{sN+3}], s{sT0}, v{t+4}', f'v_cmp_le_i32 s[{sT2}:{sT3}], s{sT1}, v{t+5}',
                  f'v_cndmask_b32 v{t+3}, v{t+1}, 0, vcc', f'v_cndmask_b32 v{t+8+r}, 0, -1, vcc',
                  f'v_cndmask_b32 v{t+4}, v{t+1}, 0, s[{sN}:{sN+1}]', f'v_cndmask_b32 v{t+5}, v{t+1}, 0, s[{sN+2}:{sN+3}]',
                  f'v_cndmask_b32 v{t+6}, v{t+1}, 0, s[{sT2}:{sT3}]']
            o += [f'v_accvgpr_write_b32 a{232+4*k+r}, v{t+3+k}' for k in range(4)]
        o += [f'v_mov_b32 v{t+3}, 0xffff', f'v_bfi_b32 v{t+4}, v{t+3}, v{t+8}, v{t+9}', f'v_bfi_b32 v{t+5}, v{t+3}, v{t+10}, v{t+11}',
              f'v_accvgpr_write_b32 a248, v{t+4}', f'v_accvgpr_write_b32 a249, v{t+5}']
        return o

    def tag(self):
        p = self.p
        p.add([WLGA()])
        p(f's_mul_i32 s{sTAG}, s{sTAG}, 1664525')
        p(f's_add_u32 s{sTAG}, s{sTAG}, 1013904223')
        p(f'v_mov_b32 v{vTAG}, s{sTAG}')
        p(f's_add_u32 s{sXCC}, s{sXCC}, s{sTAG}')
        p(f's_cmp_lg_u32 s{sW}, 3')
        p('s_cbranch_scc1 L_HEL')
        p.cond_begin()
        p(f's_lshl_b32 s{sT0}, s{sCL}, 3')
        p(f's_add_u32 s{sT0}, s{sT0}, s{sJ}')
        p(f's_lshl_b32 s{sT0}, s{sT0}, 2')
        p(f'v_mov_b32 v208, s{sXCC}')
        p('s_mov_b64 exec, 1')
        p(f'buffer_store_dword v208, v{vL16}, {srd(S_WS)}, s{sT0} offen offset:{WS_HELLO} sc1')
        p('s_mov_b64 exec, -1')
        p.cond_end()
        p('L_HEL:')

    def p0_compute(self, fill):
        p = self.p
        A, F = 192, 200
        p(f'v_lshlrev_b32 v{F}, 16, v206')
        p(f'v_and_b32 v{F+1}, 0xffff0000, v206')
        p(f'v_mul_f32 v{F+2}, 0xbfb8aa3b, v{F}')
        p(f'v_mul_f32 v{F+3}, 0xbfb8aa3b, v{F+1}')
        p(f'v_exp_f32 v{F+2}, v{F+2}')
        p(f'v_exp_f32 v{F+3}, v{F+3}')
        p(f'v_add_f32 v{F+2}, 1.0, v{F+2}')
        p(f'v_add_f32 v{F+3}, 1.0, v{F+3}')
        p(f'v_rcp_f32 v{F+2}, v{F+2}')
        p(f'v_rcp_f32 v{F+3}, v{F+3}')
        p(f'v_mul_f32 v{F}, v{F}, v{F+2}')
        p(f'v_mul_f32 v{F+1}, v{F+1}, v{F+3}')
        p(f'v_cvt_pk_bf16_f32 v206, v{F}, v{F+1}')
        p(f'v_and_b32 v{F}, 0xffff, v206')
        p(f'v_lshlrev_b32 v{F+1}, 16, v206')
        p(f'v_lshrrev_b32 v{F+2}, 16, v206')
        p(f'v_and_b32 v{F+3}, 0xffff0000, v206')
        dd = []
        for i in range(8):
            q = i >> 1
            for d in range(4):
                for hh in range(2):
                    dd.append(f'v_dot2c_f32_bf16_dpp v{A+2*d+hh}, v{F+2*(i&1)+hh}, v{160+4*i+d} quad_perm:[{q},{q},{q},{q}] row_mask:0xf bank_mask:0xf')
        p.add(spread(dd, fill, self.o.get('pf0', 8), 64))
        for m in range(4): p(f'v_permlane32_swap_b32 v{A+m}, v{A+4+m}')
        for m in range(2): p(f'v_pk_add_f32 {vr(A+2*m,2)}, {vr(A+2*m,2)}, {vr(A+4+2*m,2)}')
        for m in range(2): p(f'v_permlane16_swap_b32 v{A+m}, v{A+2+m}')
        p(f'v_pk_add_f32 {vr(A,2)}, {vr(A,2)}, {vr(A+2,2)}')
        for sh in (8, 4):
            for m in range(2): p(f'v_add_f32_dpp v{A+m}, v{A+m}, v{A+m} row_ror:{sh} row_mask:0xf bank_mask:0xf')
        p(f'ds_write_b64 v207, {vr(A,2)}')
        p.add(self.bar())
        p(f's_cmp_lg_u32 s{sW}, 0')
        p('s_cbranch_scc1 L_P0X')
        p.cond_begin()
        p('s_mov_b64 exec, 0xff')
        for k in range(4): p(f'ds_read_b128 {vr(160+4*k,4)}, v{vMW} offset:{4096+128*k}')
        p('v_pk_add_f32 v[160:161], v[160:161], v[164:165]')
        p('v_pk_add_f32 v[162:163], v[162:163], v[166:167]')
        p('v_pk_add_f32 v[168:169], v[168:169], v[172:173]')
        p('v_pk_add_f32 v[170:171], v[170:171], v[174:175]')
        p('v_pk_add_f32 v[160:161], v[160:161], v[168:169]')
        p('v_pk_add_f32 v[162:163], v[162:163], v[170:171]')
        p('v_cvt_pk_bf16_f32 v160, v160, v161')
        p('v_cvt_pk_bf16_f32 v162, v162, v163')
        p('v_and_b32 v161, 0xffff0000, v160')
        p('v_lshlrev_b32 v160, 16, v160')
        p('v_and_b32 v163, 0xffff0000, v162')
        p('v_lshlrev_b32 v162, 16, v162')
        p(f'v_pk_add_f32 v[160:161], v[160:161], s[{sT2}:{sT3}]')
        p(f'v_pk_add_f32 v[162:163], v[162:163], s[{sT2}:{sT3}]')
        p('v_cvt_pk_bf16_f32 v208, v160, v161')
        p('v_cvt_pk_bf16_f32 v209, v162, v163')
        p(f'buffer_store_dwordx4 v[208:211], v{vL16}, {srd(S_WS)}, s{sT0} offen sc1')
        p('s_mov_b64 exec, -1')
        p.cond_end()
        p('L_P0X:')

    def p0_pre(self):
        A = 192
        o = [f'v_mov_b32 v{A+a}, 0' for a in range(8)]
        o += [f'v_and_b32 v207, 3, v{vLANE}', f'v_lshlrev_b32 v207, 5, v207', f'v_lshl_add_u32 v207, v{vG}, 3, v207',
              f's_lshl_b32 s{sT0}, s{sW}, 7', f's_add_u32 s{sT0}, s{sT0}, {L_MISC+4096}', f'v_add_u32 v207, s{sT0}, v207',
              f's_lshr_b32 s{sT0}, s{sBLK}, 4', f's_cmp_eq_u32 s{sT0}, 1', f's_cselect_b32 s{sT2}, 1.0, 0',
              f's_cmp_eq_u32 s{sT0}, 4', f's_cselect_b32 s{sT2}, 1.0, s{sT2}', f's_mov_b32 s{sT3}, s{sT2}',
              f's_lshl_b32 s{sT0}, s{sBLK}, 7', f's_add_u32 s{sT0}, s{sT0}, {WS_MOD}',
              f'v_mov_b32 v210, v{vTAG}', f'v_mov_b32 v211, v{vTAG}']
        return o

    @staticmethod
    def wq_slot(k): return (k + 6) % 12 if k < 12 else k - 12

    def dma_wq(self, k):
        o = [f's_add_u32 m0, s{sD1}, {self.wq_slot(k)*SLOT}']
        for sec in range(3):
            o.append((f'buffer_load_dwordx4 v{vDQ}, {srd(S_WQ)}, s{sD0} offen offset:{1024*sec} lds', f'wq{k}'))
        if k < 15: o.append(f's_add_u32 s{sD0}, s{sD0}, {32*3072}')
        return o

    def absorb_wq(self, k):
        sl = self.wq_slot(k)
        return [(f'ds_read_b64_tr_b16 {ar(k*12+sec*4+2*h,2)}, v{vTS+sl//4} offset:{(sl%4)*SLOT+h*6144+sec*1024}', f'awq{k}')
                for sec in range(3) for h in range(2)]

    def ln(self):
        o = []
        SB = 192
        for k in range(10): o.append(f'v_mov_b32 v{SB+k}, 0')
        for T in range(5):
            for i in range(4):
                for m in range(4):
                    x = X(i, T)+4+m
                    o += [f'v_dot2c_f32_bf16 v{SB+2*T}, s{sONES}, v{x}', f'v_dot2c_f32_bf16 v{SB+2*T+1}, v{x}, v{x}']
            for i in range(4):
                for m in range(4):
                    x = X(i, T)+4+m; d = X(i, T)+2*m
                    o += [f'v_lshlrev_b32 v{d}, 16, v{x}', f'v_and_b32 v{d+1}, 0xffff0000, v{x}']
        for sh in (8, 4, 2, 1):
            for k in range(10):
                o.append(f'v_add_f32_dpp v{SB+k}, v{SB+k}, v{SB+k} row_ror:{sh} row_mask:0xf bank_mask:0xf')
        inv = '0x3b000000'
        for T in range(5): o.append(f'v_mul_f32 v{SB+2*T}, {inv}, v{SB+2*T}')
        for T in range(5): o.append(f'v_mul_f32 v{SB+2*T+1}, {inv}, v{SB+2*T+1}')
        for T in range(5): o.append(f'v_fma_f32 v{SB+2*T+1}, -v{SB+2*T}, v{SB+2*T}, v{SB+2*T+1}')
        for T in range(5): o.append(f'v_max_f32 v{SB+2*T+1}, 0, v{SB+2*T+1}')
        for T in range(5): o.append(f'v_add_f32 v{SB+2*T+1}, 0x3727c5ac, v{SB+2*T+1}')
        for T in range(5): o.append(f'v_rsq_f32 v{SB+2*T+1}, v{SB+2*T+1}')
        for T in range(5): o.append(f'v_mul_f32_e64 v{SB+2*T}, -v{SB+2*T}, v{SB+2*T+1}')
        for i in range(4):
            for T in range(5):
                for m in range(4):
                    d = X(i, T)+2*m
                    o.append(f'v_pk_fma_f32 {vr(d,2)}, {vr(d,2)}, {vr(SB+2*T,2)}, {vr(SB+2*T,2)} op_sel:[0,1,0] op_sel_hi:[1,1,0]')
        return o

    def tagged_loads(self, dsts, soff, offs):
        return [f'buffer_load_dwordx4 {vr(d,4)}, v{vL16}, {srd(S_WS)}, s{so} offen sc1' for d, so in zip(dsts, soff)]

    def tagged_check(self, dsts, soff):
        p = self.p
        L = p.label('L_PT'); D = p.label('L_PD')
        def chk():
            p(f'v_cmp_ne_u32 vcc, s{sTAG}, v{dsts[0]+2}')
            for d in dsts[1:]:
                p(f'v_cmp_ne_u32 s[{sT4}:{sT5}], s{sTAG}, v{d+2}')
                p(f's_or_b64 vcc, vcc, s[{sT4}:{sT5}]')
            p(f's_cbranch_vccz {D}')
        chk()
        p.cond_begin()
        p(f's_mov_b32 s{sSPIN}, 20000')
        p(f'{L}:')
        p.add(self.tagged_loads(dsts, soff, None))
        p('s_waitcnt vmcnt(0)')
        chk()
        p(f's_sub_u32 s{sSPIN}, s{sSPIN}, 1')
        p(f's_cbranch_scc0 {L}')
        p.cond_end()
        p(f'{D}:')

    def mod_read(self, i):
        b = 176 + 16*(i & 1)
        return [(f'ds_read_b128 {vr(b+8*v+4*hh,4)}, v{vMR} offset:{2048*v+512*i+16*hh}', f'mr{i}') for v in (1, 0) for hh in range(2)]

    def modulate(self, i, packed):
        o = []
        b = 176 + 16*(i & 1)
        for T in range(5):
            x = X(i, T)
            if packed:
                o += [f'v_pk_fma_f32 {vr(x+2*m,2)}, {vr(x+2*m,2)}, {vr(b+8+2*m,2)}, {vr(b+2*m,2)}' for m in range(4)]
            else:
                o += [f'v_fma_f32 v{x+m}, v{x+m}, v{b+8+m}, v{b+m}' for m in range(8)]
            o += [f'v_cvt_pk_bf16_f32 v{x+m}, v{x+2*m}, v{x+2*m+1}' for m in range(4)]
            o.append(f'ds_write_b128 v{vHW+(i>>1)}, {vr(x,4)} offset:{(i&1)*20480+T*4096}')
        return o

    def dma_priv(self, S, soff_reg, lds_off, tag):
        out = [f's_add_u32 m0, s{sMW}, {lds_off}']
        for b in range(4):
            out.append((f'buffer_load_dwordx4 v{vDP+b}, {srd(S)}, s{soff_reg} offen offset:{1024*b} lds', tag))
        out.append(f's_add_u32 s{soff_reg}, s{soff_reg}, 32768')
        return out

    def absorb_priv(self, lds_off, dst, tag):
        return [(f'ds_read_b64_tr_b16 {rr(dst,2,4*ct+2*h)}, v{vPB+(ct>>1)} offset:{lds_off+h*2048+8*(ct&1)}', tag)
                for ct in range(4) for h in range(2)]

    W1ADDR = [0, SLOT, 2*SLOT, 3*SLOT, 114688, 114688+SLOT, 114688+2*SLOT]
    def w1_addr(self, k):
        nC = self.o['nC']
        if k < 7: return self.W1ADDR[k]
        if k < 7+nC: return L_WO + (k-7)*SLOT
        if k < 10+nC: return 114688 + (k-7-nC)*SLOT
        return (k-10-nC)*SLOT
    def dma_w1(self, k):
        o = []
        for sec in range(3):
            o += [f's_add_u32 m0, s{sD1}, {self.w1_addr(k) + sec*896}',
                  (f'buffer_load_dwordx4 v{vDW1}, {srd(S_W1)}, s{sD2} offen offset:{128*sec} lds', f'w1{k}')]
        if k < 15: o.append(f's_add_u32 s{sD2}, s{sD2}, {32*2752}')
        return o
    def absorb_w1(self, ks, tmp):
        o = []; cur = None
        for k in ks:
            a = self.w1_addr(k)
            if a + 6144 <= 65535: base, br = 0, vT1
            else:
                if cur is None or not (0 <= a - cur and a - cur + 6144 <= 65535):
                    cur = a
                    o += [f'v_add_u32 v{tmp+m}, {cur}, v{vT1+m}' for m in range(3)]
                base, br = cur, tmp
            o += [(f'ds_read_b64_tr_b16 {ar(k*12+m*4+2*h,2)}, v{br+m} offset:{a-base+h*6144}', f'aw1{k}') for m in range(3) for h in range(2)]
        return o

    ACCQ = [0, 4, 8, 12]; ACCK = [16, 20, 24, 28, 32]; ACCV = [36, 160, 164, 168, 172]
    MK = 80
    def p1_gemm(self):
        p = self.p
        def fr(T, s): return ('a', 192+20*(s & 1)+4*T) if s < 5 else ('v', 40+20*(s & 1)+4*T)
        def rd(T, s):
            i = s >> 2
            return (f'ds_read_b128 {rr(fr(T,s),4)}, v{vHR+(s&1)+2*(i>>1)} offset:{(i&1)*20480+T*4096+(s&3)*1024}', f'fr{s}')
        p.add([rd(T, 0) for T in range(5)])
        steps = []
        for s in range(16):
            ms = []
            for T in range(5):
                h = rr(fr(T, s), 4)
                C = lambda a: '0' if s == 0 else vr(a, 4)
                ms.append(f'{MFMA} {vr(self.ACCK[T],4)}, {ar(s*12+4,4)}, {h}, {C(self.ACCK[T])}')
                ms.append(f'{MFMA} {vr(self.ACCV[T],4)}, {h}, {ar(s*12+8,4)}, {C(self.ACCV[T])}')
                if T > 0: ms.append(f'{MFMA} {vr(self.ACCQ[T-1],4)}, {ar(s*12,4)}, {h}, {C(self.ACCQ[T-1])}')
            steps.append(ms)
        head = [[] for _ in range(16)]; tail = [[] for _ in range(16)]
        def split(lst, n): return [lst[k*len(lst)//n:(k+1)*len(lst)//n] for k in range(n)]
        for i in (1, 2, 3):
            parts = split(self.modulate(i, False), 3)
            if i > 1: tail[4*(i-1)-1] += self.mod_read(i)
            for k in range(3): tail[4*(i-1)+k] += parts[k]
        tail[1] += [[WVM('wq8'), 's_barrier']]
        tail[2] += self.absorb_wq(6) + self.absorb_wq(7)
        head[3] += self.absorb_wq(8) + [[WVM('wq11'), WLGA(), 's_barrier']]
        tail[3] += self.dma_wq(12)
        tail[4] += self.dma_wq(13) + self.absorb_wq(9)
        tail[5] += self.dma_wq(14) + self.absorb_wq(10)
        tail[6] += self.absorb_wq(11)
        head[7] += [[WVM('wq14'), WLGA(), 's_barrier']]
        wo = [f's_lshl_b32 s{sD0}, s{sW}, 17', f's_lshl_b32 s{sT0}, s{sJ}, 7', f's_add_u32 s{sD0}, s{sD0}, s{sT0}']
        tail[7] += self.dma_wq(15) + wo + self.dma_priv(S_WO, sD0, 0, 'wo0')
        for k in range(3):
            tail[8+k] += self.dma_priv(S_WO, sD0, 4096*(k+1), f'wo{k+1}') + self.absorb_wq(12+k)
        head[11] += [[WVM('wq15'), WLGA(), 's_barrier']]
        tail[11] += self.absorb_wq(15) + self.dma_w1(0)
        if self.o['r3']:
            tail[self.o['r3']] += [f'buffer_load_dword v{vJUNK}, v{vTW2}, {srd(S_W2)}, 0 offen']
        tail[12] += self.dma_w1(1) + [f'v_accvgpr_read_b32 v{self.MK+k}, a{232+k}' for k in range(18)]
        hello = [f'v_and_b32 v98, 7, v{vLANE}', f'v_lshlrev_b32 v98, 2, v98', f's_lshl_b32 s{sT0}, s{sCL}, 5',
                 f'buffer_load_dword v98, v98, {srd(S_WS)}, s{sT0} offen offset:{WS_HELLO} sc1']
        tail[13] += hello + self.dma_w1(2) + [f'v_mov_b32 v100, s{sONES}', f'v_mov_b32 v101, s{sONES}']
        tail[14] += [f's_add_u32 s{sA0}, s{sXB}, 4096', f's_add_u32 s{sA1}, s{sXB}, 8192'] + self.tagged_loads([208, 212], [sA0, sA1], None)
        tail[14] += [f'buffer_load_dwordx4 {vr(216+4*pp,4)}, v{vXO}, {srd(S_X)}, s{sXO} offen offset:{64*pp}' for pp in range(2)]
        tail[15] += [f's_lshl_b32 s{sT0}, s{sJ}, 11', f's_lshl_b32 s{sT1}, s{sW}, 9', f's_add_u32 s{sT0}, s{sT0}, s{sT1}',
                     f's_add_u32 s{sT2}, s{sT0}, s{sCB}', f's_add_u32 s{sT3}, s{sT2}, 32768']
        for s in range(16):
            f = head[s] + ([rd(T, s+1) for T in range(5)] if s < 15 else []) + tail[s]
            if s == 0:
                p.add(spread(steps[s], f, 0, 14))
            else:
                p.add([WLG(f'fr{s}')])
                p.add(spread(steps[s], f, 0, 14))

    def attention(self, sc):
        p = self.p
        QB, KB, VB = 104, 112, 122
        MK = self.MK
        vpos = {4: 0, 2: 2, 0: 4, 1: 6, 3: 8}
        SP, SC = 40, 56
        prevT = [0, 0, 1, 2]; biasP = [MK+8, MK+12, MK+4, MK+4]
        def cv(d, a): return [f'v_cvt_pk_bf16_f32 v{d}, v{a}, v{a+1}', f'v_cvt_pk_bf16_f32 v{d+1}, v{a+2}, v{a+3}']
        o = []
        o += cv(KB, self.ACCK[0])
        for t in range(4):
            o += cv(KB+2*(t+1), self.ACCK[t+1]) + cv(QB+2*t, self.ACCQ[t])
        vc = []
        for T in range(5): vc += cv(VB+vpos[T], self.ACCV[T])
        ms = []
        for t in range(4):
            ms.append(f'v_mfma_f32_16x16x16_bf16 {vr(SP+4*t,4)}, {vr(KB+2*prevT[t],2)}, {vr(QB+2*t,2)}, {vr(biasP[t],4)}')
            ms.append(f'v_mfma_f32_16x16x16_bf16 {vr(SC+4*t,4)}, {vr(KB+2*(t+1),2)}, {vr(QB+2*t,2)}, {vr(MK,4)}')
        o += interleave(ms, vc, every=1, per=2)
        M = 72
        for t in range(4):
            o += [f'v_max_f32 v{SP+4*t+r}, v{SP+4*t+r}, v{SC+4*t+r}' for r in range(4)]
            o += [f'v_max3_f32 v{M+t}, v{SP+4*t}, v{SP+4*t+1}, v{SP+4*t+2}', f'v_max_f32 v{M+t}, v{M+t}, v{SP+4*t+3}']
            if t == 1: hold = [f'v_permlane32_swap_b32 v{M}, v{M+1}', f'v_max_f32 v{M}, v{M}, v{M+1}']
            if t == 2: o += hold
        o += [f'v_permlane32_swap_b32 v{M+2}, v{M+3}', f'v_max_f32 v{M+2}, v{M+2}, v{M+3}',
              f'v_permlane16_swap_b32 v{M}, v{M+2}', f'v_max_f32 v{M}, v{M}, v{M+2}',
              f'v_mul_f32 v{M+4}, 0xbeb8aa3b, v{M}', f'v_mul_f32 v{M}, 0xbeb8aa3b, v{M}',
              f'v_permlane16_swap_b32 v{M}, v{M+4}', f'v_mov_b32 v{M+2}, v{M}', f'v_mov_b32 v{M+6}, v{M+4}',
              f'v_permlane32_swap_b32 v{M}, v{M+2}', f'v_permlane32_swap_b32 v{M+4}, v{M+6}']
        PB = 0
        OA = [VB+4, VB+2, VB+6, VB+0]
        for t in range(4):
            o += [f'v_pk_fma_f32 {vr(SP+4*t+2*hh,2)}, {vr(SP+4*t+2*hh,2)}, s[{sK}:{sK+1}], {vr(M+2*t,2)} op_sel_hi:[1,1,0]' for hh in range(2)]
        for t in range(4):
            o += [f'v_exp_f32 v{SP+4*t+r}, v{SP+4*t+r}' for r in range(4)]
            if t > 0:
                u = t-1
                o += [f'v_mfma_f32_16x16x16_bf16 {vr(SC+4*u,4)}, v[100:101], {vr(16+2*u,2)}, 0',
                      f'{MFMA} {vr(SP+4*u,4)}, {vr(OA[u],4)}, {vr(PB+4*u,4)}, 0']
            o += cv(16+2*t, SP+4*t)
            pp, pc = (PB+4*t, PB+4*t+2) if (t & 1) == 0 else (PB+4*t+2, PB+4*t)
            for hh in range(2):
                o += [f'v_bfi_b32 v{pp+hh}, v{MK+16+hh}, 0, v{16+2*t+hh}', f'v_and_b32 v{pc+hh}, v{MK+16+hh}, v{16+2*t+hh}']
        o += [f'v_rcp_f32 v{SC}, v{SC}', f'v_rcp_f32 v{SC+4}, v{SC+4}',
              f'v_mfma_f32_16x16x16_bf16 {vr(SC+12,4)}, v[100:101], {vr(22,2)}, 0',
              f'{MFMA} {vr(SP+12,4)}, {vr(OA[3],4)}, {vr(PB+12,4)}, 0']
        for t in range(4):
            if t == 2: o += [f'v_rcp_f32 v{SC+8}, v{SC+8}', f'v_rcp_f32 v{SC+12}, v{SC+12}']
            o += [f'v_mul_f32 v{SP+4*t+r}, v{SP+4*t+r}, v{SC+4*t}' for r in range(4)] if t < 2 else \
                 [f'v_pk_mul_f32 {vr(SP+4*t+2*hh,2)}, {vr(SP+4*t+2*hh,2)}, {vr(SC+4*t,2)} op_sel_hi:[1,0]' for hh in range(2)]
            o += cv(24+2*t, SP+4*t)
            if t & 1:
                b = 24+2*(t-1)
                o += [f'v_permlane16_swap_b32 v{b}, v{b+2}', f'v_permlane16_swap_b32 v{b+1}, v{b+3}',
                      f'buffer_store_dwordx4 {vr(b,4)}, v{vSTO}, {srd(S_WS)}, s{sT2 if t==1 else sT3} offen{sc}']
        return o

    def publish(self, ph, sc, between=()):
        p = self.p
        p(f's_lshl_b32 s{sT0}, s{sJ}, 2')
        p(f's_add_u32 s{sT0}, s{sT0}, s{sCB}')
        p(f's_add_u32 s{sT0}, s{sT0}, {C_FL}')
        p.add(between)
        p(f's_cmp_lg_u32 s{sW}, 0')
        p.add([WVMA()])
        p.add(self.bar())
        L = p.label('L_PUB')
        p(f's_cbranch_scc1 {L}')
        p.cond_begin()
        p('s_mov_b64 exec, 1')
        p(f'buffer_store_dword v{vTAG}, v{vL16}, {srd(S_WS)}, s{sT0} offen offset:{ph*128} sc1')
        p('s_mov_b64 exec, -1')
        p.cond_end()
        p(f'{L}:')

    def wait_flags(self, ph, tmp):
        p = self.p
        L = p.label('L_WF'); D = p.label('L_WD'); D2 = p.label('L_WE')
        p(f's_cmp_lg_u32 s{sW}, 0')
        p(f's_cbranch_scc1 {D2}')
        p.cond_begin()
        p(f's_add_u32 s{sT0}, s{sCB}, {C_FL}')
        p(f'v_lshlrev_b32 v{tmp+1}, 2, v{vLANE}')
        p(f's_mov_b32 s{sSPIN}, 20000')
        p('s_mov_b64 exec, 0xff')
        p(f'{L}:')
        p(f'buffer_load_dword v{tmp}, v{tmp+1}, {srd(S_WS)}, s{sT0} offen offset:{ph*128} sc1')
        p('s_waitcnt vmcnt(0)')
        p(f'v_cmp_ne_u32 vcc, s{sTAG}, v{tmp}')
        p(f's_cbranch_vccz {D}')
        p(f's_sub_u32 s{sSPIN}, s{sSPIN}, 1')
        p(f's_cbranch_scc0 {L}')
        p(f'{D}:')
        p('s_mov_b64 exec, -1')
        p.cond_end()
        p(f'{D2}:')
        p.add([WVMA()])
        p.add(self.bar())

    def ks_setup(self, region, tile_stride, wave_stride, areg):
        o = [f's_mul_i32 s{sT0}, s{sW}, {wave_stride}', f's_add_u32 s{sT0}, s{sT0}, s{sCB}', f's_add_u32 s{sT0}, s{sT0}, {region}']
        for n in range(4):
            o += [f's_add_u32 s{sT1}, s{sW}, {n+1}', f's_and_b32 s{sT1}, s{sT1}, 3', f's_mul_i32 s{sN+n}, s{sT1}, {tile_stride}',
                  f's_add_u32 s{sN+n}, s{sN+n}, s{sT0}', f's_mul_i32 s{sT1}, s{sT1}, {3*4096}',
                  f'v_add_u32 v{areg+n}, s{sT1}, v{vL16}']
        return o

    def ksplit(self, sc, nsteps, wreg, breg, acc, part, areg, lead, latfill, extra_vm=(), last_oob=False, base=None):
        p = self.p
        loads = []
        for n in range(4):
            for i in range(nsteps):
                l = []
                if i and i % 4 == 0: l.append(f's_add_u32 s{sN+n}, s{sN+n}, 4096')
                if last_oob and i == nsteps-1: l.append(f's_add_u32 s{sN+n}, s{sN+n}, s{sA0}')
                l.append(f'buffer_load_dwordx4 {rr(breg(n*nsteps+i),4)}, v{vL16}, {srd(S_WS)}, s{sN+n} offen offset:{(i%4)*1024}{sc}')
                loads.append(l)
        loads += list(extra_vm)
        p.add(spread(loads[:lead], latfill))
        li = lead
        wr = lambda n: [f'ds_write_b128 v{areg+n}, {vr(acc+16*n+4*ct,4)} offset:{4096*n+1024*ct}' for ct in range(4)]
        rdp = lambda n, dst: [f'ds_read_b128 {vr(dst+4*ct,4)}, v{areg+3} offset:{4096*n+1024*ct}' for ct in range(4)]
        for n in range(4):
            ms = []
            for i in range(nsteps):
                g = []
                for ct in range(4):
                    a = acc+16*n+4*ct
                    c0 = vr(a, 4) if (i or n == 3) else '0'
                    g.append(f'{MFMA} {vr(a,4)}, {wreg(i,ct)}, {rr(breg(n*nsteps+i),4)}, {c0}')
                if li < len(loads):
                    g.insert(1, loads[li]); li += 1
                ms += g
            f = []
            if n >= 1: f += wr(n-1)
            if n == 2: f = f + [self.bar(), rdp(0, acc+48), rdp(1, part)]
            if n == 3:
                f = f + [self.bar(), rdp(2, part+16)]
                f2 = [f'v_add_f32 v{part+k}, v{part+k}, v{part+16+k}' for k in range(16)] + (base or [])
            if n == 3 and nsteps > 4:
                h = len(ms)//2
                ms = spread(ms[:h], f, 4, h) + spread(ms[h:], f2, 8, len(ms)-h)
                p.add(ms)
            elif n == 3:
                p.add(spread(ms, f, 4, len(ms)))
                p.add([f'v_pk_add_f32 {vr(part+2*k,2)}, {vr(part+2*k,2)}, {vr(part+16+2*k,2)}' for k in range(8)])
            else:
                p.add(spread(ms, f, 4, max(len(ms)-8, 12)))
        for l in loads[li:]: p.add(l)

    def unpack8(self, dst, src):
        o = []
        for k in range(8):
            o += [f'v_lshlrev_b32 v{dst+2*k}, 16, v{src+k}', f'v_and_b32 v{dst+2*k+1}, 0xffff0000, v{src+k}']
        return o

    def build(self):
        p = self.p
        self.entry()
        p.add(self.stamp('karg'))
        p('s_cmp_ge_u32 s2, 96')
        p('s_cbranch_scc1 L_A')
        p(f'buffer_load_dword v206, v1, {srd(S_C)}, s{sT1} offen')
        for i in range(8):
            p(f'buffer_load_dwordx4 {vr(160+4*i,4)}, v3, {srd(S_WM)}, s{sT0} offen nt')
            if i < 7: p(f's_add_u32 s{sT0}, s{sT0}, 6144')
        p('L_A:')
        xp, xn = self.o['xp'], self.o['xn']
        for T in range(xp): p.add(self.xload(T))
        p.save('prod')
        p('s_cmp_lt_u32 s2, 96')
        p('s_cbranch_scc1 L_B')
        for T in range(xp, xn): p.add(self.xload(T))
        p('L_B:')
        p.add(self.stamp('xiss'))
        self.entry2()
        p.add(self.precompute())
        p.add(self.touch_pre())
        self.tag()
        p.add(self.stamp('pre'))
        p.save('np')
        p('s_cmp_ge_u32 s2, 96')
        p('s_cbranch_scc1 L_C')
        p.restore('prod')
        p.add(self.p0_pre())
        self.p0_compute(sum([self.xload(T) for T in range(xp, xn)], []))
        p('L_C:')
        p.restore('np')
        p.add(self.stamp('p0done'))
        ln = self.ln()
        nb, tq0 = self.o['nb'], self.o['tq0']
        for T in range(xn, 5): p.add(self.xload(T))
        for b in range(tq0): p.add(self.twq(b))
        p.add(self.stamp('tq'))
        fill = []
        nt = tq0
        for k in range(12):
            d = self.dma_wq(k)
            fill += [[d[0], d[1]], d[2], d[3:]]
            if nt < nb and (k+1) % self.o.get('tqe', 2) == 0:
                fill.append(self.twq(nt)); nt += 1
            if k == self.o['lt']: fill += self.late_touch()
        n = len(ln)
        ix4 = max(i for i, t in enumerate(ln) if t.startswith('v_dot2c'))
        if self.diag: ln = ln[:11] + [self.stamp('x0')] + ln[11:ix4+1] + [self.stamp('x4')] + ln[ix4+1:]
        body = spread(ln, fill, max(10, int(n*self.o['d0'])), int(n*self.o['d1']))
        nb_ = len(body)
        ip = int(nb_*self.o['pollpos']); ib = int(nb_*self.o['ba'])
        while not (isinstance(body[ip], str) and body[ip].startswith('v_')): ip += 1
        while not (isinstance(body[ib], str) and body[ib].startswith('v_')): ib += 1
        tailb = []
        for it in body[ib:]:
            if tailb and isinstance(tailb[-1], list) and tailb[-1][0] == 's_mov_b64 exec, 3' and tailb[-1][-1] != 's_mov_b64 exec, -1': tailb[-1].append(it)
            elif it == 's_mov_b64 exec, 3': tailb.append([it])
            else: tailb.append(it)
        body = body[:ip] + self.tagged_loads([vPOLL], [sXB], None) + body[ip:ib] + [WVM('wq2'), 's_barrier'] + \
            spread(tailb, self.absorb_wq(0)+self.absorb_wq(1)+self.absorb_wq(2))
        p.add(body)
        p.add(self.stamp('lndone'))
        self.tagged_check([vPOLL], [sXB])
        p.add(self.stamp('moda'))
        p.add(self.flush())
        p(f'v_and_b32 v{vPOLL+3}, 0xffff0000, v{vPOLL+1}')
        p(f'v_lshlrev_b32 v{vPOLL+2}, 16, v{vPOLL+1}')
        p(f'v_and_b32 v{vPOLL+1}, 0xffff0000, v{vPOLL}')
        p(f'v_lshlrev_b32 v{vPOLL}, 16, v{vPOLL}')
        p(f'ds_write_b128 v{vMW}, {vr(vPOLL,4)}')
        p.add([WVM('wq5')])
        p.add(self.bar())
        p.add(self.mod_read(0) + self.mod_read(1) + self.absorb_wq(3) + self.absorb_wq(4) + self.absorb_wq(5))
        p.add(self.modulate(0, True))
        p.add(self.bar())
        p.add(self.stamp('hready'))
        self.p1_gemm()
        p.add(self.stamp('p1gemm'))
        p(f'v_cmp_ne_u32 vcc, s{sXCC}, v98')
        p.add(self.bar())
        st = (self.nst, self.flushed)
        if self.o['fast']:
            p('s_cbranch_vccnz L_SLOW')
            p.save('split')
            self.tail('')
            p('L_FASTEND:')
            p('L_SLOW:')
            p.restore('split')
            self.nst, self.flushed = st
            self.tail(' sc1')
        else:
            self.tail(' sc1')
            p('L_FASTEND:')
        p('L_END:')
        p('s_endpgm')
        return p.finalize()

    def tail(self, sc):
        p = self.p
        nC = self.o['nC']
        att = self.attention(sc)
        d = []
        for k in range(3, 7):
            x = self.dma_w1(k); d += [x[0:2], x[2:4], x[4:]]
        p.add(spread(att, d, 0, 130))
        p.add(self.stamp('attn'))
        ab = []
        for i in range(4): ab += [WVM(f'wo{i}')] + self.absorb_priv(4096*i, ('a', 192+16*i), f'awo{i}')
        self.publish(0, sc, ab)
        p.add(self.stamp('pub1'))
        d = []
        for k in range(7, 7+nC):
            x = self.dma_w1(k); d += [x[0:2], x[2:4], x[4:]]
        work = self.absorb_w1(range(0, 7), 128) + self.ks_setup(C_O, 16384, 4096, 160)
        work += [f's_lshl_b32 s{sT2}, s{sW}, 9', f's_add_u32 s{sT2}, s{sT2}, {L_MISC}', f'v_lshlrev_b32 v131, 3, v{vLANE}',
                 f'v_add_u32 v131, s{sT2}, v131',
                 f's_lshl_b32 s{sT0}, s{sJ}, 7', f's_add_u32 s{sT0}, s{sT0}, {L_MISC}', f'v_lshlrev_b32 v132, 4, v{vG}',
                 f'v_add_u32 v132, s{sT0}, v132'] + self.unpack8(144, 216)
        self.tagged_check([208, 212], [sA0, sA1])
        p.add(spread(work, d, 0, len(work)) if d else work)
        p('ds_write_b64 v131, v[208:209]')
        p('ds_write_b64 v131, v[212:213] offset:2048')
        self.wait_flags(0, 128)
        p.add(self.stamp('flag1'))
        GA, CB, GBP = 164, 180, 196
        lat = [f'ds_read_b128 {vr(208+8*k+4*pp,4)}, v132 offset:{off+64*pp}' for k, off in enumerate((0, 2048)) for pp in range(2)]
        lat += [f'ds_read_b128 {vr(GBP+4*pp,4)}, v132 offset:{3072+64*pp}' for pp in range(2)]
        lat += self.absorb_w1(range(7, 7+nC), 128) + self.unpack8(GA, 208) + self.unpack8(CB, 216)
        lat += [f's_lshl_b32 s{sT0}, s{sW}, 14', f's_lshl_b32 s{sT1}, s{sJ}, 11', f's_add_u32 s{sT0}, s{sT0}, s{sT1}',
                f's_add_u32 s{sT0}, s{sT0}, s{sCB}', f's_add_u32 s{sT2}, s{sT0}, {C_X1}',
                f's_lshl_b32 s{sT0}, s{sW}, 10', f's_lshr_b32 s{sT1}, s{sJ}, 1', f's_lshl_b32 s{sT1}, s{sT1}, 8', f's_add_u32 s{sT0}, s{sT0}, s{sT1}',
                f's_and_b32 s{sT1}, s{sJ}, 1', f's_lshl_b32 s{sT1}, s{sT1}, 3', f's_add_u32 s{sT0}, s{sT0}, s{sT1}',
                f's_add_u32 s{sT0}, s{sT0}, s{sCB}', f's_add_u32 s{sT3}, s{sT0}, {C_ST}',
                f'v_lshrrev_b32 v204, 1, v{vG}', f'v_lshlrev_b32 v204, 2, v204', f'v_lshl_add_u32 v204, v{vC}, 4, v204',
                'v_mov_b32 v206, 0', 'v_mov_b32 v207, 0']
        ex = []
        for k in range(7+nC, min(10+nC, 16)):
            x = self.dma_w1(k); ex += [x[0:2], x[2:4], x[4:]]
        self.ksplit(sc, 4, lambda i, ct: ar(192+16*i+4*ct, 4), lambda k: ('v', 4*k), 64, 0, 160, 8, lat, ex)
        p.add(self.stamp('p2gemm'))
        Y = 112; X1 = 216
        for k in range(8): p(f'v_pk_add_f32 {vr(Y+2*k,2)}, {vr(Y+2*k,2)}, {vr(2*k,2)}')
        for k in range(8): p(f'v_pk_fma_f32 {vr(Y+2*k,2)}, {vr(Y+2*k,2)}, {vr(GA+2*k,2)}, {vr(144+2*k,2)}')
        for k in range(8): p(f'v_cvt_pk_bf16_f32 v{X1+k}, v{Y+2*k}, v{Y+2*k+1}')
        for k in range(8): p(f'v_pk_mul_f32 {vr(Y+2*k,2)}, {vr(Y+2*k,2)}, {vr(CB+2*k,2)}')
        for pp in range(2):
            for k in range(4*pp, 4*pp+4): p(f'v_cvt_pk_bf16_f32 v{32+k}, v{Y+2*k}, v{Y+2*k+1}')
            p(f'buffer_store_dwordx4 {vr(32+4*pp,4)}, v{vL16}, {srd(S_WS)}, s{sT2} offen offset:{1024*pp}{sc}')
        for k in range(8):
            p(f'v_dot2c_f32_bf16 v206, s{sONES}, v{X1+k}')
            p(f'v_dot2c_f32_bf16 v207, v{X1+k}, v{X1+k}')
        p('v_permlane32_swap_b32 v206, v207')
        p('v_add_f32 v206, v206, v207')
        p('v_mov_b32 v207, v206')
        p('v_permlane16_swap_b32 v206, v207')
        p('v_add_f32 v206, v206, v207')
        p(f'buffer_store_dword v206, v204, {srd(S_WS)}, s{sT3} offen{sc}')
        U, V = 128, 140
        nready = 7+nC
        uvr = [f'v_and_b32 v204, 8, v{vC}', f'v_lshlrev_b32 v204, 7, v204', f'v_sub_u32 v204, {L_MISC+2048}, v204',
               f'v_lshl_add_u32 v204, v{vG}, 4, v204'] + [f'ds_read_b128 {vr(48+4*s,4)}, v204 offset:{64*s}' for s in range(16)]
        uvm = lambda ss: [f'{MFMA} {vr(U+4*m,4)}, {ar(s*12+4*m,4)}, {vr(48+4*s,4)}, {"0" if s==0 else vr(U+4*m,4)}' for s in ss for m in range(3)]
        setup2 = [f's_lshl_b32 s{sMW}, s{sW}, 12', f's_add_u32 s{sMW}, s{sMW}, {L_W2}',
                  f's_mul_i32 s{sD0}, s{sW}, {11*32768}', f's_lshl_b32 s{sT1}, s{sJ}, 7', f's_add_u32 s{sD0}, s{sD0}, s{sT1}',
                  f'v_add_u32 v{vPB}, s{sMW}, v{vTP}', f'v_xor_b32 v{vPB+1}, 64, v{vPB}']
        self.publish(1, sc, uvr + setup2 + uvm(range(0, 6)))
        p.add(self.stamp('pub2'))
        w2reg = lambda i: ('a', 192+16*i) if i < 4 else ('a', 16*(i-4))
        dw2 = lambda i: self.dma_priv(S_W2, sD0, 16384*(i % 4), f'w2{i}')
        aw2 = lambda i: [WVM(f'w2{i}')] + self.absorb_priv(16384*(i % 4), w2reg(i), f'aw2{i}')
        d = []
        late = list(range(10+nC, 16))
        for k in late:
            x = self.dma_w1(k); d += [x[0:2], x[2:4], x[4:]]
        for i in range(3):
            x = dw2(i); d += [x[0:2], x[2], x[3], x[4:]]
        mid = list(range(nready, min(10+nC, 16)))
        work = self.absorb_w1(mid, 0) + uvm(range(6, min(10+nC, 16)))
        p.add(spread(work, d, 0, len(work)))
        if late:
            p.add([WVM(f'w1{late[-1]}'), 's_barrier'])
            p.add(self.absorb_w1(late, 0) + uvm(late))
        p(f's_lshl_b32 s{sT2}, s{sW}, 14')
        p(f's_add_u32 s{sT3}, s{sT2}, s{sCB}')
        p(f's_add_u32 s{sT3}, s{sT3}, {C_X1}')
        p(f's_add_u32 s{sA0}, s{sCB}, {C_ST}')
        for k in range(12): p(f'v_mov_b32 v{V+k}, v{U+k}')
        for k in range(12): p(f'v_mov_b32_dpp v{V+k}, v{U+k} row_ror:8 row_mask:0xf bank_mask:0x3')
        for k in range(12): p(f'v_mov_b32_dpp v{U+k}, v{U+k} row_ror:8 row_mask:0xf bank_mask:0xc')
        self.wait_flags(1, 0)
        p.add(self.stamp('flag2'))
        p.add(self.flush())
        STT = 152; TT = 80; FR = 48
        xl = []
        for s in range(16):
            l = []
            if s % 4 == 0:
                if s: l.append(f's_add_u32 s{sT3}, s{sT3}, 4096')
                l.append(f's_add_u32 m0, s{sT2}, {1024*s}')
            l.append((f'buffer_load_dwordx4 v{vL16}, {srd(S_WS)}, s{sT3} offen offset:{1024*(s%4)}{sc} lds', f'x1{s}'))
            xl.append(l)
        stl = [f'buffer_load_dwordx4 {vr(STT+4*t,4)}, v{vL16}, {srd(S_WS)}, s{sA0} offen offset:{1024*t}{sc}' for t in range(4)]
        hs = [[f's_cmp_ge_u32 s{sJ}, 3', f's_cselect_b32 s{sT1}, 3, 99'], f's_mul_i32 s{sT0}, s{sW}, {3*512}',
              f's_lshl_b32 s{sN}, s{sU0}, 10', f's_add_u32 s{sT0}, s{sT0}, s{sN}', f's_add_u32 s{sT0}, s{sT0}, s{sCB}',
              f's_add_u32 s{sN}, s{sT0}, {C_H}', [f's_cmp_eq_u32 s{sW}, s{sT1}', f's_cselect_b32 s{sN+1}, {OOB}, s{sN}'],
              f's_add_u32 s{sN+2}, s{sN}, {2*H_TILE}', f's_add_u32 s{sN+3}, s{sN+1}, {2*H_TILE}']
        p.add(spread(xl[:8], aw2(0)+aw2(1)+aw2(2)+hs))
        def rd(t, s): return (f'ds_read_b128 {vr(FR+16*(s&1)+4*t,4)}, v{vL16} offset:{t*16384+s*1024}', f'f3{s}')
        st = []
        for t in range(4):
            st += [f'v_add_f32 v{STT+4*t}, v{STT+4*t}, v{STT+4*t+2}', f'v_add_f32 v{STT+4*t+1}, v{STT+4*t+1}, v{STT+4*t+3}']
        a, b = STT, STT+1
        st += [f'v_permlane32_swap_b32 v{a}, v{a+4}', f'v_permlane32_swap_b32 v{b}, v{b+4}',
               f'v_permlane32_swap_b32 v{a+8}, v{a+12}', f'v_permlane32_swap_b32 v{b+8}, v{b+12}',
               f'v_add_f32 v{a}, v{a}, v{a+4}', f'v_add_f32 v{b}, v{b}, v{b+4}',
               f'v_add_f32 v{a+8}, v{a+8}, v{a+12}', f'v_add_f32 v{b+8}, v{b+8}, v{b+12}',
               f'v_permlane16_swap_b32 v{a}, v{a+8}', f'v_permlane16_swap_b32 v{b}, v{b+8}',
               f'v_add_f32 v{a}, v{a}, v{a+8}', f'v_add_f32 v{b}, v{b}, v{b+8}',
               f'v_mul_f32 v{a}, 0x3b000000, v{a}', f'v_mul_f32 v{b}, 0x3b000000, v{b}',
               f'v_fma_f32 v{b}, -v{a}, v{a}, v{b}', f'v_max_f32 v{b}, 0, v{b}', f'v_add_f32 v{b}, 0x3727c5ac, v{b}',
               f'v_rsq_f32 v{b}, v{b}', f'v_mul_f32_e64 v{a}, -v{a}, v{b}',
               f'v_mov_b32 v{b+8}, v{b}', f'v_mov_b32 v{a+8}, v{a}',
               f'v_permlane16_swap_b32 v{b}, v{b+8}', f'v_permlane16_swap_b32 v{a}, v{a+8}',
               f'v_mov_b32 v{b+4}, v{b}', f'v_mov_b32 v{b+12}, v{b+8}', f'v_mov_b32 v{a+4}, v{a}', f'v_mov_b32 v{a+12}, v{a+8}',
               f'v_permlane32_swap_b32 v{b}, v{b+4}', f'v_permlane32_swap_b32 v{b+8}, v{b+12}',
               f'v_permlane32_swap_b32 v{a}, v{a+4}', f'v_permlane32_swap_b32 v{a+8}, v{a+12}']
        for t in range(4):
            for k in range(12): st.append(f'v_fma_f32 v{TT+12*t+k}, v{STT+4*t}, v{U+k}, v{V+k}')
        p.add([WVM('x11'), 's_barrier'])
        p.add([rd(t, 0) for t in range(4)])
        head = [[] for _ in range(16)]; tl = [[] for _ in range(16)]
        tl[0] += xl[8:11]; tl[1] += xl[11:14]; tl[2] += xl[14:16] + stl[:1]; tl[3] += stl[1:]
        head[1] += [[WVM('x15'), 's_barrier']]
        head[5] += [[WVM('x115'), 's_barrier']]
        dstep = {3: 4, 4: 5, 5: 6, 6: 8, 7: 9, 8: 10, 9: 12, 10: 13}
        astep = {3: 8, 4: 9, 5: 10, 6: 12, 7: 13, 8: 14}
        for i, s in astep.items(): tl[s] += aw2(i)
        for i, s in dstep.items():
            if i >= 4: tl[s] += [WLG(f'aw2{i-4}')]
            tl[s] += dw2(i)
        ns = len(st)
        sts = [6, 7, 7, 11, 11, 14, 15, 15]
        for k, s in enumerate(sts): tl[s] += st[k*ns//len(sts):(k+1)*ns//len(sts)]
        for s in range(16):
            ms = [f'{MFMA} {vr(12*t+4*m,4)}, {ar(s*12+4*m,4)}, {vr(FR+16*(s&1)+4*t,4)}, {"0" if s==0 else vr(12*t+4*m,4)}'
                  for t in range(4) for m in range(3)]
            f = head[s] + ([rd(t, s+1) for t in range(4)] if s < 15 else []) + tl[s]
            if s: p.add([WLG(f'f3{s}')])
            p.add(spread(ms, f, 0, 12))
        p.add(self.stamp('p3gemm'))
        for pr in range(2):
            for m in range(3):
                b = FR+12*pr+4*m
                for tt in range(2):
                    t = 2*pr+tt; a = 12*t+4*m
                    for hh in range(2):
                        p(f'v_pk_fma_f32 {vr(a+2*hh,2)}, {vr(a+2*hh,2)}, {vr(STT+4*t,2)}, {vr(TT+a+2*hh,2)} op_sel:[0,1,0] op_sel_hi:[1,1,1]')
                    for hh in range(2):
                        p(f'v_cvt_pk_bf16_f32 v{b+2*tt+hh}, v{a+2*hh}, v{a+2*hh+1}')
                for k in (0, 2, 1, 3): p(f'v_pk_max_i16 v{b+k}, v{b+k}, 0')
                p(f'v_permlane16_swap_b32 v{b}, v{b+2}')
                p(f'v_permlane16_swap_b32 v{b+1}, v{b+3}')
                p(f'buffer_store_dwordx4 {vr(b,4)}, v{vSTH}, {srd(S_WS)}, s{sN+2*pr+(1 if m else 0)} offen offset:{512*m}{sc}')
        self.publish(2, sc, aw2(9) + aw2(10))
        p.add(self.stamp('pub3'))
        LE, LL, LD = p.label('L_EP'), p.label('L_EPL'), p.label('L_EPD')
        p(f's_lshl_b32 s{sT0}, s2, 2')
        p(f's_add_u32 s{sT0}, s{sT0}, s{sW}')
        p(f's_cmp_lg_u32 s{sT0}, 1')
        p(f's_cbranch_scc1 {LE}')
        p.cond_begin()
        p(f's_mov_b32 s{sSPIN}, 20000')
        p(f'{LL}:')
        p(f'buffer_load_dwordx4 v[0:3], v{vL16}, {srd(S_WS)}, 0 offen offset:{WS_HELLO} sc1')
        p('s_waitcnt vmcnt(0)')
        for k in range(4): p(f'v_subrev_u32 v{k}, s{sTAG}, v{k}')
        p('v_or3_b32 v0, v0, v1, v2')
        p('v_or_b32 v0, v0, v3')
        p('v_cmp_lt_u32 vcc, 15, v0')
        p(f's_cbranch_vccz {LD}')
        p(f's_sub_u32 s{sSPIN}, s{sSPIN}, 1')
        p(f's_cbranch_scc0 {LL}')
        p(f'{LD}:')
        p('s_mov_b64 exec, 1')
        p(f'buffer_store_dword v{vTAG}, v{vL16}, {srd(S_WS)}, 0 offen sc1')
        p('s_mov_b64 exec, -1')
        p.cond_end()
        p(f'{LE}:')
        p.add(self.ks_setup(C_H, H_TILE, 11*1024, 160))
        p(f's_cmp_eq_u32 s{sW}, 3')
        p(f's_cselect_b32 s{sA0}, {OOB}, 0')
        p.add(self.unpack8(GA, GBP) + self.unpack8(CB, X1))
        self.wait_flags(2, 0)
        p.add(self.stamp('flag3'))
        w2op = lambda i, ct: rr(w2reg(i), 4, 4*ct)
        base = [f'v_fma_f32 v{CB+k}, v{64+k}, v{GA+k}, v{CB+k}' for k in range(16)]
        self.ksplit(sc, 11, w2op, lambda k: ('a', 112+4*(k % 20)), 0, 64, 160, 9, [], last_oob=True, base=base)
        p.add(self.stamp('p4gemm'))
        Y = 48
        for pp in range(2):
            for k in range(4*pp, 4*pp+4): p(f'v_pk_fma_f32 {vr(Y+2*k,2)}, {vr(Y+2*k,2)}, {vr(GA+2*k,2)}, {vr(CB+2*k,2)}')
            for k in range(4*pp, 4*pp+4): p(f'v_cvt_pk_bf16_f32 v{96+k}, v{Y+2*k}, v{Y+2*k+1}')
            p(f'buffer_store_dwordx4 {vr(96+4*pp,4)}, v{vXO}, {srd(S_OUT)}, s{sXO} offen offset:{64*pp}')
        self.finish()

    def finish(self):
        p = self.p
        if self.diag:
            p.add([WVMA()])
            p.add(self.stamp('end'))
            if self.hdiag:
                p.add(self.stamp('rt1'))
                p.add(self.flush())
                assert self.nst <= 17
                p('s_load_dwordx2 s[80:81], s[0:1], 72')
                p('s_mov_b32 s82, 256')
                p('s_mov_b32 s83, 0x00020000')
                p(f'v_readlane_b32 s{sT0}, v{vDIAG}, 1')
                p(f'v_readlane_b32 s{sT1}, v{vDIAG}, 0')
                p(f'v_readlane_b32 s{sT2}, v{vDIAG}, {self.nst-1}')
                p(f'v_subrev_u32 v{vDIAG}, s{sT0}, v{vDIAG}')
                p(f's_not_b32 s{sT1}, s{sT1}')
                p(f'v_writelane_b32 v{vDIAG}, s{sT1}, 0')
                p(f'v_writelane_b32 v{vDIAG}, s{sT2}, 1')
                p(f'v_lshlrev_b32 v1, 2, v{vLANE}')
                p(f's_mov_b64 exec, {(1 << (self.nst-1)) - 1}')
                p(f'buffer_atomic_umax v{vDIAG}, v1, s[80:83], 0 offen sc1')
            else:
                p.add(self.flush())
                p(f's_lshl_b32 s{sT0}, s2, 2')
                p(f's_add_u32 s{sT0}, s{sT0}, s{sW}')
                p(f's_lshl_b32 s{sT0}, s{sT0}, 8')
                p(f's_add_u32 s{sT0}, s{sT0}, {WS_DIAG}')
                p(f'v_lshlrev_b32 v1, 2, v{vLANE}')
                p(f'buffer_store_dword v{vDIAG}, v1, {srd(S_WS)}, s{sT0} offen')
        p('s_endpgm')


HEADER = open(os.path.join(os.path.dirname(os.path.abspath(__file__)), '..', 'cdna_kernels',
              'adaLN_cond__sliding_local_dilated__dense_activation_relu__prompt.s.ref')).read()

def emit(diag=False, hdiag=None, **opt):
    g = Gen(diag or bool(hdiag), hdiag, **opt)
    ins = g.build()
    head = HEADER.split(KNAME + ':')[0].replace('grid=(4096,1,1) block=(256,1,1) lds=0', 'grid=(256,1,1) block=(256,1,1) lds=163840')
    tail = HEADER.split('s_endpgm\n')[1].replace('next_free_vgpr 256', 'next_free_vgpr 512')
    body = '\n'.join(('' if i.is_label else '    ') + i.text for i in ins)
    txt = head + KNAME + ':\n' + body + '\n' + tail
    txt += '\n; LAYOUT2\n'
    if g.diag: txt += '\n; STAMPS ' + ' '.join(g.stamp_names) + '\n'
    return txt

if __name__ == '__main__':
    import argparse
    ap = argparse.ArgumentParser()
    ap.add_argument('out'); ap.add_argument('--diag', action='store_true'); ap.add_argument('--hdiag')
    ap.add_argument('-o', action='append', default=[])
    a = ap.parse_args()
    opt = {}
    for kv in a.o:
        k, v = kv.split('='); opt[k] = float(v) if '.' in v else int(v)
    open(a.out, 'w').write(emit(a.diag, a.hdiag.split(',') if a.hdiag else None, **opt))
```

```python
import sys, os
sys.path.insert(0, os.path.dirname(os.path.abspath(__file__)))
from asmlib import *

KNAME = 'adaLN_cond__sliding_local_dilated__dense_activation_relu__prompt_kernel'

WS_HELLO = 0x400
WS_MOD = 0x8000
WS_CL = 0x100000
CL_STRIDE = 0x50000
C_O, C_X1, C_H, C_ST, C_FL = 0, 0x10000, 0x20000, 0x4C000, 0x4D000
H_TILE = 45056
WS_DIAG = 0xE00000
WS_SIZE = 0x1000000
OOB = 0x40000000

SLOT = 12288
L_H = 73728
L_MISC = 155648
L_P0 = L_MISC + 4096
L_RED = 36864
L_W2 = 36864
X1T = [0, 16384, 102400, 118784]
WOA = [86016, 0, 16384, 114688]

S_X, S_WQ, S_WO, S_W1, S_W2, S_WM, S_OUT, S_WS, S_C, S_CODE = 4, 8, 12, 16, 20, 24, 28, 32, 36, 68
sKW = 3
sSPIN, sONES, sR0, sXO = 40, 41, 42, 43
sK = 44
sEP, sCB, sHS1, sHS0 = 46, 47, 48, 49
sXB, sD0, sD1, sMW, sD2, sU0 = 50, 51, 52, 53, 54, 55
sT4, sT5, sFS, sFP = 56, 57, 58, 59
sW, sCL, sJ, sTAG = 60, 61, 62, 63
sT0, sT1, sT2, sT3 = 64, 65, 66, 67
sN = 72
sA0, sA1, sBLK, sGW = 76, 77, 78, 79
STAMP0 = 80
NSTAMP = 11


def srd(b): return f's[{b}:{b+3}]'
def vr(a, n=1): return f'v{a}' if n == 1 else f'v[{a}:{a+n-1}]'
def ar(a, n=1): return f'a{a}' if n == 1 else f'a[{a}:{a+n-1}]'
def rr(r, n=1, off=0): return (vr if r[0] == 'v' else ar)(r[1]+off, n)
def WVM(tag): return Marker('wait_vm', tag)
def WLG(tag): return Marker('wait_lgkm', tag)
WVMA = lambda: Marker('wait_vm_all')
WLGA = lambda: Marker('wait_lgkm_all')
def MW(name, lo, n, priv=0): return ([(lo, lo+n)], 'W', priv, name)
def MR(name, lo, n, priv=0): return ([(lo, lo+n)], 'R', priv, name)
def cdiv(a, b): return -(-a // b)
def flat(l): return [x for y in l for x in y]

vL16, vTAG, vDP, vTS, vDQ, vDW1, vTP, vG, vC, vLANE = 255, 254, 250, 248, 246, 245, 244, 243, 242, 241
vHS, vHR, vXO, vSTO, vSTH, vT1, vFP, vPB, vDIAG = 239, 235, 234, 233, 232, 229, 228, 225, 224
vJUNK, vT128, vT1K = 227, 247, 205
MFMA = 'v_mfma_f32_16x16x32_bf16'


class Gen:
    def __init__(self, diag=False, hdiag=None, **opt):
        self.p = Prog(); self.p.strict_lds = True
        self.diag = diag; self.hdiag = hdiag
        self.nst = 0; self.flushed = 0; self.stamp_names = []
        self.o = dict(nA=7, nC=3, nP=5, two='w0', tw1='w0', tw2='pub1', r3w2='p2', npoll=24, c1=3, c2=3, c3=3, natt=7)
        self.o.update(opt)

    def stamp(self, name):
        hs = self.o.get('hs')
        if hs:
            o = []
            if name == 'rt0': o.append(f's_memrealtime s[{STAMP0+4}:{STAMP0+5}]')
            if name == 'start': o.append(f's_memtime s[{STAMP0}:{STAMP0+1}]')
            if name == hs.lstrip('R'): o.append(f'{"s_memrealtime" if hs[0] == "R" else "s_memtime"} s[{STAMP0+2}:{STAMP0+3}]')
            return o
        if not self.diag: return []
        if self.hdiag and name not in self.hdiag and name not in ('rt0', 'start', 'end', 'rt1'): return []
        k = self.nst; self.nst += 1
        assert k - self.flushed < NSTAMP, name
        if len(self.stamp_names) <= k: self.stamp_names.append(name)
        op = 's_memrealtime' if name.startswith('rt') else 's_memtime'
        k %= NSTAMP
        return [f'{op} s[{STAMP0+2*k}:{STAMP0+2*k+1}]']

    def flush(self):
        if not self.diag: return []
        o = ['s_waitcnt lgkmcnt(0)']
        for k in range(self.flushed, self.nst):
            o.append(f'v_writelane_b32 v{vDIAG}, s{STAMP0+2*(k%NSTAMP)}, {k}')
        self.flushed = self.nst
        return o

    def bar(self): return [WLGA(), 's_barrier']

    def touch(self, S, nlines, stride, idx, nidx, base=0, tag='T'):
        ni = cdiv(nlines, nidx*64); L = cdiv(nlines, nidx*ni)
        o = [f's_bfm_b64 exec, {L}, 0' if L < 64 else 's_mov_b64 exec, -1', f's_mul_i32 s{sT0}, s{idx}, {L*stride}']
        if base >= 4096: o.append(f's_add_u32 s{sT0}, s{sT0}, {base & ~4095}')
        for i in range(ni):
            o.append((f'buffer_load_dword v{vJUNK}, v{vT128 if stride == 128 else vT1K}, {srd(S)}, s{sT0} offen offset:{base & 4095}', tag))
            if i < ni-1: o.append(f's_add_u32 s{sT0}, s{sT0}, {nidx*L*stride}')
        return o

    def touches(self, pos):
        gi, gn, ki, kn = (sT2, 640, sT3, 80) if pos == 'w0' else (sGW, 1024, sKW, 128)
        o = []
        if pos == 'w0':
            nA = self.o['nA']
            if nA: o += self.touch(S_WQ, nA*768, 128, ki, kn)
            if nA < 16:
                o += self.touch(S_WQ, (16-nA)*768, 128, gi, gn, nA*98304)
                o += self.touch(S_WQ, (16-nA)*96, 1024, ki, kn, nA*98304+384)
        if self.o['two'] == pos: o += self.touch(S_WO, 4096, 128, gi, gn) + self.touch(S_WO, 512, 1024, ki, kn, 384)
        if self.o['tw1'] == pos: o += self.touch(S_W1, 11008, 128, gi, gn)
        if self.o['tw2'] == pos: o += self.touch(S_W2, 11008, 128, gi, gn)
        if self.o['r3w2'] == pos: o += self.touch(S_W2, 1376, 1024, ki, kn, 384)
        if o: o.append('s_mov_b64 exec, -1')
        return [o] if o else []

    def entry(self):
        p = self.p
        p('s_load_dwordx16 s[40:55], s[0:1], 0')
        p('s_load_dwordx2 s[56:57], s[0:1], 64')
        p('s_load_dwordx2 s[58:59], s[0:1], 80')
        p('s_cmp_ge_u32 s2, 256')
        p('s_cbranch_scc1 L_END')
        p.add(self.stamp('rt0'))
        p.add(self.stamp('start'))
        p(f'v_lshrrev_b32 v1, 6, v0')
        p(f'v_and_b32 v{vLANE}, 63, v0')
        p(f's_getpc_b64 s[{S_CODE}:{S_CODE+1}]')
        p('L_PC:')
        p(f'v_readfirstlane_b32 s{sW}, v1')
        p(f's_mov_b32 s{S_CODE+2}, L_END-L_PC')
        p(f's_mov_b32 s{S_CODE+3}, 0x00020000')
        p(f'v_lshlrev_b32 v{vT128}, 7, v{vLANE}')
        p(f's_lshr_b32 s{sT2}, s2, 3')
        p(f's_lshl2_add_u32 s{sKW}, s{sT2}, s{sW}')
        p(f's_lshl_b32 s{sT0}, s{sKW}, 8')
        p('s_mov_b64 exec, 3')
        p(f'buffer_load_dword v{vJUNK}, v{vT128}, {srd(S_CODE)}, s{sT0} offen')
        p('s_mov_b64 exec, -1')
        for b, sz in ((S_WM, 512*6144), (S_X, 2048*1024), (S_C, 1024), (S_WQ, 512*3072)):
            p(f's_mov_b32 s{b+2}, {sz}')
            p(f's_mov_b32 s{b+3}, 0x00020000')
        p(f'v_lshlrev_b32 v{vL16}, 4, v{vLANE}')
        p(f'v_lshlrev_b32 v{vT1K}, 10, v{vLANE}')
        p(f'v_lshrrev_b32 v2, 3, v{vLANE}')
        p(f'v_mul_u32_u24 v2, {6144-1024}, v2')
        p(f'v_add_u32 v2, v2, v{vT128}')
        p(f's_and_b32 s{sT0}, s2, 7')
        p(f's_mul_i32 s{sT3}, s{sT0}, 12')
        p(f's_add_u32 s{sBLK}, s{sT3}, s{sT2}')
        p(f's_lshl_b32 s{sT3}, s{sT3}, 6')
        p(f's_mul_i32 s{sT1}, s{sKW}, {4*6144}')
        p(f's_add_u32 s{sN}, s{sT1}, s{sT3}')
        p(f's_lshl_b32 s{sA1}, s{sT0}, 7')
        p(f's_add_u32 s{sA1}, s{sA1}, s{sKW}')
        p(f's_lshl_b32 s{sA1}, s{sA1}, 11')
        p(f's_lshr_b32 s{sT1}, s2, 6')
        p(f's_lshl2_add_u32 s{sCL}, s{sT0}, s{sT1}')
        p(f's_and_b32 s{sJ}, s{sT2}, 7')
        p(f's_lshl_b32 s{sN+1}, s{sCL}, 6')
        p(f's_lshl1_add_u32 s{sT0}, s{sJ}, s{sW}')
        p(f's_add_u32 s{sT0}, s{sT0}, s{sN+1}')
        p(f's_sub_i32 s{sT0}, s{sT0}, 16')
        p(f's_max_i32 s{sT0}, s{sT0}, 0')
        p(f's_lshl_b32 s{sT0}, s{sT0}, 10')
        p(f's_cmp_lt_u32 s{sW}, 2')
        p(f's_cselect_b32 s{sA0}, s{sT0}, {OOB}')
        p(f's_lshl2_add_u32 s{sGW}, s2, s{sW}')
        p(f'v_lshrrev_b32 v3, 2, v{vLANE}')
        p(f'v_and_b32 v4, 0x30, v{vL16}')
        p(f'v_mul_u32_u24 v3, {8*6144}, v3')
        p(f'v_add_u32 v3, v3, v4')
        p(f'v_lshlrev_b32 v1, 2, v{vLANE}')
        p(f's_mul_i32 s{sT0}, s{sW}, {128*6144}')
        p(f's_lshl_b32 s{sT1}, s{sBLK}, 6')
        p(f's_add_u32 s{sT0}, s{sT0}, s{sT1}')
        p(f's_lshl_b32 s{sT1}, s{sW}, 8')
        p(f's_sub_u32 s{sT2}, s{sGW}, 384')
        p(f's_sub_u32 s{sT3}, s{sKW}, 48')
        p('s_mov_b64 exec, 0x3f3f3f3f')
        p('s_cmp_ge_u32 s2, 96')
        p.add([WLGA()])
        p(f's_mov_b64 s[{S_WM}:{S_WM+1}], s[54:55]')
        p(f's_mov_b64 s[{S_X}:{S_X+1}], s[40:41]')
        p(f'buffer_load_dword v{vJUNK}, v2, {srd(S_WM)}, s{sN} offen nt')
        p('s_mov_b64 exec, -1')
        p.add(self.xown())
        p(f's_load_dword s{sEP}, s[58:59], 0')

    def srds(self, which):
        o = []
        for b, sz, k in ((S_WO, 512*1024, 44), (S_W1, 512*2752, 48), (S_W2, 1376*1024, 50), (S_OUT, 2048*1024, 56), (S_WS, WS_SIZE, 58)):
            if b in which: o += [f's_mov_b64 s[{b}:{b+1}], s[{k}:{k+1}]', f's_mov_b32 s{b+2}, {sz}', f's_mov_b32 s{b+3}, 0x00020000']
        return o

    def xown(self):
        return [(f'buffer_load_dwordx4 v[4:7], v{vL16}, {srd(S_X)}, s{sA1} offen nt', 'x'),
                (f'buffer_load_dwordx4 v[8:11], v{vL16}, {srd(S_X)}, s{sA1} offen offset:1024 nt', 'x'),
                (f'buffer_load_dwordx4 v[12:15], v{vL16}, {srd(S_X)}, s{sA0} offen nt', 'x')]

    def mktag(self):
        return [f's_mul_i32 s{sTAG}, s{sEP}, 1664525', f's_add_u32 s{sTAG}, s{sTAG}, 1013904223']

    def p0(self):
        p = self.p
        A, F = 192, 200
        p(f's_mov_b64 s[{S_C}:{S_C+1}], s[52:53]')
        p(f'buffer_load_dword v206, v1, {srd(S_C)}, s{sT1} offen')
        for i in range(8):
            p(f'buffer_load_dwordx4 {vr(160+4*i,4)}, v3, {srd(S_WM)}, s{sT0} offen nt')
            if i < 7: p(f's_add_u32 s{sT0}, s{sT0}, 6144')
            if i == 3:
                p.add([f'v_mov_b32 v{A+a}, 0' for a in range(8)])
                p.add(self.srds((S_WO, S_W1, S_W2, S_OUT, S_WS)) + [f's_mov_b64 s[{S_WQ}:{S_WQ+1}], s[42:43]'])
                p.add([f'v_and_b32 v207, 3, v{vLANE}', f'v_lshlrev_b32 v207, 5, v207', f'v_lshrrev_b32 v204, 4, v{vLANE}',
                       f'v_lshl_add_u32 v207, v204, 3, v207',
                       f's_lshl_b32 s{sT1}, s{sW}, 7', f's_add_u32 s{sT1}, s{sT1}, {L_P0}', f'v_add_u32 v207, s{sT1}, v207',
                       f'v_add_u32 v212, {L_P0}, v{vL16}',
                       f'v_and_b32 v204, 1, v{vLANE}', f'v_lshlrev_b32 v204, 10, v204', f'v_lshrrev_b32 v213, 1, v{vLANE}',
                       f'v_lshl_add_u32 v204, v213, 4, v204',
                       f's_lshr_b32 s{sT1}, s{sBLK}, 4', f's_cmp_eq_u32 s{sT1}, 1', f's_cselect_b32 s{sT2}, 1.0, 0',
                       f's_cmp_eq_u32 s{sT1}, 4', f's_cselect_b32 s{sT2}, 1.0, s{sT2}', f's_mov_b32 s{sT3}, s{sT2}',
                       f's_lshl_b32 s{sT1}, s{sT1}, 11', f's_and_b32 s{sBLK}, s{sBLK}, 15', f's_lshl_b32 s{sBLK}, s{sBLK}, 6',
                       f's_add_u32 s{sT1}, s{sT1}, s{sBLK}', f's_add_u32 s{sT1}, s{sT1}, {WS_MOD}'])
        p.add(self.stamp('iss'))
        p(f'v_lshlrev_b32 v{F}, 16, v206')
        p(f'v_and_b32 v{F+1}, 0xffff0000, v206')
        p(f'v_mul_f32 v{F+2}, 0xbfb8aa3b, v{F}')
        p(f'v_mul_f32 v{F+3}, 0xbfb8aa3b, v{F+1}')
        p(f'v_exp_f32 v{F+2}, v{F+2}')
        p(f'v_exp_f32 v{F+3}, v{F+3}')
        p(f'v_add_f32 v{F+2}, 1.0, v{F+2}')
        p(f'v_add_f32 v{F+3}, 1.0, v{F+3}')
        p(f'v_rcp_f32 v{F+2}, v{F+2}')
        p(f'v_rcp_f32 v{F+3}, v{F+3}')
        p(f'v_mul_f32 v{F}, v{F}, v{F+2}')
        p(f'v_mul_f32 v{F+1}, v{F+1}, v{F+3}')
        p(f'v_cvt_pk_bf16_f32 v206, v{F}, v{F+1}')
        p(f'v_and_b32 v{F}, 0xffff, v206')
        p(f'v_lshlrev_b32 v{F+1}, 16, v206')
        p(f'v_lshrrev_b32 v{F+2}, 16, v206')
        p(f'v_and_b32 v{F+3}, 0xffff0000, v206')
        dd = []
        for i in range(8):
            q = i >> 1
            for d in range(4):
                for hh in range(2):
                    dd.append(f'v_dot2c_f32_bf16_dpp v{A+2*d+hh}, v{F+2*(i&1)+hh}, v{160+4*i+d} quad_perm:[{q},{q},{q},{q}] row_mask:0xf bank_mask:0xf')
        p.add(dd)
        for m in range(4): p(f'v_permlane32_swap_b32 v{A+m}, v{A+4+m}')
        for m in range(2): p(f'v_pk_add_f32 {vr(A+2*m,2)}, {vr(A+2*m,2)}, {vr(A+4+2*m,2)}')
        for m in range(2): p(f'v_permlane16_swap_b32 v{A+m}, v{A+2+m}')
        p(f'v_pk_add_f32 {vr(A,2)}, {vr(A,2)}, {vr(A+2,2)}')
        for sh in (8, 4):
            for m in range(2): p(f'v_add_f32_dpp v{A+m}, v{A+m}, v{A+m} row_ror:{sh} row_mask:0xf bank_mask:0xf')
        p(f'ds_write_b64 v207, {vr(A,2)}', None, MW('p0', L_P0, 512))
        p.add(self.mktag() + [f'v_mov_b32 v210, s{sTAG}', f'v_mov_b32 v211, s{sTAG}', f's_cmp_lg_u32 s{sW}, 0'])
        p.add(self.bar())
        p('s_cbranch_scc1 L_P0X')
        p.cond_begin()
        p('s_mov_b64 exec, 0xff')
        for k in range(4): p(f'ds_read_b128 {vr(160+4*k,4)}, v212 offset:{128*k}', None, MR('p0', L_P0, 512))
        p('v_pk_add_f32 v[160:161], v[160:161], v[164:165]')
        p('v_pk_add_f32 v[162:163], v[162:163], v[166:167]')
        p('v_pk_add_f32 v[168:169], v[168:169], v[172:173]')
        p('v_pk_add_f32 v[170:171], v[170:171], v[174:175]')
        p('v_pk_add_f32 v[160:161], v[160:161], v[168:169]')
        p('v_pk_add_f32 v[162:163], v[162:163], v[170:171]')
        p('v_cvt_pk_bf16_f32 v160, v160, v161')
        p('v_cvt_pk_bf16_f32 v162, v162, v163')
        p('v_and_b32 v161, 0xffff0000, v160')
        p('v_lshlrev_b32 v160, 16, v160')
        p('v_and_b32 v163, 0xffff0000, v162')
        p('v_lshlrev_b32 v162, 16, v162')
        p(f'v_pk_add_f32 v[160:161], v[160:161], s[{sT2}:{sT3}]')
        p(f'v_pk_add_f32 v[162:163], v[162:163], s[{sT2}:{sT3}]')
        p('v_cvt_pk_bf16_f32 v208, v160, v161')
        p('v_cvt_pk_bf16_f32 v209, v162, v163')
        p(f'buffer_store_dwordx4 v[208:211], v204, {srd(S_WS)}, s{sT1} offen sc1')
        p('s_mov_b64 exec, -1')
        p.cond_end()
        p('L_P0X:')

    MK = 80
    def precompute(self):
        o = []
        t = 104
        o += [f's_mov_b32 s{sR0}, s{sN+1}', f's_mul_i32 s{sCB}, s{sCL}, {CL_STRIDE}', f's_add_u32 s{sCB}, s{sCB}, {WS_CL}',
              f's_add_u32 s{sFP}, s{sCB}, {C_FL}', f's_sub_u32 s{sT0}, s{sCB}, 128',
              's_mov_b64 exec, 0xff', f'buffer_load_dword v{vJUNK}, v{vT128}, {srd(S_WS)}, s{sFP} offen sc1',
              's_mov_b64 exec, 1', f'buffer_load_dword v{vJUNK}, v{vT128}, {srd(S_WS)}, s{sT0} offen sc1',
              f'buffer_load_dword v{vJUNK}, v{vT128}, {srd(S_OUT)}, s{sA1} offen', 's_mov_b64 exec, -1',
              f's_and_b32 s{sT0}, s{sKW}, 31', f's_lshl2_add_u32 s{sFS}, s{sT0}, s{sFP}',
              f'v_and_b32 v{vFP}, 31, v{vLANE}', f'v_lshlrev_b32 v{vFP}, 2, v{vFP}',
              f'v_lshrrev_b32 v{vG}, 4, v{vLANE}', f'v_and_b32 v{vC}, 15, v{vLANE}']
        o += [f'v_lshrrev_b32 v{t}, 3, v{vLANE}', f'v_mul_u32_u24 v{t+6}, 10240, v{t}',
              f'v_lshrrev_b32 v{t+1}, 1, v{t}', f'v_lshlrev_b32 v{t+1}, 5, v{t+1}',
              f'v_and_b32 v{t+5}, 0x70, v{vL16}', f'v_xor_b32 v{t+1}, v{t+1}, v{t+5}',
              f'v_and_b32 v{t+2}, 4, v{t}', f'v_add_u32 v{t}, v{t}, v{t+2}',
              f'v_mul_u32_u24 v{t+2}, 3072, v{t}', f'v_add_u32 v{vDQ}, v{t+2}, v{t+1}',
              f'v_lshl_add_u32 v{vDP}, v{t}, 10, v{t+1}', f'v_add_u32 v{vDP+1}, {15*1024}, v{vDP}',
              f'v_add_u32 v{vDP+2}, {2*1024}, v{vDP}', f'v_add_u32 v{vDP+3}, {17*1024}, v{vDP}',
              f'v_mul_u32_u24 v{t+2}, 2752, v{t}', f'v_add_u32 v{vDW1}, v{t+2}, v{t+1}']
        o += [f's_and_b32 s{sT0}, s{sKW}, 15', f's_lshl_b32 s{sT1}, s{sT0}, 3', f's_and_b32 s{sT1}, s{sT1}, 0x70',
              f'v_xor_b32 v{vHS}, s{sT1}, v{t+5}', f'v_add_u32 v{vHS}, v{vHS}, v{t+6}',
              f's_lshl_b32 s{sT0}, s{sT0}, 7', f's_lshr_b32 s{sT1}, s{sJ}, 2', f's_lshl_b32 s{sT1}, s{sT1}, 12',
              f's_add_u32 s{sT0}, s{sT0}, s{sT1}', f's_add_u32 s{sT2}, s{sCB}, {C_H}', f's_add_u32 s{sHS0}, s{sT0}, s{sT2}',
              f's_xor_b32 s{sT0}, s{sW}, 1', f's_lshl3_add_u32 s{sT0}, s{sT0}, s{sJ}',
              f's_lshl_b32 s{sT1}, s{sT0}, 3', f's_and_b32 s{sT1}, s{sT1}, 0x70',
              f'v_xor_b32 v{vHS+1}, s{sT1}, v{t+5}', f'v_add_u32 v{vHS+1}, v{vHS+1}, v{t+6}',
              f's_lshl_b32 s{sT0}, s{sT0}, 7', f's_add_u32 s{sT0}, s{sT0}, s{sT2}',
              f's_cmp_lt_u32 s{sW}, 2', f's_cselect_b32 s{sHS1}, s{sT0}, {OOB}']
        o += [f's_and_b32 s{sT0}, s{sW}, 1', f's_lshl_b32 s{sT0}, s{sT0}, 4', f's_lshr_b32 s{sT1}, s{sW}, 1',
              f's_lshl2_add_u32 s{sT3}, s{sT1}, s{sT0}',
              f's_mul_i32 s{sD0}, s{sT3}, 3072', f's_lshl_b32 s{sT0}, s{sJ}, 7', f's_add_u32 s{sD0}, s{sD0}, s{sT0}',
              f's_mul_i32 s{sD1}, s{sW}, 3072',
              f's_min_u32 s{sT0}, s{sJ}, 3', f's_mul_i32 s{sU0}, s{sJ}, 5', f's_add_u32 s{sU0}, s{sU0}, s{sT0}',
              f's_mul_i32 s{sD2}, s{sT3}, 2752', f's_lshl_b32 s{sT0}, s{sU0}, 6', f's_add_u32 s{sD2}, s{sD2}, s{sT0}',
              f's_mov_b32 s{sONES}, 0x3f803f80', f's_mov_b32 s{sK}, 0x3eb8aa3b', f's_mov_b32 s{sK+1}, 0x3eb8aa3b']
        o += [f'v_lshrrev_b32 v{t}, 2, v{vLANE}', f'v_and_b32 v{t}, 7, v{t}',
              f'v_lshrrev_b32 v{t+1}, 1, v{t}', f'v_lshlrev_b32 v{t+1}, 5, v{t+1}',
              f'v_and_b32 v{t+2}, 3, v{vLANE}', f'v_lshlrev_b32 v{t+2}, 3, v{t+2}',
              f'v_lshl_add_u32 v{t+2}, v{t}, 7, v{t+2}',
              f'v_lshrrev_b32 v{t+3}, 5, v{vLANE}',
              f'v_and_b32 v{t+4}, 0x30, v{vL16}', f'v_xor_b32 v{t+4}, v{t+4}, v{t+1}',
              f'v_lshl_add_u32 v{t+4}, v{t}, 7, v{t+4}', f'v_lshl_add_u32 v{vTP}, v{t+3}, 10, v{t+4}',
              f'v_mul_u32_u24 v{t+3}, 3072, v{t+3}', f'v_add_u32 v{t+2}, v{t+2}, v{t+3}',
              f's_lshl_b32 s{sT0}, s{sW}, 5', f'v_xor_b32 v{t+3}, s{sT0}, v{t+1}',
              f'v_add_u32 v{vTS}, v{t+2}, v{t+3}', f'v_add_u32 v{vTS+1}, {4*SLOT}, v{vTS}']
        for m in range(3):
            o += [f's_mul_i32 s{sT0}, s{sW}, 3', f's_add_u32 s{sT0}, s{sT0}, {m}', f's_and_b32 s{sT1}, s{sT0}, 3',
                  f's_lshl_b32 s{sT1}, s{sT1}, 5', f's_lshr_b32 s{sT0}, s{sT0}, 2', f's_lshl_b32 s{sT0}, s{sT0}, 10',
                  f'v_xor_b32 v{vT1+m}, s{sT1}, v{t+1}', f'v_add3_u32 v{vT1+m}, v{vT1+m}, v{t+2}, s{sT0}']
        o += [f's_lshl_b32 s{sMW}, s{sW}, 12', f'v_add_u32 v{vPB}, s{sMW}, v{vTP}', f'v_xor_b32 v{vPB+1}, 64, v{vPB}']
        o += [f'v_lshrrev_b32 v{t}, 1, v{vC}', f'v_xor_b32 v{t}, v{t}, v{vG}', f'v_lshlrev_b32 v{t}, 4, v{t}',
              f'v_lshl_add_u32 v{t}, v{vC}, 7, v{t}',
              f'v_add_u32 v{vHR}, {L_H}, v{t}', f'v_xor_b32 v{vHR+1}, 64, v{vHR}',
              f'v_add_u32 v{vHR+2}, 40960, v{vHR}', f'v_add_u32 v{vHR+3}, 40960, v{vHR+1}']
        o += [f's_lshl_b32 s{sT0}, s{sW}, 10', f's_add_u32 s{sXB}, s{sT0}, {WS_MOD+4096}']
        o += [f'v_lshlrev_b32 v{vXO}, 11, v{vC}', f'v_lshl_add_u32 v{vXO}, v{vG}, 4, v{vXO}',
              f's_lshr_b32 s{sT0}, s{sW}, 1', f's_lshl_b32 s{sT0}, s{sT0}, 5', f's_and_b32 s{sT1}, s{sW}, 1',
              f's_add_u32 s{sT0}, s{sT0}, s{sT1}', f's_add_u32 s{sT0}, s{sT0}, s{sR0}', f's_lshl_b32 s{sT0}, s{sT0}, 10',
              f's_lshl_b32 s{sT1}, s{sJ}, 7', f's_add_u32 s{sXO}, s{sT0}, s{sT1}',
              f'v_lshrrev_b32 v{t}, 1, v{vG}', f'v_lshlrev_b32 v{t}, 8, v{t}', f'v_lshl_add_u32 v{t}, v{vC}, 4, v{t}',
              f'v_and_b32 v{t+1}, 1, v{vG}', f'v_lshl_add_u32 v{vSTO}, v{t+1}, 14, v{t}',
              f'v_mul_u32_u24 v{t+1}, {H_TILE}, v{t+1}', f'v_add_u32 v{vSTH}, v{t+1}, v{t}']
        return o

    def masks(self):
        t = 104; MK = self.MK
        o = [f'v_lshlrev_b32 v{t}, 2, v{vG}', f'v_sub_u32 v{t}, v{t}, v{vC}', f'v_mov_b32 v{t+1}, 0xf149f2ca',
             [f's_cmp_eq_u32 s{sCL}, 0', f's_cselect_b32 s{sT2}, 100, 9', f's_cselect_b32 s{sT3}, 100, 1'],
             f'v_and_b32 v{t+2}, 2, v{vG}', f'v_lshlrev_b32 v{t+2}, 6, v{t+2}', f'v_sub_u32 v{t+2}, v{t}, v{t+2}']
        for r in range(4):
            o += [f'v_add_u32 v{t+3}, {r+7}, v{t}', f'v_add_u32 v{t+4}, {r}, v{t}', f'v_add_u32 v{t+5}, {r}, v{t+2}',
                  f'v_cmp_gt_u32 vcc, 8, v{t+3}', f'v_cmp_le_i32 s[{sN}:{sN+1}], 9, v{t+4}',
                  f'v_cmp_le_i32 s[{sN+2}:{sN+3}], s{sT2}, v{t+4}', f'v_cmp_le_i32 s[{sA0}:{sA1}], s{sT3}, v{t+5}',
                  f'v_cndmask_b32 v{MK+r}, v{t+1}, 0, vcc', f'v_cndmask_b32 v{t+8+r}, 0, -1, vcc',
                  f'v_cndmask_b32 v{MK+4+r}, v{t+1}, 0, s[{sN}:{sN+1}]', f'v_cndmask_b32 v{MK+8+r}, v{t+1}, 0, s[{sN+2}:{sN+3}]',
                  f'v_cndmask_b32 v{MK+12+r}, v{t+1}, 0, s[{sA0}:{sA1}]']
        o += [f'v_mov_b32 v{t+3}, 0xffff', f'v_bfi_b32 v{MK+16}, v{t+3}, v{t+8}, v{t+9}', f'v_bfi_b32 v{MK+17}, v{t+3}, v{t+10}, v{t+11}',
              f'v_mov_b32 v100, s{sONES}', f'v_mov_b32 v101, s{sONES}']
        return o

    def hello(self):
        p = self.p
        p.add(self.mktag())
        p(f'v_mov_b32 v{vTAG}, s{sTAG}')
        p(f's_cmp_lg_u32 s{sW}, 3')
        p('s_cbranch_scc1 L_HEL')
        p.cond_begin()
        p(f's_lshl_b32 s{sT0}, s2, 2')
        p('s_mov_b64 exec, 1')
        p(f'buffer_store_dword v{vTAG}, v{vL16}, {srd(S_WS)}, s{sT0} offen offset:{WS_HELLO} sc1')
        p('s_mov_b64 exec, -1')
        p.cond_end()
        p('L_HEL:')

    def ln(self):
        S = 40
        o = [f'v_mov_b32 v{S+k}, 0' for k in range(8)]
        for m in range(4):
            for r in range(3):
                o += [f'v_dot2c_f32_bf16 v{S+r}, s{sONES}, v{4+4*r+m}', f'v_dot2c_f32_bf16 v{S+4+r}, v{4+4*r+m}, v{4+4*r+m}']
        up = []
        for r in range(3):
            for m in range(4):
                up += [f'v_lshlrev_b32 v{16+8*r+2*m}, 16, v{4+4*r+m}', f'v_and_b32 v{17+8*r+2*m}, 0xffff0000, v{4+4*r+m}']
        red = [f'v_permlane32_swap_b32 v{S+2*k}, v{S+2*k+1}' for k in range(4)]
        red += [f'v_add_f32 v{S+2*k}, v{S+2*k}, v{S+2*k+1}' for k in range(4)]
        red += [f'v_permlane16_swap_b32 v{S+4*k}, v{S+4*k+2}' for k in range(2)]
        red += [f'v_add_f32 v{S+4*k}, v{S+4*k}, v{S+4*k+2}' for k in range(2)]
        for sh in (8, 4, 2, 1):
            red += [f'v_add_f32_dpp v{S+4*k}, v{S+4*k}, v{S+4*k} row_ror:{sh} row_mask:0xf bank_mask:0xf' for k in range(2)]
        a, b = S, S+4
        red += [f'v_mul_f32 v{a}, 0x3b000000, v{a}', f'v_mul_f32 v{b}, 0x3b000000, v{b}', f'v_fma_f32 v{b}, -v{a}, v{a}, v{b}',
                f'v_max_f32 v{b}, 0, v{b}', f'v_add_f32 v{b}, 0x3727c5ac, v{b}', f'v_rsq_f32 v{b}, v{b}', f'v_mul_f32_e64 v{a}, -v{a}, v{b}']
        o += up[:4] + interleave(red, up[4:], every=1, per=1, start=6)
        for r, lane in enumerate((0, 32, 16)):
            o += [f'v_readlane_b32 s{sN+2*r}, v{a}, {lane}', f'v_readlane_b32 s{sN+2*r+1}, v{b}, {lane}']
        for r in range(3):
            for m in range(4):
                d = 16+8*r+2*m
                o.append(f'v_pk_fma_f32 {vr(d,2)}, {vr(d,2)}, s[{sN+2*r}:{sN+2*r+1}], s[{sN+2*r}:{sN+2*r+1}] op_sel:[0,1,0] op_sel_hi:[1,1,0]')
        return o

    WQA = [L_H, L_H+SLOT, L_H+2*SLOT] + [k*SLOT for k in range(6)] + [k*SLOT for k in range(6)] + [L_H]
    def dma_wq(self, k):
        a = self.WQA[k]
        o = [f's_add_u32 m0, s{sD1}, {a}']
        for sec in range(3):
            o.append((f'buffer_load_dwordx4 v{vDQ}, {srd(S_WQ)}, s{sD0} offen offset:{1024*sec} lds', f'wq{k}', MW(f'wq{k}', a, SLOT)))
        if k < 15: o.append(f's_add_u32 s{sD0}, s{sD0}, {32*3072}')
        return [o[0:2], o[2], o[3:]]

    def absorb_wq(self, k):
        a = self.WQA[k]; b = 1 if a > 4*SLOT else 0
        return [(f'ds_read_b64_tr_b16 {ar(k*12+sec*4+2*h,2)}, v{vTS+b} offset:{a-b*4*SLOT+h*6144+sec*1024}', f'awq{k}', MR(f'wq{k}', a, SLOT))
                for sec in range(3) for h in range(2)]

    def tagged_loads(self, lst):
        return [f'buffer_load_dwordx4 {vr(d,4)}, v{vL16}, {srd(S_WS)}, s{so} offen offset:{io} sc1' for d, so, io in lst]

    def tagged_check(self, lst):
        p = self.p
        L = p.label('L_PT'); D = p.label('L_PD')
        def chk():
            ds = [d+2 for d, _, _ in lst]
            if len(ds) == 4:
                for d in ds: p(f'v_xor_b32 v{d+1}, s{sTAG}, v{d}')
                p(f'v_or3_b32 v{ds[0]+1}, v{ds[0]+1}, v{ds[1]+1}, v{ds[2]+1}')
                p(f'v_or_b32 v{ds[0]+1}, v{ds[0]+1}, v{ds[3]+1}')
                p(f'v_cmp_ne_u32 vcc, 0, v{ds[0]+1}')
            else:
                p(f'v_cmp_ne_u32 vcc, s{sTAG}, v{ds[0]}')
                for d in ds[1:]:
                    p(f'v_cmp_ne_u32 s[{sT4}:{sT5}], s{sTAG}, v{d}')
                    p(f's_or_b64 vcc, vcc, s[{sT4}:{sT5}]')
            p(f's_cbranch_vccz {D}')
        chk()
        p.cond_begin()
        p(f's_mov_b32 s{sSPIN}, 20000')
        p(f'{L}:')
        p.add(self.tagged_loads(lst))
        p('s_waitcnt vmcnt(0)')
        chk()
        p(f's_sub_u32 s{sSPIN}, s{sSPIN}, 1')
        p(f's_cbranch_scc0 {L}')
        p.cond_end()
        p(f'{D}:')

    def publish(self, ph, tag):
        return [WVM(tag), 's_mov_b64 exec, 1',
                f'buffer_store_dword v{vTAG}, v{vL16}, {srd(S_WS)}, s{sFS} offen offset:{ph*128}',
                f'buffer_store_dword v{vTAG}, v{vL16}, {srd(S_WS)}, s{sFS} offen offset:{512+ph*128} sc1',
                's_mov_b64 exec, -1']

    def poll_issue(self, ph, r, b=0):
        return [f'buffer_load_dword v{r}, v{vFP}, {srd(S_WS)}, s{sFP} offen offset:{512*b+ph*128} sc1']

    def poll_check(self, ph, r):
        p = self.p
        D = p.label('L_WD')
        p(f'v_cmp_ne_u32 vcc, s{sTAG}, v{r}')
        p(f's_cbranch_vccz {D}')
        p.cond_begin()
        for b, n in ((0, self.o['npoll']), (1, 20000)):
            L = p.label('L_WF')
            p(f's_mov_b32 s{sSPIN}, {n}')
            p(f'{L}:')
            p.add(self.poll_issue(ph, r, b))
            p('s_waitcnt vmcnt(0)')
            p(f'v_cmp_ne_u32 vcc, s{sTAG}, v{r}')
            p(f's_cbranch_vccz {D}')
            p(f's_sub_u32 s{sSPIN}, s{sSPIN}, 1')
            p(f's_cbranch_scc0 {L}')
        p.cond_end()
        p(f'{D}:')

    def dma_priv(self, S, soff_reg, a, tag):
        out = [f's_add_u32 m0, s{sMW}, {a}']
        for b in range(4):
            out.append((f'buffer_load_dwordx4 v{vDP+b}, {srd(S)}, s{soff_reg} offen offset:{1024*b} lds', tag, MW(tag, a, 16384, a+1)))
        out.append(f's_add_u32 s{soff_reg}, s{soff_reg}, 32768')
        return [out[0:2], out[2], out[3], out[4:]]

    def absorb_priv(self, a, breg, bval, dst, tag):
        return [(f'ds_read_b64_tr_b16 {rr(dst,2,4*ct+2*h)}, v{breg+(ct>>1)} offset:{a-bval+h*2048+8*(ct&1)}', 'a'+tag, MR(tag, a, 16384, a+1))
                for ct in range(4) for h in range(2)]

    W1A = [36864, 49152, 61440, 73728, 102400, 131072, 143360, 0, 12288, 24576, 86016, 114688, 102400, 131072, 143360, 0]
    def dma_w1(self, k):
        o = []
        for sec in range(3):
            o.append([f's_add_u32 m0, s{sD1}, {self.W1A[k] + sec*896}',
                      (f'buffer_load_dwordx4 v{vDW1}, {srd(S_W1)}, s{sD2} offen offset:{128*sec} lds', f'w1_{k}', MW(f'w1_{k}', self.W1A[k], SLOT))])
        if k < 15: o[-1].append(f's_add_u32 s{sD2}, s{sD2}, {32*2752}')
        return o
    def absorb_w1(self, ks, tmp):
        o = []; cur = None
        for k in ks:
            a = self.W1A[k]
            if a + 6144 <= 65535: base, br = 0, vT1
            else:
                if cur is None or not (0 <= a - cur and a - cur + 6144 <= 65535):
                    cur = 86016 if a >= 86016 else a
                    o += [f'v_add_u32 v{tmp+m}, {cur}, v{vT1+m}' for m in range(3)]
                base, br = cur, tmp
            o += [(f'ds_read_b64_tr_b16 {ar(k*12+m*4+2*h,2)}, v{br+m} offset:{a-base+h*6144}', f'aw1_{k}', MR(f'w1_{k}', a, SLOT))
                  for m in range(3) for h in range(2)]
        return o

    def dma_h(self, g):
        a = L_H + 20480*g
        ld = lambda i: (f'buffer_load_dwordx4 v{vL16}, {srd(S_WS)}, s{sT3} offen offset:{1024*i} sc1 lds', f'h{g}', MW(f'h{g}', a, 20480))
        o = [[f's_add_u32 m0, s{sT2}, {a}', ld(0)], ld(1), ld(2), ld(3),
             [f's_add_u32 m0, s{sT2}, {a+4096}', f's_add_u32 s{sT3}, s{sT3}, 4096', ld(0)]]
        if g < 3: o[-1].append(f's_add_u32 s{sT3}, s{sT3}, 16384')
        return o

    ACCQ = [0, 4, 8, 12]; ACCK = [16, 20, 24, 28, 32]; ACCV = [36, 160, 164, 168, 172]
    def p1_gemm(self, pre):
        p = self.p
        fr = lambda T, s: 40+20*(s & 1)+4*T
        def rd(T, s):
            return (f'ds_read_b128 {vr(fr(T,s),4)}, v{vHR+(s&1)+2*(s>>3)} offset:{((s>>1)&3)*10240+T*2048}', f'fr{s}',
                    MR(f'h{s>>2}', L_H+20480*(s >> 2), 20480))
        p.add([rd(T, 0) for T in range(5)])
        steps = []
        for s in range(16):
            ms = []
            for T in range(5):
                h = vr(fr(T, s), 4)
                C = lambda a: '0' if s == 0 else vr(a, 4)
                ms.append(f'{MFMA} {vr(self.ACCK[T],4)}, {ar(s*12+4,4)}, {h}, {C(self.ACCK[T])}')
                ms.append(f'{MFMA} {vr(self.ACCV[T],4)}, {h}, {ar(s*12+8,4)}, {C(self.ACCV[T])}')
                if T > 0: ms.append(f'{MFMA} {vr(self.ACCQ[T-1],4)}, {ar(s*12,4)}, {h}, {C(self.ACCQ[T-1])}')
            steps.append(ms)
        head = [[] for _ in range(16)]; tail = [[] for _ in range(16)]
        vq = [(0, x) for x in pre]
        for k in (9, 10, 11): vq += [(0, x) for x in self.dma_wq(k)]
        for k in (12, 13, 14): vq += [(3, x) for x in self.dma_wq(k)]
        vq += [(7, x) for x in self.dma_wq(15)]
        wo = [f's_lshl_b32 s{sD0}, s{sW}, 17', f's_lshl_b32 s{sT0}, s{sJ}, 7', f's_add_u32 s{sD0}, s{sD0}, s{sT0}']
        for i, e in enumerate((7, 9, 9, 11)):
            d = self.dma_priv(S_WO, sD0, WOA[i], f'wo{i}')
            if i == 0: d[0] = wo + d[0]
            vq += [(e, x) for x in d]
        late = [[f's_add_u32 s{sA0}, s{sXB}, 4096'] + self.tagged_loads([(208, sXB, 0)])] + self.tagged_loads([(212, sA0, 0)])
        late += [f'buffer_load_dwordx4 {vr(216+4*pp,4)}, v{vXO}, {srd(S_X)}, s{sXO} offen offset:{64*pp}' for pp in range(2)]
        late += [[f's_cmp_eq_u32 s{sGW}, 1', f's_cselect_b32 s{sT0}, 0, {OOB}',
                  f'buffer_load_dwordx4 v[176:179], v{vL16}, {srd(S_WS)}, s{sT0} offen offset:{WS_HELLO} sc1']]
        vq += [(11, x) for x in late]
        rate = self.o.get('rate', 4)
        pos = {}
        qi = 0
        for s in range(16):
            n = 0
            while qi < len(vq) and vq[qi][0] <= s and (n < rate or s == 15):
                tail[s].append(vq[qi][1]); qi += 1; n += 1
            tail[s] += self.touches(f'g{s}')
        for k in (6, 7, 8): tail[k-6] += self.absorb_wq(k)
        head[3] += [[WVM('h1'), WLGA(), 's_barrier']]
        head[7] += [[WVM('h2'), WVM('wq11'), WLGA(), 's_barrier']]
        tail[7] += self.absorb_wq(9) + self.absorb_wq(10)[:3]
        tail[8] += self.absorb_wq(10)[3:] + self.absorb_wq(11)
        head[9] += [[WVM('wq14'), WLGA(), 's_barrier']]
        tail[9] += self.absorb_wq(12); tail[10] += self.absorb_wq(13)
        head[11] += [[WVM('h3'), WVM('wq15'), WLGA(), 's_barrier']]
        tail[11] += self.absorb_wq(14); tail[12] += self.absorb_wq(15)
        tail[15] += [f's_lshl_b32 s{sT0}, s{sJ}, 11', f's_lshl_b32 s{sT1}, s{sW}, 9', f's_add_u32 s{sT0}, s{sT0}, s{sT1}',
                     f's_add_u32 s{sT2}, s{sT0}, s{sCB}', f's_add_u32 s{sT3}, s{sT2}, 32768']
        for s in range(16):
            f = head[s] + ([rd(T, s+1) for T in range(5)] if s < 15 else []) + tail[s]
            if s: p.add([WLG(f'fr{s}')])
            p.add(spread(steps[s], f, 0, 14))

    def attention(self):
        QB, KB, VB = 104, 112, 122
        MK = self.MK
        vpos = {4: 0, 2: 2, 0: 4, 1: 6, 3: 8}
        SP, SC = 40, 56
        prevT = [0, 0, 1, 2]; biasP = [MK+8, MK+12, MK+4, MK+4]
        def cv(d, a): return [f'v_cvt_pk_bf16_f32 v{d}, v{a}, v{a+1}', f'v_cvt_pk_bf16_f32 v{d+1}, v{a+2}, v{a+3}']
        o = []
        o += cv(KB, self.ACCK[0])
        for t in range(4):
            o += cv(KB+2*(t+1), self.ACCK[t+1]) + cv(QB+2*t, self.ACCQ[t])
        vc = []
        for T in range(5): vc += cv(VB+vpos[T], self.ACCV[T])
        ms = []
        for t in range(4):
            ms.append(f'v_mfma_f32_16x16x16_bf16 {vr(SP+4*t,4)}, {vr(KB+2*prevT[t],2)}, {vr(QB+2*t,2)}, {vr(biasP[t],4)}')
            ms.append(f'v_mfma_f32_16x16x16_bf16 {vr(SC+4*t,4)}, {vr(KB+2*(t+1),2)}, {vr(QB+2*t,2)}, {vr(MK,4)}')
        o += interleave(ms, vc, every=1, per=2)
        M = 72
        for t in range(4):
            o += [f'v_max_f32 v{SP+4*t+r}, v{SP+4*t+r}, v{SC+4*t+r}' for r in range(4)]
            o += [f'v_max3_f32 v{M+t}, v{SP+4*t}, v{SP+4*t+1}, v{SP+4*t+2}', f'v_max_f32 v{M+t}, v{M+t}, v{SP+4*t+3}']
            if t == 1: hold = [f'v_permlane32_swap_b32 v{M}, v{M+1}', f'v_max_f32 v{M}, v{M}, v{M+1}']
            if t == 2: o += hold
        o += [f'v_permlane32_swap_b32 v{M+2}, v{M+3}', f'v_max_f32 v{M+2}, v{M+2}, v{M+3}',
              f'v_permlane16_swap_b32 v{M}, v{M+2}', f'v_max_f32 v{M}, v{M}, v{M+2}',
              f'v_mul_f32 v{M+4}, 0xbeb8aa3b, v{M}', f'v_mul_f32 v{M}, 0xbeb8aa3b, v{M}',
              f'v_permlane16_swap_b32 v{M}, v{M+4}', f'v_mov_b32 v{M+2}, v{M}', f'v_mov_b32 v{M+6}, v{M+4}',
              f'v_permlane32_swap_b32 v{M}, v{M+2}', f'v_permlane32_swap_b32 v{M+4}, v{M+6}']
        PB = 0
        OA = [VB+4, VB+2, VB+6, VB+0]
        for t in range(4):
            o += [f'v_pk_fma_f32 {vr(SP+4*t+2*hh,2)}, {vr(SP+4*t+2*hh,2)}, s[{sK}:{sK+1}], {vr(M+2*t,2)} op_sel_hi:[1,1,0]' for hh in range(2)]
        for t in range(4):
            o += [f'v_exp_f32 v{SP+4*t+r}, v{SP+4*t+r}' for r in range(4)]
            if t > 0:
                u = t-1
                o += [f'v_mfma_f32_16x16x16_bf16 {vr(SC+4*u,4)}, v[100:101], {vr(16+2*u,2)}, 0',
                      f'{MFMA} {vr(SP+4*u,4)}, {vr(OA[u],4)}, {vr(PB+4*u,4)}, 0']
            o += cv(16+2*t, SP+4*t)
            pp, pc = (PB+4*t, PB+4*t+2) if (t & 1) == 0 else (PB+4*t+2, PB+4*t)
            for hh in range(2):
                o += [f'v_bfi_b32 v{pp+hh}, v{MK+16+hh}, 0, v{16+2*t+hh}', f'v_and_b32 v{pc+hh}, v{MK+16+hh}, v{16+2*t+hh}']
        o += [f'v_rcp_f32 v{SC}, v{SC}', f'v_rcp_f32 v{SC+4}, v{SC+4}',
              f'v_mfma_f32_16x16x16_bf16 {vr(SC+12,4)}, v[100:101], {vr(22,2)}, 0',
              f'{MFMA} {vr(SP+12,4)}, {vr(OA[3],4)}, {vr(PB+12,4)}, 0']
        for t in range(4):
            if t == 2: o += [f'v_rcp_f32 v{SC+8}, v{SC+8}', f'v_rcp_f32 v{SC+12}, v{SC+12}']
            o += [f'v_mul_f32 v{SP+4*t+r}, v{SP+4*t+r}, v{SC+4*t}' for r in range(4)] if t < 2 else \
                 [f'v_pk_mul_f32 {vr(SP+4*t+2*hh,2)}, {vr(SP+4*t+2*hh,2)}, {vr(SC+4*t,2)} op_sel_hi:[1,0]' for hh in range(2)]
            o += cv(24+2*t, SP+4*t)
            if t & 1:
                b = 24+2*(t-1)
                o += [f'v_permlane16_swap_b32 v{b}, v{b+2}', f'v_permlane16_swap_b32 v{b+1}, v{b+3}',
                      (f'buffer_store_dwordx4 {vr(b,4)}, v{vSTO}, {srd(S_WS)}, s{sT2 if t==1 else sT3} offen sc1', 'ost')]
        return o

    def ks_setup(self, region, tile_stride, wave_stride, areg):
        o = [f's_mul_i32 s{sT0}, s{sW}, {wave_stride}', f's_add_u32 s{sT0}, s{sT0}, s{sCB}', f's_add_u32 s{sT0}, s{sT0}, {region}']
        for n in range(4):
            o += [f's_add_u32 s{sT1}, s{sW}, {n+1}', f's_and_b32 s{sT1}, s{sT1}, 3', f's_mul_i32 s{sN+n}, s{sT1}, {tile_stride}',
                  f's_add_u32 s{sN+n}, s{sN+n}, s{sT0}', f's_mul_i32 s{sT1}, s{sT1}, {3*4096}',
                  f'v_add_u32 v{areg+n}, s{sT1}, v{vL16}']
        return o

    def ksplit(self, nm, nsteps, wreg, breg, acc, part, areg, lead, latfill, extra_vm=(), last_oob=False, base=None, after2=()):
        p = self.p
        loads = []
        for n in range(4):
            for i in range(nsteps):
                l = []
                if i and i % 4 == 0: l.append(f's_add_u32 s{sN+n}, s{sN+n}, 4096')
                if last_oob and i == nsteps-1: l.append(f's_add_u32 s{sN+n}, s{sN+n}, s{sA0}')
                l.append(f'buffer_load_dwordx4 {rr(breg(n*nsteps+i),4)}, v{vL16}, {srd(S_WS)}, s{sN+n} offen offset:{(i%4)*1024} sc1')
                loads.append(l)
        loads += list(extra_vm)
        p.add(spread(loads[:lead], latfill, min(self.o.get('lead0', 4), lead-1)) if latfill else loads[:lead])
        li = lead
        rg = lambda n: [(L_RED+t*12288+4096*n, L_RED+t*12288+4096*n+4096) for t in range(4)]
        wr = lambda n: [(f'ds_write_b128 v{areg+n}, {vr(acc+16*n+4*ct,4)} offset:{L_RED+4096*n+1024*ct}', None, (rg(n), 'W', 0, f'{nm}{n}')) for ct in range(4)]
        rdp = lambda n, dst: [(f'ds_read_b128 {vr(dst+4*ct,4)}, v{areg+3} offset:{L_RED+4096*n+1024*ct}', None, (rg(n), 'R', 0, f'{nm}{n}')) for ct in range(4)]
        for n in range(4):
            ms = []
            if n == 3: loads += list(after2)
            for i in range(nsteps):
                g = []
                for ct in range(4):
                    a = acc+16*n+4*ct
                    c0 = vr(a, 4) if (i or n == 3) else '0'
                    g.append(f'{MFMA} {vr(a,4)}, {wreg(i,ct)}, {rr(breg(n*nsteps+i),4)}, {c0}')
                if li < len(loads):
                    g.insert(1, loads[li]); li += 1
                ms += g
            f = []
            if n >= 1: f += wr(n-1)
            if n == 2: f = f + [self.bar(), rdp(0, acc+48), rdp(1, part)]
            if n == 3:
                f = f + [self.bar(), rdp(2, part+16)]
                f2 = [f'v_add_f32 v{part+k}, v{part+k}, v{part+16+k}' for k in range(16)] + (base or [])
            if n == 3 and nsteps > 4:
                h = len(ms)//2
                p.add(spread(ms[:h], f, 4, h) + spread(ms[h:], f2, 8, len(ms)-h))
            elif n == 3:
                p.add(spread(ms, f, 4, len(ms)))
            else:
                p.add(spread(ms, f, 4, max(len(ms)-8, 12)))
        return loads[li:]

    def unpack8(self, dst, src):
        o = []
        for k in range(8):
            o += [f'v_lshlrev_b32 v{dst+2*k}, 16, v{src+k}', f'v_and_b32 v{dst+2*k+1}, 0xffff0000, v{src+k}']
        return o

    def build(self):
        p = self.p; O = self.o
        self.entry()
        p.add(self.stamp('karg'))
        p.save('head'); st = self.nst
        p('s_cbranch_scc1 L_NP')
        self.p0()
        p('s_branch L_J')
        p('L_NP:')
        p.restore('head'); self.nst = st
        p(f's_mov_b64 s[{S_WQ}:{S_WQ+1}], s[42:43]')
        tt = flat(self.touches('w0'))
        i0 = min([i for i, x in enumerate(tt) if isinstance(x, tuple) and srd(S_WQ) not in x[0]], default=len(tt))
        p.add(tt[:i0] + self.srds((S_WO, S_W1, S_W2, S_OUT, S_WS)) + tt[i0:])
        p.add(self.stamp('iss'))
        p('L_J:')
        p.add(self.stamp('join'))
        p.add(self.precompute())
        self.hello()
        p.add(self.stamp('pre'))
        p.add(self.ln())
        p.add(self.stamp('ln'))
        p(f's_mov_b32 s{sT1}, {WS_MOD}')
        p.add([WVM('T')])
        p.add(self.stamp('tback'))
        ml = [(48+4*i, sT1, 1024*i) for i in range(4)]
        c1, c2, c3 = O['c1'], O['c2'], O['c3']
        assert c1+c2+c3 == 9 and c1 >= 3 or True
        p.add(self.tagged_loads(ml))
        p.add(self.touches('c1'))
        for k in range(c1): p.add(self.dma_wq(k))
        self.tagged_check(ml)
        p.add(self.stamp('moda'))
        for v_, dst in ((1, 72), (0, 64)):
            for e in range(2):
                for m in range(2):
                    s_ = 48+8*v_+4*e+m; d = dst+4*e+2*m
                    p(f'v_lshlrev_b32 v{d}, 16, v{s_}'); p(f'v_and_b32 v{d+1}, 0xffff0000, v{s_}')
        for r in range(3):
            for m in range(4): p(f'v_pk_fma_f32 {vr(16+8*r+2*m,2)}, {vr(16+8*r+2*m,2)}, {vr(72+2*m,2)}, {vr(64+2*m,2)}')
            for m in range(4): p(f'v_cvt_pk_bf16_f32 v{4+4*r+m}, v{16+8*r+2*m}, v{17+8*r+2*m}')
            if r < 2: p(f'buffer_store_dwordx4 {vr(4+4*r,4)}, v{vHS}, {srd(S_WS)}, s{sHS0} offen offset:{2048*(r+1)-(2048 if r else 0)*0} sc1' if r == 0 else
                        f'buffer_store_dwordx4 {vr(4+4*r,4)}, v{vHS}, {srd(S_WS)}, s{sT0} offen sc1', 'hst')
            else: p(f'buffer_store_dwordx4 {vr(4+4*r,4)}, v{vHS+1}, {srd(S_WS)}, s{sHS1} offen sc1', 'hst')
            if r == 0: p(f's_add_u32 s{sT0}, s{sHS0}, 4096')
        p.add(self.touches('c2'))
        mk = self.masks()
        p.add(spread(mk, flat([self.dma_wq(k) for k in range(c1, c1+c2)])))
        p.add(self.publish(0, 'hst'))
        p.add(self.stamp('hpub'))
        p.add([WVM('wq2'), 's_barrier'])
        setup = [f's_mul_i32 s{sT2}, s{sW}, 5120', f's_add_u32 s{sT3}, s{sT2}, s{sCB}', f's_add_u32 s{sT3}, s{sT3}, {C_H}']
        p.add(spread(flat([self.absorb_wq(k) for k in range(3)]) + setup, flat([self.dma_wq(k) for k in range(c1+c2, c1+c2+c3)])))
        p.add(self.poll_issue(0, 48))
        p.add([WVM('wq5'), WLGA(), 's_barrier'])
        p.add(flat([self.absorb_wq(k) for k in range(3, 6)]))
        self.poll_check(0, 48)
        p.add(self.stamp('hflag'))
        p.add(self.flush())
        rest = flat([self.dma_wq(k) for k in range(c1+c2+c3, 9)])
        hq = self.dma_h(0) + rest + self.dma_h(1) + self.dma_h(2) + self.dma_h(3)
        nh = O.get('nh', 10) + len(rest)
        p.add(hq[:nh])
        p.add([WVM('h0'), WVM('wq8'), WLGA(), 's_barrier'])
        p.add(self.stamp('hready'))
        self.p1_gemm(hq[nh:])
        p.add(self.stamp('p1gemm'))
        p.add(self.bar())
        self.tail()
        p('L_END:')
        p('s_endpgm')
        return p.finalize()

    def tail(self):
        p = self.p; O = self.o
        nC, nP, natt = O['nC'], O['nP'], O['natt']
        att = self.attention()
        d = self.touches('att') + flat([self.dma_w1(k) for k in range(natt)])
        p.add(spread(att, d, 0, O.get('attend', 130)))
        p.add(self.stamp('attn'))
        self.epoch()
        ab = [f'v_add_u32 v128, 65536, v{vPB}', f'v_add_u32 v129, 65536, v{vPB+1}']
        for i in range(4):
            hi = WOA[i] >= 65536
            ab += [WVM(f'wo{i}')] + self.absorb_priv(WOA[i], 128 if hi else vPB, 65536 if hi else 0, ('a', 192+16*i), f'wo{i}')
        setup = self.ks_setup(C_O, 16384, 4096, 160)
        setup += [f's_lshr_b32 s{sT2}, s{sW}, 1', f's_lshl_b32 s{sT2}, s{sT2}, 10', f's_and_b32 s{sT0}, s{sW}, 1', f's_lshl3_add_u32 s{sT2}, s{sT0}, s{sT2}',
                  f's_add_u32 s{sT2}, s{sT2}, {L_MISC}', f'v_add_u32 v131, s{sT2}, v{vL16}',
                  f's_lshl_b32 s{sT0}, s{sJ}, 7', f's_add_u32 s{sT0}, s{sT0}, {L_MISC}', f'v_lshlrev_b32 v132, 4, v{vG}',
                  f'v_add_u32 v132, s{sT0}, v132'] + self.unpack8(144, 216)
        p.add(ab + setup)
        self.tagged_check([(208, sXB, 0), (212, sA0, 0)])
        p('ds_write_b64 v131, v[208:209]', None, MW('mod', L_MISC, 4096))
        p('ds_write_b64 v131, v[212:213] offset:2048', None, MW('mod', L_MISC, 4096))
        p.add(self.publish(1, 'ost'))
        p.add(self.stamp('pub1'))
        p.add(self.bar())
        k1 = natt + nC
        assert k1 <= 12
        GA, CB, GBP = 164, 180, 196
        mr = MR('mod', L_MISC, 4096)
        work = [(f'ds_read_b128 {vr(208+8*k+4*pp,4)}, v132 offset:{off+64*pp}', None, mr) for k, off in enumerate((0, 2048)) for pp in range(2)]
        work += [(f'ds_read_b128 {vr(GBP+4*pp,4)}, v132 offset:{3072+64*pp}', None, mr) for pp in range(2)]
        work += self.absorb_w1(range(natt), 128)
        d = self.touches('pub1') + flat([self.dma_w1(k) for k in range(natt, k1)]) + self.poll_issue(1, 133)
        p.add(spread(work, d, 0, int(len(work)*O.get('w1f', 0.7))))
        self.poll_check(1, 133)
        p.add(self.stamp('flag1'))
        lat = [[WVM(f'w1_{k1-1}'), WLGA(), 's_barrier']] + self.absorb_w1(range(natt, k1), 128) + self.unpack8(GA, 208) + self.unpack8(CB, 216)
        lat += [f's_lshl_b32 s{sT0}, s{sW}, 14', f's_lshl_b32 s{sT1}, s{sJ}, 11', f's_add_u32 s{sT0}, s{sT0}, s{sT1}',
                f's_add_u32 s{sT0}, s{sT0}, s{sCB}', f's_add_u32 s{sT2}, s{sT0}, {C_X1}',
                f's_lshl_b32 s{sT0}, s{sW}, 10', f's_lshr_b32 s{sT1}, s{sJ}, 1', f's_lshl_b32 s{sT1}, s{sT1}, 8', f's_add_u32 s{sT0}, s{sT0}, s{sT1}',
                f's_and_b32 s{sT1}, s{sJ}, 1', f's_lshl3_add_u32 s{sT0}, s{sT1}, s{sT0}',
                f's_add_u32 s{sT0}, s{sT0}, s{sCB}', f's_add_u32 s{sT3}, s{sT0}, {C_ST}',
                f'v_lshrrev_b32 v204, 1, v{vG}', f'v_lshlrev_b32 v204, 2, v204', f'v_lshl_add_u32 v204, v{vC}, 4, v204',
                'v_mov_b32 v206, 0', 'v_mov_b32 v207, 0']
        k2 = min(k1 + nP, 16)
        ex = self.touches('p2') + flat([self.dma_w1(k) for k in range(k1, min(k2, 15))])
        ex2 = self.dma_w1(15) if k2 == 16 else []
        left = self.ksplit('ra', 4, lambda i, ct: ar(192+16*i+4*ct, 4), lambda k: ('v', 4*k), 64, 0, 160, O.get('lead2', 10), lat, ex, after2=ex2)
        p.add(self.stamp('p2gemm'))
        Y = 112; X1 = 216
        ep = [f'v_pk_add_f32 {vr(2*k,2)}, {vr(2*k,2)}, {vr(16+2*k,2)}' for k in range(8)]
        ep += [f'v_pk_add_f32 {vr(Y+2*k,2)}, {vr(Y+2*k,2)}, {vr(2*k,2)}' for k in range(8)]
        ep += [f'v_pk_fma_f32 {vr(Y+2*k,2)}, {vr(Y+2*k,2)}, {vr(GA+2*k,2)}, {vr(144+2*k,2)}' for k in range(8)]
        ep += [f'v_cvt_pk_bf16_f32 v{X1+k}, v{Y+2*k}, v{Y+2*k+1}' for k in range(8)]
        ep += [f'v_pk_mul_f32 {vr(Y+2*k,2)}, {vr(Y+2*k,2)}, {vr(CB+2*k,2)}' for k in range(8)]
        for pp in range(2):
            ep += [f'v_cvt_pk_bf16_f32 v{32+k}, v{Y+2*k}, v{Y+2*k+1}' for k in range(4*pp, 4*pp+4)]
            ep.append((f'buffer_store_dwordx4 {vr(32+4*pp,4)}, v{vL16}, {srd(S_WS)}, s{sT2} offen offset:{1024*pp} sc1', 'xst'))
        for k in range(8):
            ep += [f'v_dot2c_f32_bf16 v206, s{sONES}, v{X1+k}', f'v_dot2c_f32_bf16 v207, v{X1+k}, v{X1+k}']
        ep += ['v_permlane32_swap_b32 v206, v207', 'v_add_f32 v206, v206, v207', 'v_mov_b32 v207, v206',
               'v_permlane16_swap_b32 v206, v207', 'v_add_f32 v206, v206, v207',
               (f'buffer_store_dword v206, v204, {srd(S_WS)}, s{sT3} offen sc1', 'xst')]
        p.add(spread(ep, left, 0, 40) if left else ep)
        U, V = 128, 140
        uvr = [f'v_and_b32 v204, 8, v{vC}', f'v_lshlrev_b32 v204, 7, v204', f'v_sub_u32 v204, {L_MISC+2048}, v204',
               f'v_lshl_add_u32 v204, v{vG}, 4, v204'] + [(f'ds_read_b128 {vr(48+4*s,4)}, v204 offset:{64*s}', None, mr) for s in range(16)]
        uvm = lambda ss: [f'{MFMA} {vr(U+4*m,4)}, {ar(s*12+4*m,4)}, {vr(48+4*s,4)}, {"0" if s==0 else vr(U+4*m,4)}' for s in ss for m in range(3)]
        setup2 = [f's_mul_i32 s{sD0}, s{sW}, {11*32768}', f's_lshl_b32 s{sT1}, s{sJ}, 7', f's_add_u32 s{sD0}, s{sD0}, s{sT1}',
                  f'v_add_u32 v{vPB}, {L_W2}, v{vPB}', f'v_add_u32 v{vPB+1}, {L_W2}, v{vPB+1}',
                  f's_lshl_b32 s{sT2}, s{sW}, 14', f's_add_u32 s{sT3}, s{sT2}, s{sCB}', f's_add_u32 s{sT3}, s{sT3}, {C_X1}',
                  [f's_cmp_ge_u32 s{sW}, 2', f's_cselect_b32 s{sT1}, {X1T[2]-32768}, 0'], f's_add_u32 s{sT2}, s{sT2}, s{sT1}',
                  f's_add_u32 s{sA0}, s{sCB}, {C_ST}', f'v_add_u32 v168, {X1T[2]}, v{vL16}']
        late = list(range(k2, 16))
        dl = flat([self.dma_w1(k) for k in late])
        nu = O.get('nu', 8)
        p.add(uvr)
        p.add(spread(uvm(range(0, min(nu, k1))), dl + setup2))
        p.add(self.publish(2, 'xst'))
        p.add(self.stamp('pub2'))
        p.add([WVM('w1_15')] + self.bar())
        w2reg = lambda i: ('a', 192+16*i) if i < 4 else ('a', 16*(i-4))
        dw2 = lambda i: self.dma_priv(S_W2, sD0, L_W2+16384*(i % 4), f'w2_{i}')
        aw2 = lambda i: [WVM(f'w2_{i}')] + self.absorb_priv(L_W2+16384*(i % 4), vPB, L_W2, w2reg(i), f'w2_{i}')
        n2 = O.get('n2', 2)
        d = flat([dw2(i) for i in range(n2)]) + self.poll_issue(2, 169)
        work = self.absorb_w1(range(k1, 16), 0) + uvm(range(min(nu, k1), k1)) + [self.bar()] + uvm(range(k1, 16))
        p.add(spread(work, d, 0, int(len(work)*O.get('w2f', 0.6))))
        self.poll_check(2, 169)
        p.add(self.stamp('flag2'))
        p.add(self.flush())
        STT = 152; TT = 80; FR = 48
        xl = []
        for s in range(16):
            l = []
            if s % 4 == 0:
                if s: l.append(f's_add_u32 s{sT3}, s{sT3}, 4096')
                l.append(f's_add_u32 m0, s{sT2}, {1024*s}')
            l.append((f'buffer_load_dwordx4 v{vL16}, {srd(S_WS)}, s{sT3} offen offset:{1024*(s%4)} sc1 lds', f'x1_{s}',
                      ([(X1T[t]+1024*s, X1T[t]+1024*s+1024) for t in range(4)], 'W', 0, f'x1_{s}')))
            xl.append(l)
        stl = [f'buffer_load_dwordx4 {vr(STT+4*t,4)}, v{vL16}, {srd(S_WS)}, s{sA0} offen offset:{1024*t} sc1' for t in range(4)]
        hs = [[f's_cmp_ge_u32 s{sJ}, 3', f's_cselect_b32 s{sT1}, 3, 99'], f's_mul_i32 s{sT0}, s{sW}, {3*512}',
              f's_lshl_b32 s{sN}, s{sU0}, 10', f's_add_u32 s{sT0}, s{sT0}, s{sN}', f's_add_u32 s{sT0}, s{sT0}, s{sCB}',
              f's_add_u32 s{sN}, s{sT0}, {C_H}', [f's_cmp_eq_u32 s{sW}, s{sT1}', f's_cselect_b32 s{sN+1}, {OOB}, s{sN}'],
              f's_add_u32 s{sN+2}, s{sN}, {2*H_TILE}', f's_add_u32 s{sN+3}, s{sN+1}, {2*H_TILE}']
        uvfix = [f'v_mov_b32 v{V+k}, v{U+k}' for k in range(12)]
        uvfix += [f'v_mov_b32_dpp v{V+k}, v{U+k} row_ror:8 row_mask:0xf bank_mask:0x3' for k in range(12)]
        uvfix += [f'v_mov_b32_dpp v{U+k}, v{U+k} row_ror:8 row_mask:0xf bank_mask:0xc' for k in range(12)]
        p.add(spread(xl[:8], flat([aw2(i) for i in range(n2)]) + hs + uvfix, 3))
        def rd(t, s): return (f'ds_read_b128 {vr(FR+16*(s&1)+4*t,4)}, v{vL16 if t < 2 else 168} offset:{(t&1)*16384+s*1024}', f'f3{s}',
                              MR(f'x1_{s}', X1T[t]+1024*s, 1024))
        st = []
        for t in range(4):
            st += [f'v_add_f32 v{STT+4*t}, v{STT+4*t}, v{STT+4*t+2}', f'v_add_f32 v{STT+4*t+1}, v{STT+4*t+1}, v{STT+4*t+3}']
        a, b = STT, STT+1
        st += [f'v_permlane32_swap_b32 v{a}, v{a+4}', f'v_permlane32_swap_b32 v{b}, v{b+4}',
               f'v_permlane32_swap_b32 v{a+8}, v{a+12}', f'v_permlane32_swap_b32 v{b+8}, v{b+12}',
               f'v_add_f32 v{a}, v{a}, v{a+4}', f'v_add_f32 v{b}, v{b}, v{b+4}',
               f'v_add_f32 v{a+8}, v{a+8}, v{a+12}', f'v_add_f32 v{b+8}, v{b+8}, v{b+12}',
               f'v_permlane16_swap_b32 v{a}, v{a+8}', f'v_permlane16_swap_b32 v{b}, v{b+8}',
               f'v_add_f32 v{a}, v{a}, v{a+8}', f'v_add_f32 v{b}, v{b}, v{b+8}',
               f'v_mul_f32 v{a}, 0x3b000000, v{a}', f'v_mul_f32 v{b}, 0x3b000000, v{b}',
               f'v_fma_f32 v{b}, -v{a}, v{a}, v{b}', f'v_max_f32 v{b}, 0, v{b}', f'v_add_f32 v{b}, 0x3727c5ac, v{b}',
               f'v_rsq_f32 v{b}, v{b}', f'v_mul_f32_e64 v{a}, -v{a}, v{b}',
               f'v_mov_b32 v{b+8}, v{b}', f'v_mov_b32 v{a+8}, v{a}',
               f'v_permlane16_swap_b32 v{b}, v{b+8}', f'v_permlane16_swap_b32 v{a}, v{a+8}',
               f'v_mov_b32 v{b+4}, v{b}', f'v_mov_b32 v{b+12}, v{b+8}', f'v_mov_b32 v{a+4}, v{a}', f'v_mov_b32 v{a+12}, v{a+8}',
               f'v_permlane32_swap_b32 v{b}, v{b+4}', f'v_permlane32_swap_b32 v{b+8}, v{b+12}',
               f'v_permlane32_swap_b32 v{a}, v{a+4}', f'v_permlane32_swap_b32 v{a+8}, v{a+12}']
        for t in range(4):
            for k in range(12): st.append(f'v_fma_f32 v{TT+12*t+k}, v{STT+4*t}, v{U+k}, v{V+k}')
        p.add([WVM('x1_1'), 's_barrier'])
        p.add([rd(t, 0) for t in range(4)])
        head = [[] for _ in range(16)]; tl = [[] for _ in range(16)]
        tl[0] += xl[8:11]; tl[1] += xl[11:14]; tl[2] += xl[14:16] + stl[:1]; tl[3] += stl[1:]
        head[1] += [[WVM('x1_5'), 's_barrier']]
        head[5] += [[WVM('x1_15'), 's_barrier']]
        rem = list(range(n2, 11))
        dstep = {i: 4 + (k*11)//len(rem) for k, i in enumerate(rem)}
        astep = {i: dstep[i]+4 for i in rem if dstep[i]+4 <= 15}
        for i in rem:
            if i >= 4 and i-4 in astep: astep[i-4] = min(astep[i-4], dstep[i]-1)
        for i, s in astep.items():
            assert i < 4 or 16*(i-4)+15 < 12*s, (i, s)
            tl[s] += aw2(i)
        for i, s in dstep.items():
            if i >= 4: tl[s] += [WLG(f'aw2_{i-4}')]
            tl[s] += dw2(i)
        ns = len(st)
        sts = [6, 7, 7, 11, 11, 14, 15, 15]
        for k, s in enumerate(sts): tl[s] += st[k*ns//len(sts):(k+1)*ns//len(sts)]
        for s in range(16):
            ms = [f'{MFMA} {vr(12*t+4*m,4)}, {ar(s*12+4*m,4)}, {vr(FR+16*(s&1)+4*t,4)}, {"0" if s==0 else vr(12*t+4*m,4)}'
                  for t in range(4) for m in range(3)]
            f = head[s] + ([rd(t, s+1) for t in range(4)] if s < 15 else []) + tl[s]
            if s: p.add([WLG(f'f3{s}')])
            p.add(spread(ms, f, 0, 12))
        p.add(self.stamp('p3gemm'))
        for pr in range(2):
            for m in range(3):
                b = FR+12*pr+4*m
                for tt in range(2):
                    t = 2*pr+tt; a = 12*t+4*m
                    for hh in range(2):
                        p(f'v_pk_fma_f32 {vr(a+2*hh,2)}, {vr(a+2*hh,2)}, {vr(STT+4*t,2)}, {vr(TT+a+2*hh,2)} op_sel:[0,1,0] op_sel_hi:[1,1,1]')
                    for hh in range(2):
                        p(f'v_cvt_pk_bf16_f32 v{b+2*tt+hh}, v{a+2*hh}, v{a+2*hh+1}')
                for k in (0, 2, 1, 3): p(f'v_pk_max_i16 v{b+k}, v{b+k}, 0')
                p(f'v_permlane16_swap_b32 v{b}, v{b+2}')
                p(f'v_permlane16_swap_b32 v{b+1}, v{b+3}')
                p(f'buffer_store_dwordx4 {vr(b,4)}, v{vSTH}, {srd(S_WS)}, s{sN+2*pr+(1 if m else 0)} offen offset:{512*m} sc1', 'hdst')
        p.add(flat([aw2(i) for i in rem if i not in astep]))
        p.add(self.ks_setup(C_H, H_TILE, 11*1024, 160))
        p(f's_cmp_eq_u32 s{sW}, 3')
        p(f's_cselect_b32 s{sA0}, {OOB}, 0')
        p.add(self.unpack8(GA, GBP) + self.unpack8(CB, X1))
        p.add(self.publish(3, 'hdst'))
        p.add(self.stamp('pub3'))
        p.add(self.bar())
        p.add(self.poll_issue(3, 0))
        self.poll_check(3, 0)
        p.add(self.stamp('flag3'))
        w2op = lambda i, ct: rr(w2reg(i), 4, 4*ct)
        base = [f'v_fma_f32 v{CB+k}, v{64+k}, v{GA+k}, v{CB+k}' for k in range(16)]
        self.ksplit('rb', 11, w2op, lambda k: ('a', 112+4*(k % 20)), 0, 64, 160, O.get('lead4', 9), [], last_oob=True, base=base)
        p.add(self.stamp('p4gemm'))
        Y = 48
        for pp in range(2):
            for k in range(4*pp, 4*pp+4): p(f'v_pk_fma_f32 {vr(Y+2*k,2)}, {vr(Y+2*k,2)}, {vr(GA+2*k,2)}, {vr(CB+2*k,2)}')
            for k in range(4*pp, 4*pp+4): p(f'v_cvt_pk_bf16_f32 v{96+k}, v{Y+2*k}, v{Y+2*k+1}')
            p(f'buffer_store_dwordx4 {vr(96+4*pp,4)}, v{vXO}, {srd(S_OUT)}, s{sXO} offen offset:{64*pp}')
        self.finish()

    def epoch(self):
        p = self.p
        LE, LL, LD = p.label('L_EP'), p.label('L_EPL'), p.label('L_EPD')
        def chk():
            for k in range(4): p(f'v_xor_b32 v{176+k}, s{sTAG}, v{176+k}')
            p('v_or3_b32 v176, v176, v177, v178')
            p('v_or_b32 v176, v176, v179')
            p('v_cmp_ne_u32 vcc, 0, v176')
            p(f's_cbranch_vccz {LD}')
        p(f's_cmp_lg_u32 s{sGW}, 1')
        p(f's_cbranch_scc1 {LE}')
        p.cond_begin()
        chk()
        p(f's_mov_b32 s{sSPIN}, 20000')
        p(f'{LL}:')
        p(f'buffer_load_dwordx4 v[176:179], v{vL16}, {srd(S_WS)}, 0 offen offset:{WS_HELLO} sc1')
        p('s_waitcnt vmcnt(0)')
        chk()
        p(f's_sub_u32 s{sSPIN}, s{sSPIN}, 1')
        p(f's_cbranch_scc0 {LL}')
        p(f'{LD}:')
        p('s_mov_b64 exec, 1')
        p(f'buffer_store_dword v{vTAG}, v{vL16}, {srd(S_WS)}, 0 offen sc1')
        p('s_mov_b64 exec, -1')
        p.cond_end()
        p(f'{LE}:')

    def finish(self):
        p = self.p
        hs = self.o.get('hs')
        if hs:
            p.add([WVMA()])
            p.add(self.stamp('end'))
            p('s_waitcnt lgkmcnt(0)')
            hw = self.o.get('hw', 532)
            if hw >= 0:
                p(f's_cmp_lg_u32 s{sGW}, {hw}')
                p('s_cbranch_scc1 L_END')
            if hs == 'none': p(f's_mov_b32 s{sT0}, 0')
            elif hs[0] == 'R':
                p(f's_sub_u32 s{sT0}, s{STAMP0+2}, s{STAMP0+4}')
                p(f's_lshl_b32 s{sT0}, s{sT0}, 1')
            else:
                p(f's_sub_u32 s{sT0}, s{STAMP0+2}, s{STAMP0}')
                p(f's_lshr_b32 s{sT0}, s{sT0}, 3')
            p(f's_min_u32 s{sT0}, s{sT0}, 20000')
            p(f's_add_u32 s{sT0}, s{sT0}, 3000')
            p(f's_mov_b32 s{sSPIN}, 200000')
            p('L_HS:')
            p(f's_memrealtime s[{STAMP0+6}:{STAMP0+7}]')
            p('s_waitcnt lgkmcnt(0)')
            p(f's_sub_u32 s{sT1}, s{STAMP0+6}, s{STAMP0+4}')
            p(f's_cmp_ge_u32 s{sT1}, s{sT0}')
            p('s_cbranch_scc1 L_END')
            p(f's_sub_u32 s{sSPIN}, s{sSPIN}, 1')
            p('s_cbranch_scc0 L_HS')
            return
        if self.diag:
            p.add([WVMA()])
            p.add(self.stamp('end'))
            p.add(self.flush())
            p(f's_lshl_b32 s{sT0}, s{sGW}, 8')
            p(f's_add_u32 s{sT0}, s{sT0}, {WS_DIAG}')
            p(f'v_lshlrev_b32 v1, 2, v{vLANE}')
            p(f'buffer_store_dword v{vDIAG}, v1, {srd(S_WS)}, s{sT0} offen')


HEADER = open(os.path.join(os.path.dirname(os.path.abspath(__file__)), '..', 'cdna_kernels',
              'adaLN_cond__sliding_local_dilated__dense_activation_relu__prompt.s.ref')).read()

def emit(diag=False, hdiag=None, **opt):
    g = Gen(diag or bool(hdiag), hdiag, **opt)
    ins = g.build()
    head = HEADER.split(KNAME + ':')[0].replace('grid=(4096,1,1) block=(256,1,1) lds=0', 'grid=(256,1,1) block=(256,1,1) lds=163840')
    tail = HEADER.split('s_endpgm\n')[1].replace('next_free_vgpr 256', 'next_free_vgpr 512')
    body = '\n'.join(('' if i.is_label else '    ') + i.text for i in ins)
    txt = head + KNAME + ':\n' + body + '\n' + tail
    txt += '\n'
    if g.diag: txt += '\n; STAMPS ' + ' '.join(g.stamp_names) + '\n'
    return txt

if __name__ == '__main__':
    import argparse
    ap = argparse.ArgumentParser()
    ap.add_argument('out'); ap.add_argument('--diag', action='store_true'); ap.add_argument('--hdiag')
    ap.add_argument('-o', action='append', default=[])
    a = ap.parse_args()
    opt = {}
    for kv in a.o:
        k, v = kv.split('=')
        try: opt[k] = float(v) if '.' in v else int(v)
        except ValueError: opt[k] = v
    open(a.out, 'w').write(emit(a.diag, a.hdiag.split(',') if a.hdiag else None, **opt))
```

```python
import sys, os
sys.path.insert(0, os.path.dirname(os.path.abspath(__file__)))
from asmlib import *

KNAME = 'adaLN_cond__sliding_local_dilated__dense_activation_relu__prompt_kernel'

WS_HELLO = 0x400
WS_MOD = 0x8000
WS_CL = 0x100000
CL_STRIDE = 0x50000
C_O, C_X1, C_H, C_ST, C_FL = 0, 0x10000, 0x20000, 0x4C000, 0x4D000
H_TILE = 45056
WS_DIAG = 0xE00000
WS_SIZE = 0x1000000
OOB = 0x40000000

SLOT = 12288
L_H = 73728
L_MISC = 155648
L_P0 = L_MISC + 4096
L_RED = 36864
L_W2 = 36864
X1T = [0, 16384, 102400, 118784]
WOA = [86016, 0, 16384, 114688]

S_X, S_WQ, S_WO, S_W1, S_W2, S_WM, S_OUT, S_WS, S_C, S_CODE = 4, 8, 12, 16, 20, 24, 28, 32, 36, 68
sKW = 3
sSPIN, sONES, sR0, sXO = 40, 41, 42, 43
sK = 44
sEP, sCB, sHS1, sHS0 = 46, 47, 48, 49
sXB, sD0, sD1, sMW, sD2, sU0 = 50, 51, 52, 53, 54, 55
sT4, sT5, sFS, sFP = 56, 57, 58, 59
sW, sCL, sJ, sTAG = 60, 61, 62, 63
sT0, sT1, sT2, sT3 = 64, 65, 66, 67
sN = 72
sA0, sA1, sBLK, sGW = 76, 77, 78, 79
STAMP0 = 80
NSTAMP = 11


def srd(b): return f's[{b}:{b+3}]'
def vr(a, n=1): return f'v{a}' if n == 1 else f'v[{a}:{a+n-1}]'
def ar(a, n=1): return f'a{a}' if n == 1 else f'a[{a}:{a+n-1}]'
def rr(r, n=1, off=0): return (vr if r[0] == 'v' else ar)(r[1]+off, n)
def WVM(tag): return Marker('wait_vm', tag)
def WLG(tag): return Marker('wait_lgkm', tag)
WVMA = lambda: Marker('wait_vm_all')
WLGA = lambda: Marker('wait_lgkm_all')
def MW(name, lo, n, priv=0): return ([(lo, lo+n)], 'W', priv, name)
def MR(name, lo, n, priv=0): return ([(lo, lo+n)], 'R', priv, name)
def cdiv(a, b): return -(-a // b)
def flat(l): return [x for y in l for x in y]

vL16, vTAG, vDP, vTS, vDQ, vDW1, vTP, vG, vC, vLANE = 255, 254, 250, 248, 246, 245, 244, 243, 242, 241
vHS, vHR, vXO, vSTO, vSTH, vT1, vFP, vPB, vDIAG = 239, 235, 234, 233, 232, 229, 228, 225, 224
vJUNK, vT128, vT1K = 227, 247, 205
MFMA = 'v_mfma_f32_16x16x32_bf16'


class Gen:
    def __init__(self, diag=False, hdiag=None, **opt):
        self.p = Prog(); self.p.strict_lds = True
        self.diag = diag; self.hdiag = hdiag
        self.nst = 0; self.flushed = 0; self.stamp_names = []
        self.o = dict(nA=7, nC=3, nP=5, two='w0', tw1='w0', tw2='pub1', r3w2='p2', npoll=24, c1=3, c2=3, c3=3, natt=7)
        self.o.update(opt)

    def stamp(self, name):
        if not self.diag: return []
        if self.hdiag and name not in self.hdiag and name not in ('rt0', 'start', 'end', 'rt1'): return []
        k = self.nst; self.nst += 1
        assert k - self.flushed < NSTAMP, name
        if len(self.stamp_names) <= k: self.stamp_names.append(name)
        op = 's_memrealtime' if name.startswith('rt') else 's_memtime'
        k %= NSTAMP
        return [f'{op} s[{STAMP0+2*k}:{STAMP0+2*k+1}]']

    def flush(self):
        if not self.diag: return []
        o = ['s_waitcnt lgkmcnt(0)']
        for k in range(self.flushed, self.nst):
            o.append(f'v_writelane_b32 v{vDIAG}, s{STAMP0+2*(k%NSTAMP)}, {k}')
        self.flushed = self.nst
        return o

    def bar(self): return [WLGA(), 's_barrier']

    def touch(self, S, nlines, stride, idx, nidx, base=0, tag='T'):
        ni = cdiv(nlines, nidx*64); L = cdiv(nlines, nidx*ni)
        o = [f's_bfm_b64 exec, {L}, 0' if L < 64 else 's_mov_b64 exec, -1', f's_mul_i32 s{sT0}, s{idx}, {L*stride}']
        if base >= 4096: o.append(f's_add_u32 s{sT0}, s{sT0}, {base & ~4095}')
        for i in range(ni):
            o.append((f'buffer_load_dword v{vJUNK}, v{vT128 if stride == 128 else vT1K}, {srd(S)}, s{sT0} offen offset:{base & 4095}', tag))
            if i < ni-1: o.append(f's_add_u32 s{sT0}, s{sT0}, {nidx*L*stride}')
        return o

    def touches(self, pos):
        gi, gn, ki, kn = (sT2, 640, sT3, 80) if pos == 'w0' else (sGW, 1024, sKW, 128)
        o = []
        if pos == 'w0':
            nA = self.o['nA']
            if nA: o += self.touch(S_WQ, nA*768, 128, ki, kn)
            if nA < 16:
                o += self.touch(S_WQ, (16-nA)*768, 128, gi, gn, nA*98304)
                o += self.touch(S_WQ, (16-nA)*96, 1024, ki, kn, nA*98304+384)
        if self.o['two'] == pos: o += self.touch(S_WO, 4096, 128, gi, gn) + self.touch(S_WO, 512, 1024, ki, kn, 384)
        if self.o['tw1'] == pos: o += self.touch(S_W1, 11008, 128, gi, gn)
        if self.o['tw2'] == pos: o += self.touch(S_W2, 11008, 128, gi, gn)
        if self.o['r3w2'] == pos: o += self.touch(S_W2, 1376, 1024, ki, kn, 384)
        if o: o.append('s_mov_b64 exec, -1')
        return [o] if o else []

    def entry(self):
        p = self.p
        p('s_load_dwordx16 s[40:55], s[0:1], 0')
        p('s_load_dwordx2 s[56:57], s[0:1], 64')
        p('s_load_dwordx2 s[58:59], s[0:1], 80')
        p('s_cmp_ge_u32 s2, 256')
        p('s_cbranch_scc1 L_END')
        p.add(self.stamp('rt0'))
        p.add(self.stamp('start'))
        p(f'v_lshrrev_b32 v1, 6, v0')
        p(f'v_and_b32 v{vLANE}, 63, v0')
        p(f's_getpc_b64 s[{S_CODE}:{S_CODE+1}]')
        p('L_PC:')
        p(f'v_readfirstlane_b32 s{sW}, v1')
        p(f's_mov_b32 s{S_CODE+2}, L_END-L_PC')
        p(f's_mov_b32 s{S_CODE+3}, 0x00020000')
        p(f'v_lshlrev_b32 v{vT128}, 7, v{vLANE}')
        p(f's_lshr_b32 s{sT2}, s2, 3')
        p(f's_lshl2_add_u32 s{sKW}, s{sT2}, s{sW}')
        p(f's_lshl_b32 s{sT0}, s{sKW}, 8')
        p('s_mov_b64 exec, 3')
        p(f'buffer_load_dword v{vJUNK}, v{vT128}, {srd(S_CODE)}, s{sT0} offen')
        p('s_mov_b64 exec, -1')
        for b, sz in ((S_WM, 512*6144), (S_X, 2048*1024), (S_C, 1024), (S_WQ, 512*3072)):
            p(f's_mov_b32 s{b+2}, {sz}')
            p(f's_mov_b32 s{b+3}, 0x00020000')
        p(f'v_lshlrev_b32 v{vL16}, 4, v{vLANE}')
        p(f'v_lshlrev_b32 v{vT1K}, 10, v{vLANE}')
        p(f'v_lshrrev_b32 v2, 3, v{vLANE}')
        p(f'v_mul_u32_u24 v2, {6144-1024}, v2')
        p(f'v_add_u32 v2, v2, v{vT128}')
        p(f's_and_b32 s{sT0}, s2, 7')
        p(f's_mul_i32 s{sT3}, s{sT0}, 12')
        p(f's_add_u32 s{sBLK}, s{sT3}, s{sT2}')
        p(f's_lshl_b32 s{sT3}, s{sT3}, 6')
        p(f's_mul_i32 s{sT1}, s{sKW}, {4*6144}')
        p(f's_add_u32 s{sN}, s{sT1}, s{sT3}')
        p(f's_lshl_b32 s{sA1}, s{sT0}, 7')
        p(f's_add_u32 s{sA1}, s{sA1}, s{sKW}')
        p(f's_lshl_b32 s{sA1}, s{sA1}, 11')
        p(f's_lshr_b32 s{sT1}, s2, 6')
        p(f's_lshl2_add_u32 s{sCL}, s{sT0}, s{sT1}')
        p(f's_and_b32 s{sJ}, s{sT2}, 7')
        p(f's_lshl_b32 s{sN+1}, s{sCL}, 6')
        p(f's_lshl1_add_u32 s{sT0}, s{sJ}, s{sW}')
        p(f's_add_u32 s{sT0}, s{sT0}, s{sN+1}')
        p(f's_sub_i32 s{sT0}, s{sT0}, 16')
        p(f's_max_i32 s{sT0}, s{sT0}, 0')
        p(f's_lshl_b32 s{sT0}, s{sT0}, 10')
        p(f's_cmp_lt_u32 s{sW}, 2')
        p(f's_cselect_b32 s{sA0}, s{sT0}, {OOB}')
        p(f's_lshl2_add_u32 s{sGW}, s2, s{sW}')
        p(f'v_lshrrev_b32 v3, 2, v{vLANE}')
        p(f'v_and_b32 v4, 0x30, v{vL16}')
        p(f'v_mul_u32_u24 v3, {8*6144}, v3')
        p(f'v_add_u32 v3, v3, v4')
        p(f'v_lshlrev_b32 v1, 2, v{vLANE}')
        p(f's_mul_i32 s{sT0}, s{sW}, {128*6144}')
        p(f's_lshl_b32 s{sT1}, s{sBLK}, 6')
        p(f's_add_u32 s{sT0}, s{sT0}, s{sT1}')
        p(f's_lshl_b32 s{sT1}, s{sW}, 8')
        p(f's_sub_u32 s{sT2}, s{sGW}, 384')
        p(f's_sub_u32 s{sT3}, s{sKW}, 48')
        p('s_mov_b64 exec, 0x3f3f3f3f')
        p('s_cmp_ge_u32 s2, 96')
        p.add([WLGA()])
        p(f's_mov_b64 s[{S_WM}:{S_WM+1}], s[54:55]')
        p(f's_mov_b64 s[{S_X}:{S_X+1}], s[40:41]')
        p(f'buffer_load_dword v{vJUNK}, v2, {srd(S_WM)}, s{sN} offen nt')
        p('s_mov_b64 exec, -1')
        p.add(self.xown())
        p(f's_load_dword s{sEP}, s[58:59], 0')

    def srds(self, which):
        o = []
        for b, sz, k in ((S_WO, 512*1024, 44), (S_W1, 512*2752, 48), (S_W2, 1376*1024, 50), (S_OUT, 2048*1024, 56), (S_WS, WS_SIZE, 58)):
            if b in which: o += [f's_mov_b64 s[{b}:{b+1}], s[{k}:{k+1}]', f's_mov_b32 s{b+2}, {sz}', f's_mov_b32 s{b+3}, 0x00020000']
        return o

    def xown(self):
        return [(f'buffer_load_dwordx4 v[4:7], v{vL16}, {srd(S_X)}, s{sA1} offen nt', 'x'),
                (f'buffer_load_dwordx4 v[8:11], v{vL16}, {srd(S_X)}, s{sA1} offen offset:1024 nt', 'x'),
                (f'buffer_load_dwordx4 v[12:15], v{vL16}, {srd(S_X)}, s{sA0} offen nt', 'x')]

    def mktag(self):
        return [f's_mul_i32 s{sTAG}, s{sEP}, 1664525', f's_add_u32 s{sTAG}, s{sTAG}, 1013904223']

    def p0(self):
        p = self.p
        A, F = 192, 200
        p(f's_mov_b64 s[{S_C}:{S_C+1}], s[52:53]')
        p(f'buffer_load_dword v206, v1, {srd(S_C)}, s{sT1} offen')
        for i in range(8):
            p(f'buffer_load_dwordx4 {vr(160+4*i,4)}, v3, {srd(S_WM)}, s{sT0} offen nt')
            if i < 7: p(f's_add_u32 s{sT0}, s{sT0}, 6144')
            if i == 3:
                p.add([f'v_mov_b32 v{A+a}, 0' for a in range(8)])
                p.add(self.srds((S_WO, S_W1, S_W2, S_OUT, S_WS)) + [f's_mov_b64 s[{S_WQ}:{S_WQ+1}], s[42:43]'])
                p.add([f'v_and_b32 v207, 3, v{vLANE}', f'v_lshlrev_b32 v207, 5, v207', f'v_lshrrev_b32 v204, 4, v{vLANE}',
                       f'v_lshl_add_u32 v207, v204, 3, v207',
                       f's_lshl_b32 s{sT1}, s{sW}, 7', f's_add_u32 s{sT1}, s{sT1}, {L_P0}', f'v_add_u32 v207, s{sT1}, v207',
                       f'v_add_u32 v212, {L_P0}, v{vL16}',
                       f'v_and_b32 v204, 1, v{vLANE}', f'v_lshlrev_b32 v204, 10, v204', f'v_lshrrev_b32 v213, 1, v{vLANE}',
                       f'v_lshl_add_u32 v204, v213, 4, v204',
                       f's_lshr_b32 s{sT1}, s{sBLK}, 4', f's_cmp_eq_u32 s{sT1}, 1', f's_cselect_b32 s{sT2}, 1.0, 0',
                       f's_cmp_eq_u32 s{sT1}, 4', f's_cselect_b32 s{sT2}, 1.0, s{sT2}', f's_mov_b32 s{sT3}, s{sT2}',
                       f's_lshl_b32 s{sT1}, s{sT1}, 11', f's_and_b32 s{sBLK}, s{sBLK}, 15', f's_lshl_b32 s{sBLK}, s{sBLK}, 6',
                       f's_add_u32 s{sT1}, s{sT1}, s{sBLK}', f's_add_u32 s{sT1}, s{sT1}, {WS_MOD}'])
        p.add(self.stamp('iss'))
        p(f'v_lshlrev_b32 v{F}, 16, v206')
        p(f'v_and_b32 v{F+1}, 0xffff0000, v206')
        p(f'v_mul_f32 v{F+2}, 0xbfb8aa3b, v{F}')
        p(f'v_mul_f32 v{F+3}, 0xbfb8aa3b, v{F+1}')
        p(f'v_exp_f32 v{F+2}, v{F+2}')
        p(f'v_exp_f32 v{F+3}, v{F+3}')
        p(f'v_add_f32 v{F+2}, 1.0, v{F+2}')
        p(f'v_add_f32 v{F+3}, 1.0, v{F+3}')
        p(f'v_rcp_f32 v{F+2}, v{F+2}')
        p(f'v_rcp_f32 v{F+3}, v{F+3}')
        p(f'v_mul_f32 v{F}, v{F}, v{F+2}')
        p(f'v_mul_f32 v{F+1}, v{F+1}, v{F+3}')
        p(f'v_cvt_pk_bf16_f32 v206, v{F}, v{F+1}')
        p(f'v_and_b32 v{F}, 0xffff, v206')
        p(f'v_lshlrev_b32 v{F+1}, 16, v206')
        p(f'v_lshrrev_b32 v{F+2}, 16, v206')
        p(f'v_and_b32 v{F+3}, 0xffff0000, v206')
        dd = []
        for i in range(8):
            q = i >> 1
            for d in range(4):
                for hh in range(2):
                    dd.append(f'v_dot2c_f32_bf16_dpp v{A+2*d+hh}, v{F+2*(i&1)+hh}, v{160+4*i+d} quad_perm:[{q},{q},{q},{q}] row_mask:0xf bank_mask:0xf')
        p.add(dd)
        for m in range(4): p(f'v_permlane32_swap_b32 v{A+m}, v{A+4+m}')
        for m in range(2): p(f'v_pk_add_f32 {vr(A+2*m,2)}, {vr(A+2*m,2)}, {vr(A+4+2*m,2)}')
        for m in range(2): p(f'v_permlane16_swap_b32 v{A+m}, v{A+2+m}')
        p(f'v_pk_add_f32 {vr(A,2)}, {vr(A,2)}, {vr(A+2,2)}')
        for sh in (8, 4):
            for m in range(2): p(f'v_add_f32_dpp v{A+m}, v{A+m}, v{A+m} row_ror:{sh} row_mask:0xf bank_mask:0xf')
        p(f'ds_write_b64 v207, {vr(A,2)}', None, MW('p0', L_P0, 512))
        p.add(self.mktag() + [f'v_mov_b32 v210, s{sTAG}', f'v_mov_b32 v211, s{sTAG}', f's_cmp_lg_u32 s{sW}, 0'])
        p.add(self.bar())
        p('s_cbranch_scc1 L_P0X')
        p.cond_begin()
        p('s_mov_b64 exec, 0xff')
        for k in range(4): p(f'ds_read_b128 {vr(160+4*k,4)}, v212 offset:{128*k}', None, MR('p0', L_P0, 512))
        p('v_pk_add_f32 v[160:161], v[160:161], v[164:165]')
        p('v_pk_add_f32 v[162:163], v[162:163], v[166:167]')
        p('v_pk_add_f32 v[168:169], v[168:169], v[172:173]')
        p('v_pk_add_f32 v[170:171], v[170:171], v[174:175]')
        p('v_pk_add_f32 v[160:161], v[160:161], v[168:169]')
        p('v_pk_add_f32 v[162:163], v[162:163], v[170:171]')
        p('v_cvt_pk_bf16_f32 v160, v160, v161')
        p('v_cvt_pk_bf16_f32 v162, v162, v163')
        p('v_and_b32 v161, 0xffff0000, v160')
        p('v_lshlrev_b32 v160, 16, v160')
        p('v_and_b32 v163, 0xffff0000, v162')
        p('v_lshlrev_b32 v162, 16, v162')
        p(f'v_pk_add_f32 v[160:161], v[160:161], s[{sT2}:{sT3}]')
        p(f'v_pk_add_f32 v[162:163], v[162:163], s[{sT2}:{sT3}]')
        p('v_cvt_pk_bf16_f32 v208, v160, v161')
        p('v_cvt_pk_bf16_f32 v209, v162, v163')
        p(f'buffer_store_dwordx4 v[208:211], v204, {srd(S_WS)}, s{sT1} offen sc1')
        p('s_mov_b64 exec, -1')
        p.cond_end()
        p('L_P0X:')

    MK = 80
    def precompute(self):
        o = []
        t = 104
        o += [f's_mov_b32 s{sR0}, s{sN+1}', f's_mul_i32 s{sCB}, s{sCL}, {CL_STRIDE}', f's_add_u32 s{sCB}, s{sCB}, {WS_CL}',
              f's_add_u32 s{sFP}, s{sCB}, {C_FL}', f's_sub_u32 s{sT0}, s{sCB}, 128',
              's_mov_b64 exec, 0xff', f'buffer_load_dword v{vJUNK}, v{vT128}, {srd(S_WS)}, s{sFP} offen sc1',
              's_mov_b64 exec, 1', f'buffer_load_dword v{vJUNK}, v{vT128}, {srd(S_WS)}, s{sT0} offen sc1',
              f'buffer_load_dword v{vJUNK}, v{vT128}, {srd(S_OUT)}, s{sA1} offen', 's_mov_b64 exec, -1',
              f's_and_b32 s{sT0}, s{sKW}, 31', f's_lshl2_add_u32 s{sFS}, s{sT0}, s{sFP}',
              f'v_and_b32 v{vFP}, 31, v{vLANE}', f'v_lshlrev_b32 v{vFP}, 2, v{vFP}',
              f'v_lshrrev_b32 v{vG}, 4, v{vLANE}', f'v_and_b32 v{vC}, 15, v{vLANE}']
        o += [f'v_lshrrev_b32 v{t}, 3, v{vLANE}', f'v_mul_u32_u24 v{t+6}, 10240, v{t}',
              f'v_lshrrev_b32 v{t+1}, 1, v{t}', f'v_lshlrev_b32 v{t+1}, 5, v{t+1}',
              f'v_and_b32 v{t+5}, 0x70, v{vL16}', f'v_xor_b32 v{t+1}, v{t+1}, v{t+5}',
              f'v_and_b32 v{t+2}, 4, v{t}', f'v_add_u32 v{t}, v{t}, v{t+2}',
              f'v_mul_u32_u24 v{t+2}, 3072, v{t}', f'v_add_u32 v{vDQ}, v{t+2}, v{t+1}',
              f'v_lshl_add_u32 v{vDP}, v{t}, 10, v{t+1}', f'v_add_u32 v{vDP+1}, {15*1024}, v{vDP}',
              f'v_add_u32 v{vDP+2}, {2*1024}, v{vDP}', f'v_add_u32 v{vDP+3}, {17*1024}, v{vDP}',
              f'v_mul_u32_u24 v{t+2}, 2752, v{t}', f'v_add_u32 v{vDW1}, v{t+2}, v{t+1}']
        o += [f's_and_b32 s{sT0}, s{sKW}, 15', f's_lshl_b32 s{sT1}, s{sT0}, 3', f's_and_b32 s{sT1}, s{sT1}, 0x70',
              f'v_xor_b32 v{vHS}, s{sT1}, v{t+5}', f'v_add_u32 v{vHS}, v{vHS}, v{t+6}',
              f's_lshl_b32 s{sT0}, s{sT0}, 7', f's_lshr_b32 s{sT1}, s{sJ}, 2', f's_lshl_b32 s{sT1}, s{sT1}, 12',
              f's_add_u32 s{sT0}, s{sT0}, s{sT1}', f's_add_u32 s{sT2}, s{sCB}, {C_H}', f's_add_u32 s{sHS0}, s{sT0}, s{sT2}',
              f's_xor_b32 s{sT0}, s{sW}, 1', f's_lshl3_add_u32 s{sT0}, s{sT0}, s{sJ}',
              f's_lshl_b32 s{sT1}, s{sT0}, 3', f's_and_b32 s{sT1}, s{sT1}, 0x70',
              f'v_xor_b32 v{vHS+1}, s{sT1}, v{t+5}', f'v_add_u32 v{vHS+1}, v{vHS+1}, v{t+6}',
              f's_lshl_b32 s{sT0}, s{sT0}, 7', f's_add_u32 s{sT0}, s{sT0}, s{sT2}',
              f's_cmp_lt_u32 s{sW}, 2', f's_cselect_b32 s{sHS1}, s{sT0}, {OOB}']
        o += [f's_and_b32 s{sT0}, s{sW}, 1', f's_lshl_b32 s{sT0}, s{sT0}, 4', f's_lshr_b32 s{sT1}, s{sW}, 1',
              f's_lshl2_add_u32 s{sT3}, s{sT1}, s{sT0}',
              f's_mul_i32 s{sD0}, s{sT3}, 3072', f's_lshl_b32 s{sT0}, s{sJ}, 7', f's_add_u32 s{sD0}, s{sD0}, s{sT0}',
              f's_mul_i32 s{sD1}, s{sW}, 3072',
              f's_min_u32 s{sT0}, s{sJ}, 3', f's_mul_i32 s{sU0}, s{sJ}, 5', f's_add_u32 s{sU0}, s{sU0}, s{sT0}',
              f's_mul_i32 s{sD2}, s{sT3}, 2752', f's_lshl_b32 s{sT0}, s{sU0}, 6', f's_add_u32 s{sD2}, s{sD2}, s{sT0}',
              f's_mov_b32 s{sONES}, 0x3f803f80', f's_mov_b32 s{sK}, 0x3eb8aa3b', f's_mov_b32 s{sK+1}, 0x3eb8aa3b']
        o += [f'v_lshrrev_b32 v{t}, 2, v{vLANE}', f'v_and_b32 v{t}, 7, v{t}',
              f'v_lshrrev_b32 v{t+1}, 1, v{t}', f'v_lshlrev_b32 v{t+1}, 5, v{t+1}',
              f'v_and_b32 v{t+2}, 3, v{vLANE}', f'v_lshlrev_b32 v{t+2}, 3, v{t+2}',
              f'v_lshl_add_u32 v{t+2}, v{t}, 7, v{t+2}',
              f'v_lshrrev_b32 v{t+3}, 5, v{vLANE}',
              f'v_and_b32 v{t+4}, 0x30, v{vL16}', f'v_xor_b32 v{t+4}, v{t+4}, v{t+1}',
              f'v_lshl_add_u32 v{t+4}, v{t}, 7, v{t+4}', f'v_lshl_add_u32 v{vTP}, v{t+3}, 10, v{t+4}',
              f'v_mul_u32_u24 v{t+3}, 3072, v{t+3}', f'v_add_u32 v{t+2}, v{t+2}, v{t+3}',
              f's_lshl_b32 s{sT0}, s{sW}, 5', f'v_xor_b32 v{t+3}, s{sT0}, v{t+1}',
              f'v_add_u32 v{vTS}, v{t+2}, v{t+3}', f'v_add_u32 v{vTS+1}, {4*SLOT}, v{vTS}']
        for m in range(3):
            o += [f's_mul_i32 s{sT0}, s{sW}, 3', f's_add_u32 s{sT0}, s{sT0}, {m}', f's_and_b32 s{sT1}, s{sT0}, 3',
                  f's_lshl_b32 s{sT1}, s{sT1}, 5', f's_lshr_b32 s{sT0}, s{sT0}, 2', f's_lshl_b32 s{sT0}, s{sT0}, 10',
                  f'v_xor_b32 v{vT1+m}, s{sT1}, v{t+1}', f'v_add3_u32 v{vT1+m}, v{vT1+m}, v{t+2}, s{sT0}']
        o += [f's_lshl_b32 s{sMW}, s{sW}, 12', f'v_add_u32 v{vPB}, s{sMW}, v{vTP}', f'v_xor_b32 v{vPB+1}, 64, v{vPB}']
        o += [f'v_lshrrev_b32 v{t}, 1, v{vC}', f'v_xor_b32 v{t}, v{t}, v{vG}', f'v_lshlrev_b32 v{t}, 4, v{t}',
              f'v_lshl_add_u32 v{t}, v{vC}, 7, v{t}',
              f'v_add_u32 v{vHR}, {L_H}, v{t}', f'v_xor_b32 v{vHR+1}, 64, v{vHR}',
              f'v_add_u32 v{vHR+2}, 40960, v{vHR}', f'v_add_u32 v{vHR+3}, 40960, v{vHR+1}']
        o += [f's_lshl_b32 s{sT0}, s{sW}, 10', f's_add_u32 s{sXB}, s{sT0}, {WS_MOD+4096}']
        o += [f'v_lshlrev_b32 v{vXO}, 11, v{vC}', f'v_lshl_add_u32 v{vXO}, v{vG}, 4, v{vXO}',
              f's_lshr_b32 s{sT0}, s{sW}, 1', f's_lshl_b32 s{sT0}, s{sT0}, 5', f's_and_b32 s{sT1}, s{sW}, 1',
              f's_add_u32 s{sT0}, s{sT0}, s{sT1}', f's_add_u32 s{sT0}, s{sT0}, s{sR0}', f's_lshl_b32 s{sT0}, s{sT0}, 10',
              f's_lshl_b32 s{sT1}, s{sJ}, 7', f's_add_u32 s{sXO}, s{sT0}, s{sT1}',
              f'v_lshrrev_b32 v{t}, 1, v{vG}', f'v_lshlrev_b32 v{t}, 8, v{t}', f'v_lshl_add_u32 v{t}, v{vC}, 4, v{t}',
              f'v_and_b32 v{t+1}, 1, v{vG}', f'v_lshl_add_u32 v{vSTO}, v{t+1}, 14, v{t}',
              f'v_mul_u32_u24 v{t+1}, {H_TILE}, v{t+1}', f'v_add_u32 v{vSTH}, v{t+1}, v{t}']
        return o

    def masks(self):
        t = 104; MK = self.MK
        o = [f'v_lshlrev_b32 v{t}, 2, v{vG}', f'v_sub_u32 v{t}, v{t}, v{vC}', f'v_mov_b32 v{t+1}, 0xf149f2ca',
             [f's_cmp_eq_u32 s{sCL}, 0', f's_cselect_b32 s{sT2}, 100, 9', f's_cselect_b32 s{sT3}, 100, 1'],
             f'v_and_b32 v{t+2}, 2, v{vG}', f'v_lshlrev_b32 v{t+2}, 6, v{t+2}', f'v_sub_u32 v{t+2}, v{t}, v{t+2}']
        for r in range(4):
            o += [f'v_add_u32 v{t+3}, {r+7}, v{t}', f'v_add_u32 v{t+4}, {r}, v{t}', f'v_add_u32 v{t+5}, {r}, v{t+2}',
                  f'v_cmp_gt_u32 vcc, 8, v{t+3}', f'v_cmp_le_i32 s[{sN}:{sN+1}], 9, v{t+4}',
                  f'v_cmp_le_i32 s[{sN+2}:{sN+3}], s{sT2}, v{t+4}', f'v_cmp_le_i32 s[{sA0}:{sA1}], s{sT3}, v{t+5}',
                  f'v_cndmask_b32 v{MK+r}, v{t+1}, 0, vcc', f'v_cndmask_b32 v{t+8+r}, 0, -1, vcc',
                  f'v_cndmask_b32 v{MK+4+r}, v{t+1}, 0, s[{sN}:{sN+1}]', f'v_cndmask_b32 v{MK+8+r}, v{t+1}, 0, s[{sN+2}:{sN+3}]',
                  f'v_cndmask_b32 v{MK+12+r}, v{t+1}, 0, s[{sA0}:{sA1}]']
        o += [f'v_mov_b32 v{t+3}, 0xffff', f'v_bfi_b32 v{MK+16}, v{t+3}, v{t+8}, v{t+9}', f'v_bfi_b32 v{MK+17}, v{t+3}, v{t+10}, v{t+11}',
              f'v_mov_b32 v100, s{sONES}', f'v_mov_b32 v101, s{sONES}']
        return o

    def hello(self):
        p = self.p
        p.add(self.mktag())
        p(f'v_mov_b32 v{vTAG}, s{sTAG}')
        p(f's_cmp_lg_u32 s{sW}, 3')
        p('s_cbranch_scc1 L_HEL')
        p.cond_begin()
        p(f's_lshl_b32 s{sT0}, s2, 2')
        p('s_mov_b64 exec, 1')
        p(f'buffer_store_dword v{vTAG}, v{vL16}, {srd(S_WS)}, s{sT0} offen offset:{WS_HELLO} sc1')
        p('s_mov_b64 exec, -1')
        p.cond_end()
        p('L_HEL:')

    def ln(self):
        S = 40
        o = [f'v_mov_b32 v{S+k}, 0' for k in range(8)]
        for m in range(4):
            for r in range(3):
                o += [f'v_dot2c_f32_bf16 v{S+r}, s{sONES}, v{4+4*r+m}', f'v_dot2c_f32_bf16 v{S+4+r}, v{4+4*r+m}, v{4+4*r+m}']
        up = []
        for r in range(3):
            for m in range(4):
                up += [f'v_lshlrev_b32 v{16+8*r+2*m}, 16, v{4+4*r+m}', f'v_and_b32 v{17+8*r+2*m}, 0xffff0000, v{4+4*r+m}']
        red = [f'v_permlane32_swap_b32 v{S+2*k}, v{S+2*k+1}' for k in range(4)]
        red += [f'v_add_f32 v{S+2*k}, v{S+2*k}, v{S+2*k+1}' for k in range(4)]
        red += [f'v_permlane16_swap_b32 v{S+4*k}, v{S+4*k+2}' for k in range(2)]
        red += [f'v_add_f32 v{S+4*k}, v{S+4*k}, v{S+4*k+2}' for k in range(2)]
        for sh in (8, 4, 2, 1):
            red += [f'v_add_f32_dpp v{S+4*k}, v{S+4*k}, v{S+4*k} row_ror:{sh} row_mask:0xf bank_mask:0xf' for k in range(2)]
        a, b = S, S+4
        red += [f'v_mul_f32 v{a}, 0x3b000000, v{a}', f'v_mul_f32 v{b}, 0x3b000000, v{b}', f'v_fma_f32 v{b}, -v{a}, v{a}, v{b}',
                f'v_max_f32 v{b}, 0, v{b}', f'v_add_f32 v{b}, 0x3727c5ac, v{b}', f'v_rsq_f32 v{b}, v{b}', f'v_mul_f32_e64 v{a}, -v{a}, v{b}']
        o += up[:4] + interleave(red, up[4:], every=1, per=1, start=6)
        for r, lane in enumerate((0, 32, 16)):
            o += [f'v_readlane_b32 s{sN+2*r}, v{a}, {lane}', f'v_readlane_b32 s{sN+2*r+1}, v{b}, {lane}']
        for r in range(3):
            for m in range(4):
                d = 16+8*r+2*m
                o.append(f'v_pk_fma_f32 {vr(d,2)}, {vr(d,2)}, s[{sN+2*r}:{sN+2*r+1}], s[{sN+2*r}:{sN+2*r+1}] op_sel:[0,1,0] op_sel_hi:[1,1,0]')
        return o

    WQA = [L_H, L_H+SLOT, L_H+2*SLOT] + [k*SLOT for k in range(6)] + [k*SLOT for k in range(6)] + [L_H]
    def dma_wq(self, k):
        a = self.WQA[k]
        o = [f's_add_u32 m0, s{sD1}, {a}']
        for sec in range(3):
            o.append((f'buffer_load_dwordx4 v{vDQ}, {srd(S_WQ)}, s{sD0} offen offset:{1024*sec} lds', f'wq{k}', MW(f'wq{k}', a, SLOT)))
        if k < 15: o.append(f's_add_u32 s{sD0}, s{sD0}, {32*3072}')
        return [o[0:2], o[2], o[3:]]

    def absorb_wq(self, k):
        a = self.WQA[k]; b = 1 if a > 4*SLOT else 0
        return [(f'ds_read_b64_tr_b16 {ar(k*12+sec*4+2*h,2)}, v{vTS+b} offset:{a-b*4*SLOT+h*6144+sec*1024}', f'awq{k}', MR(f'wq{k}', a, SLOT))
                for sec in range(3) for h in range(2)]

    def tagged_loads(self, lst):
        return [f'buffer_load_dwordx4 {vr(d,4)}, v{vL16}, {srd(S_WS)}, s{so} offen offset:{io} sc1' for d, so, io in lst]

    def tagged_check(self, lst):
        p = self.p
        L = p.label('L_PT'); D = p.label('L_PD')
        def chk():
            ds = [d+2 for d, _, _ in lst]
            if len(ds) == 4:
                for d in ds: p(f'v_xor_b32 v{d+1}, s{sTAG}, v{d}')
                p(f'v_or3_b32 v{ds[0]+1}, v{ds[0]+1}, v{ds[1]+1}, v{ds[2]+1}')
                p(f'v_or_b32 v{ds[0]+1}, v{ds[0]+1}, v{ds[3]+1}')
                p(f'v_cmp_ne_u32 vcc, 0, v{ds[0]+1}')
            else:
                p(f'v_cmp_ne_u32 vcc, s{sTAG}, v{ds[0]}')
                for d in ds[1:]:
                    p(f'v_cmp_ne_u32 s[{sT4}:{sT5}], s{sTAG}, v{d}')
                    p(f's_or_b64 vcc, vcc, s[{sT4}:{sT5}]')
            p(f's_cbranch_vccz {D}')
        chk()
        p.cond_begin()
        p(f's_mov_b32 s{sSPIN}, 20000')
        p(f'{L}:')
        p.add(self.tagged_loads(lst))
        p('s_waitcnt vmcnt(0)')
        chk()
        p(f's_sub_u32 s{sSPIN}, s{sSPIN}, 1')
        p(f's_cbranch_scc0 {L}')
        p.cond_end()
        p(f'{D}:')

    def publish(self, ph, tag):
        return [WVM(tag), 's_mov_b64 exec, 1',
                f'buffer_store_dword v{vTAG}, v{vL16}, {srd(S_WS)}, s{sFS} offen offset:{ph*128}',
                f'buffer_store_dword v{vTAG}, v{vL16}, {srd(S_WS)}, s{sFS} offen offset:{512+ph*128} sc1',
                's_mov_b64 exec, -1']

    def poll_issue(self, ph, r, b=0):
        return [f'buffer_load_dword v{r}, v{vFP}, {srd(S_WS)}, s{sFP} offen offset:{512*b+ph*128} sc1']

    def poll_check(self, ph, r):
        p = self.p
        D = p.label('L_WD')
        p(f'v_cmp_ne_u32 vcc, s{sTAG}, v{r}')
        p(f's_cbranch_vccz {D}')
        p.cond_begin()
        for b, n in ((0, self.o['npoll']), (1, 20000)):
            L = p.label('L_WF')
            p(f's_mov_b32 s{sSPIN}, {n}')
            p(f'{L}:')
            p.add(self.poll_issue(ph, r, b))
            p('s_waitcnt vmcnt(0)')
            p(f'v_cmp_ne_u32 vcc, s{sTAG}, v{r}')
            p(f's_cbranch_vccz {D}')
            p(f's_sub_u32 s{sSPIN}, s{sSPIN}, 1')
            p(f's_cbranch_scc0 {L}')
        p.cond_end()
        p(f'{D}:')

    def dma_priv(self, S, soff_reg, a, tag):
        out = [f's_add_u32 m0, s{sMW}, {a}']
        for b in range(4):
            out.append((f'buffer_load_dwordx4 v{vDP+b}, {srd(S)}, s{soff_reg} offen offset:{1024*b} lds', tag, MW(tag, a, 16384, a+1)))
        out.append(f's_add_u32 s{soff_reg}, s{soff_reg}, 32768')
        return [out[0:2], out[2], out[3], out[4:]]

    def absorb_priv(self, a, breg, bval, dst, tag):
        return [(f'ds_read_b64_tr_b16 {rr(dst,2,4*ct+2*h)}, v{breg+(ct>>1)} offset:{a-bval+h*2048+8*(ct&1)}', 'a'+tag, MR(tag, a, 16384, a+1))
                for ct in range(4) for h in range(2)]

    W1A = [36864, 49152, 61440, 73728, 102400, 131072, 143360, 0, 12288, 24576, 86016, 114688, 102400, 131072, 143360, 0]
    def dma_w1(self, k):
        o = []
        for sec in range(3):
            o.append([f's_add_u32 m0, s{sD1}, {self.W1A[k] + sec*896}',
                      (f'buffer_load_dwordx4 v{vDW1}, {srd(S_W1)}, s{sD2} offen offset:{128*sec} lds', f'w1_{k}', MW(f'w1_{k}', self.W1A[k], SLOT))])
        if k < 15: o[-1].append(f's_add_u32 s{sD2}, s{sD2}, {32*2752}')
        return o
    def absorb_w1(self, ks, tmp):
        o = []; cur = None
        for k in ks:
            a = self.W1A[k]
            if a + 6144 <= 65535: base, br = 0, vT1
            else:
                if cur is None or not (0 <= a - cur and a - cur + 6144 <= 65535):
                    cur = 86016 if a >= 86016 else a
                    o += [f'v_add_u32 v{tmp+m}, {cur}, v{vT1+m}' for m in range(3)]
                base, br = cur, tmp
            o += [(f'ds_read_b64_tr_b16 {ar(k*12+m*4+2*h,2)}, v{br+m} offset:{a-base+h*6144}', f'aw1_{k}', MR(f'w1_{k}', a, SLOT))
                  for m in range(3) for h in range(2)]
        return o

    def dma_h(self, g):
        a = L_H + 20480*g
        ld = lambda i: (f'buffer_load_dwordx4 v{vL16}, {srd(S_WS)}, s{sT3} offen offset:{1024*i} sc1 lds', f'h{g}', MW(f'h{g}', a, 20480))
        o = [[f's_add_u32 m0, s{sT2}, {a}', ld(0)], ld(1), ld(2), ld(3),
             [f's_add_u32 m0, s{sT2}, {a+4096}', f's_add_u32 s{sT3}, s{sT3}, 4096', ld(0)]]
        if g < 3: o[-1].append(f's_add_u32 s{sT3}, s{sT3}, 16384')
        return o

    ACCQ = [0, 4, 8, 12]; ACCK = [16, 20, 24, 28, 32]; ACCV = [36, 160, 164, 168, 172]
    def p1_gemm(self, pre):
        p = self.p
        fr = lambda T, s: 40+20*(s & 1)+4*T
        def rd(T, s):
            return (f'ds_read_b128 {vr(fr(T,s),4)}, v{vHR+(s&1)+2*(s>>3)} offset:{((s>>1)&3)*10240+T*2048}', f'fr{s}',
                    MR(f'h{s>>2}', L_H+20480*(s >> 2), 20480))
        p.add([rd(T, 0) for T in range(5)])
        steps = []
        for s in range(16):
            ms = []
            for T in range(5):
                h = vr(fr(T, s), 4)
                C = lambda a: '0' if s == 0 else vr(a, 4)
                ms.append(f'{MFMA} {vr(self.ACCK[T],4)}, {ar(s*12+4,4)}, {h}, {C(self.ACCK[T])}')
                ms.append(f'{MFMA} {vr(self.ACCV[T],4)}, {h}, {ar(s*12+8,4)}, {C(self.ACCV[T])}')
                if T > 0: ms.append(f'{MFMA} {vr(self.ACCQ[T-1],4)}, {ar(s*12,4)}, {h}, {C(self.ACCQ[T-1])}')
            steps.append(ms)
        head = [[] for _ in range(16)]; tail = [[] for _ in range(16)]
        vq = [(0, x) for x in pre]
        for k in (9, 10, 11): vq += [(0, x) for x in self.dma_wq(k)]
        for k in (12, 13, 14): vq += [(3, x) for x in self.dma_wq(k)]
        vq += [(7, x) for x in self.dma_wq(15)]
        wo = [f's_lshl_b32 s{sD0}, s{sW}, 17', f's_lshl_b32 s{sT0}, s{sJ}, 7', f's_add_u32 s{sD0}, s{sD0}, s{sT0}']
        for i, e in enumerate((7, 9, 9, 11)):
            d = self.dma_priv(S_WO, sD0, WOA[i], f'wo{i}')
            if i == 0: d[0] = wo + d[0]
            vq += [(e, x) for x in d]
        late = [[f's_add_u32 s{sA0}, s{sXB}, 4096'] + self.tagged_loads([(208, sXB, 0)])] + self.tagged_loads([(212, sA0, 0)])
        late += [f'buffer_load_dwordx4 {vr(216+4*pp,4)}, v{vXO}, {srd(S_X)}, s{sXO} offen offset:{64*pp}' for pp in range(2)]
        late += [[f's_cmp_eq_u32 s{sGW}, 1', f's_cselect_b32 s{sT0}, 0, {OOB}',
                  f'buffer_load_dwordx4 v[176:179], v{vL16}, {srd(S_WS)}, s{sT0} offen offset:{WS_HELLO} sc1']]
        vq += [(11, x) for x in late]
        rate = self.o.get('rate', 4)
        pos = {}
        qi = 0
        for s in range(16):
            n = 0
            while qi < len(vq) and vq[qi][0] <= s and (n < rate or s == 15):
                tail[s].append(vq[qi][1]); qi += 1; n += 1
            tail[s] += self.touches(f'g{s}')
        for k in (6, 7, 8): tail[k-6] += self.absorb_wq(k)
        head[3] += [[WVM('h1'), WLGA(), 's_barrier']]
        head[7] += [[WVM('h2'), WVM('wq11'), WLGA(), 's_barrier']]
        tail[7] += self.absorb_wq(9) + self.absorb_wq(10)[:3]
        tail[8] += self.absorb_wq(10)[3:] + self.absorb_wq(11)
        head[9] += [[WVM('wq14'), WLGA(), 's_barrier']]
        tail[9] += self.absorb_wq(12); tail[10] += self.absorb_wq(13)
        head[11] += [[WVM('h3'), WVM('wq15'), WLGA(), 's_barrier']]
        tail[11] += self.absorb_wq(14); tail[12] += self.absorb_wq(15)
        tail[15] += [f's_lshl_b32 s{sT0}, s{sJ}, 11', f's_lshl_b32 s{sT1}, s{sW}, 9', f's_add_u32 s{sT0}, s{sT0}, s{sT1}',
                     f's_add_u32 s{sT2}, s{sT0}, s{sCB}', f's_add_u32 s{sT3}, s{sT2}, 32768']
        for s in range(16):
            f = head[s] + ([rd(T, s+1) for T in range(5)] if s < 15 else []) + tail[s]
            if s: p.add([WLG(f'fr{s}')])
            p.add(spread(steps[s], f, 0, 14))

    def attention(self):
        QB, KB, VB = 104, 112, 122
        MK = self.MK
        vpos = {4: 0, 2: 2, 0: 4, 1: 6, 3: 8}
        SP, SC = 40, 56
        prevT = [0, 0, 1, 2]; biasP = [MK+8, MK+12, MK+4, MK+4]
        def cv(d, a): return [f'v_cvt_pk_bf16_f32 v{d}, v{a}, v{a+1}', f'v_cvt_pk_bf16_f32 v{d+1}, v{a+2}, v{a+3}']
        o = []
        o += cv(KB, self.ACCK[0])
        for t in range(4):
            o += cv(KB+2*(t+1), self.ACCK[t+1]) + cv(QB+2*t, self.ACCQ[t])
        vc = []
        for T in range(5): vc += cv(VB+vpos[T], self.ACCV[T])
        ms = []
        for t in range(4):
            ms.append(f'v_mfma_f32_16x16x16_bf16 {vr(SP+4*t,4)}, {vr(KB+2*prevT[t],2)}, {vr(QB+2*t,2)}, {vr(biasP[t],4)}')
            ms.append(f'v_mfma_f32_16x16x16_bf16 {vr(SC+4*t,4)}, {vr(KB+2*(t+1),2)}, {vr(QB+2*t,2)}, {vr(MK,4)}')
        o += interleave(ms, vc, every=1, per=2)
        M = 72
        for t in range(4):
            o += [f'v_max_f32 v{SP+4*t+r}, v{SP+4*t+r}, v{SC+4*t+r}' for r in range(4)]
            o += [f'v_max3_f32 v{M+t}, v{SP+4*t}, v{SP+4*t+1}, v{SP+4*t+2}', f'v_max_f32 v{M+t}, v{M+t}, v{SP+4*t+3}']
            if t == 1: hold = [f'v_permlane32_swap_b32 v{M}, v{M+1}', f'v_max_f32 v{M}, v{M}, v{M+1}']
            if t == 2: o += hold
        o += [f'v_permlane32_swap_b32 v{M+2}, v{M+3}', f'v_max_f32 v{M+2}, v{M+2}, v{M+3}',
              f'v_permlane16_swap_b32 v{M}, v{M+2}', f'v_max_f32 v{M}, v{M}, v{M+2}',
              f'v_mul_f32 v{M+4}, 0xbeb8aa3b, v{M}', f'v_mul_f32 v{M}, 0xbeb8aa3b, v{M}',
              f'v_permlane16_swap_b32 v{M}, v{M+4}', f'v_mov_b32 v{M+2}, v{M}', f'v_mov_b32 v{M+6}, v{M+4}',
              f'v_permlane32_swap_b32 v{M}, v{M+2}', f'v_permlane32_swap_b32 v{M+4}, v{M+6}']
        PB = 0
        OA = [VB+4, VB+2, VB+6, VB+0]
        for t in range(4):
            o += [f'v_pk_fma_f32 {vr(SP+4*t+2*hh,2)}, {vr(SP+4*t+2*hh,2)}, s[{sK}:{sK+1}], {vr(M+2*t,2)} op_sel_hi:[1,1,0]' for hh in range(2)]
        for t in range(4):
            o += [f'v_exp_f32 v{SP+4*t+r}, v{SP+4*t+r}' for r in range(4)]
            if t > 0:
                u = t-1
                o += [f'v_mfma_f32_16x16x16_bf16 {vr(SC+4*u,4)}, v[100:101], {vr(16+2*u,2)}, 0',
                      f'{MFMA} {vr(SP+4*u,4)}, {vr(OA[u],4)}, {vr(PB+4*u,4)}, 0']
            o += cv(16+2*t, SP+4*t)
            pp, pc = (PB+4*t, PB+4*t+2) if (t & 1) == 0 else (PB+4*t+2, PB+4*t)
            for hh in range(2):
                o += [f'v_bfi_b32 v{pp+hh}, v{MK+16+hh}, 0, v{16+2*t+hh}', f'v_and_b32 v{pc+hh}, v{MK+16+hh}, v{16+2*t+hh}']
        o += [f'v_rcp_f32 v{SC}, v{SC}', f'v_rcp_f32 v{SC+4}, v{SC+4}',
              f'v_mfma_f32_16x16x16_bf16 {vr(SC+12,4)}, v[100:101], {vr(22,2)}, 0',
              f'{MFMA} {vr(SP+12,4)}, {vr(OA[3],4)}, {vr(PB+12,4)}, 0']
        for t in range(4):
            if t == 2: o += [f'v_rcp_f32 v{SC+8}, v{SC+8}', f'v_rcp_f32 v{SC+12}, v{SC+12}']
            o += [f'v_mul_f32 v{SP+4*t+r}, v{SP+4*t+r}, v{SC+4*t}' for r in range(4)] if t < 2 else \
                 [f'v_pk_mul_f32 {vr(SP+4*t+2*hh,2)}, {vr(SP+4*t+2*hh,2)}, {vr(SC+4*t,2)} op_sel_hi:[1,0]' for hh in range(2)]
            o += cv(24+2*t, SP+4*t)
            if t & 1:
                b = 24+2*(t-1)
                o += [f'v_permlane16_swap_b32 v{b}, v{b+2}', f'v_permlane16_swap_b32 v{b+1}, v{b+3}',
                      (f'buffer_store_dwordx4 {vr(b,4)}, v{vSTO}, {srd(S_WS)}, s{sT2 if t==1 else sT3} offen sc1', 'ost')]
        return o

    def ks_setup(self, region, tile_stride, wave_stride, areg):
        o = [f's_mul_i32 s{sT0}, s{sW}, {wave_stride}', f's_add_u32 s{sT0}, s{sT0}, s{sCB}', f's_add_u32 s{sT0}, s{sT0}, {region}']
        for n in range(4):
            o += [f's_add_u32 s{sT1}, s{sW}, {n+1}', f's_and_b32 s{sT1}, s{sT1}, 3', f's_mul_i32 s{sN+n}, s{sT1}, {tile_stride}',
                  f's_add_u32 s{sN+n}, s{sN+n}, s{sT0}', f's_mul_i32 s{sT1}, s{sT1}, {3*4096}',
                  f'v_add_u32 v{areg+n}, s{sT1}, v{vL16}']
        return o

    def ksplit(self, nm, nsteps, wreg, breg, acc, part, areg, lead, latfill, extra_vm=(), last_oob=False, base=None, after2=()):
        p = self.p
        loads = []
        for n in range(4):
            for i in range(nsteps):
                l = []
                if i and i % 4 == 0: l.append(f's_add_u32 s{sN+n}, s{sN+n}, 4096')
                if last_oob and i == nsteps-1: l.append(f's_add_u32 s{sN+n}, s{sN+n}, s{sA0}')
                l.append(f'buffer_load_dwordx4 {rr(breg(n*nsteps+i),4)}, v{vL16}, {srd(S_WS)}, s{sN+n} offen offset:{(i%4)*1024} sc1')
                loads.append(l)
        loads += list(extra_vm)
        p.add(spread(loads[:lead], latfill, min(self.o.get('lead0', 4), lead-1)) if latfill else loads[:lead])
        li = lead
        rg = lambda n: [(L_RED+t*12288+4096*n, L_RED+t*12288+4096*n+4096) for t in range(4)]
        wr = lambda n: [(f'ds_write_b128 v{areg+n}, {vr(acc+16*n+4*ct,4)} offset:{L_RED+4096*n+1024*ct}', None, (rg(n), 'W', 0, f'{nm}{n}')) for ct in range(4)]
        rdp = lambda n, dst: [(f'ds_read_b128 {vr(dst+4*ct,4)}, v{areg+3} offset:{L_RED+4096*n+1024*ct}', None, (rg(n), 'R', 0, f'{nm}{n}')) for ct in range(4)]
        for n in range(4):
            ms = []
            if n == 3: loads += list(after2)
            for i in range(nsteps):
                g = []
                for ct in range(4):
                    a = acc+16*n+4*ct
                    c0 = vr(a, 4) if (i or n == 3) else '0'
                    g.append(f'{MFMA} {vr(a,4)}, {wreg(i,ct)}, {rr(breg(n*nsteps+i),4)}, {c0}')
                if li < len(loads):
                    g.insert(1, loads[li]); li += 1
                ms += g
            f = []
            if n >= 1: f += wr(n-1)
            if n == 2: f = f + [self.bar(), rdp(0, acc+48), rdp(1, part)]
            if n == 3:
                f = f + [self.bar(), rdp(2, part+16)]
                f2 = [f'v_add_f32 v{part+k}, v{part+k}, v{part+16+k}' for k in range(16)] + (base or [])
            if n == 3 and nsteps > 4:
                h = len(ms)//2
                p.add(spread(ms[:h], f, 4, h) + spread(ms[h:], f2, 8, len(ms)-h))
            elif n == 3:
                p.add(spread(ms, f, 4, len(ms)))
            else:
                p.add(spread(ms, f, 4, max(len(ms)-8, 12)))
        return loads[li:]

    def unpack8(self, dst, src):
        o = []
        for k in range(8):
            o += [f'v_lshlrev_b32 v{dst+2*k}, 16, v{src+k}', f'v_and_b32 v{dst+2*k+1}, 0xffff0000, v{src+k}']
        return o

    def build(self):
        p = self.p; O = self.o
        self.entry()
        p.add(self.stamp('karg'))
        p.save('head'); st = self.nst
        p('s_cbranch_scc1 L_NP')
        self.p0()
        p('s_branch L_J')
        p('L_NP:')
        p.restore('head'); self.nst = st
        p(f's_mov_b64 s[{S_WQ}:{S_WQ+1}], s[42:43]')
        tt = flat(self.touches('w0'))
        i0 = min([i for i, x in enumerate(tt) if isinstance(x, tuple) and srd(S_WQ) not in x[0]], default=len(tt))
        p.add(tt[:i0] + self.srds((S_WO, S_W1, S_W2, S_OUT, S_WS)) + tt[i0:])
        p.add(self.stamp('iss'))
        p('L_J:')
        p.add(self.stamp('join'))
        p.add(self.precompute())
        self.hello()
        p.add(self.stamp('pre'))
        p.add(self.ln())
        p.add(self.stamp('ln'))
        p(f's_mov_b32 s{sT1}, {WS_MOD}')
        p.add([WVM('T')])
        p.add(self.stamp('tback'))
        ml = [(48+4*i, sT1, 1024*i) for i in range(4)]
        c1, c2, c3 = O['c1'], O['c2'], O['c3']
        assert c1+c2+c3 == 9 and c1 >= 3 or True
        p.add(self.tagged_loads(ml))
        p.add(self.touches('c1'))
        for k in range(c1): p.add(self.dma_wq(k))
        self.tagged_check(ml)
        p.add(self.stamp('moda'))
        for v_, dst in ((1, 72), (0, 64)):
            for e in range(2):
                for m in range(2):
                    s_ = 48+8*v_+4*e+m; d = dst+4*e+2*m
                    p(f'v_lshlrev_b32 v{d}, 16, v{s_}'); p(f'v_and_b32 v{d+1}, 0xffff0000, v{s_}')
        for r in range(3):
            for m in range(4): p(f'v_pk_fma_f32 {vr(16+8*r+2*m,2)}, {vr(16+8*r+2*m,2)}, {vr(72+2*m,2)}, {vr(64+2*m,2)}')
            for m in range(4): p(f'v_cvt_pk_bf16_f32 v{4+4*r+m}, v{16+8*r+2*m}, v{17+8*r+2*m}')
            if r < 2: p(f'buffer_store_dwordx4 {vr(4+4*r,4)}, v{vHS}, {srd(S_WS)}, s{sHS0} offen offset:{2048*(r+1)-(2048 if r else 0)*0} sc1' if r == 0 else
                        f'buffer_store_dwordx4 {vr(4+4*r,4)}, v{vHS}, {srd(S_WS)}, s{sT0} offen sc1', 'hst')
            else: p(f'buffer_store_dwordx4 {vr(4+4*r,4)}, v{vHS+1}, {srd(S_WS)}, s{sHS1} offen sc1', 'hst')
            if r == 0: p(f's_add_u32 s{sT0}, s{sHS0}, 4096')
        p.add(self.touches('c2'))
        mk = self.masks()
        p.add(spread(mk, flat([self.dma_wq(k) for k in range(c1, c1+c2)])))
        p.add(self.publish(0, 'hst'))
        p.add(self.stamp('hpub'))
        p.add([WVM('wq2'), 's_barrier'])
        setup = [f's_mul_i32 s{sT2}, s{sW}, 5120', f's_add_u32 s{sT3}, s{sT2}, s{sCB}', f's_add_u32 s{sT3}, s{sT3}, {C_H}']
        p.add(spread(flat([self.absorb_wq(k) for k in range(3)]) + setup, flat([self.dma_wq(k) for k in range(c1+c2, c1+c2+c3)])))
        p.add(self.poll_issue(0, 48))
        p.add([WVM('wq5'), WLGA(), 's_barrier'])
        p.add(flat([self.absorb_wq(k) for k in range(3, 6)]))
        self.poll_check(0, 48)
        p.add(self.stamp('hflag'))
        p.add(self.flush())
        rest = flat([self.dma_wq(k) for k in range(c1+c2+c3, 9)])
        hq = self.dma_h(0) + rest + self.dma_h(1) + self.dma_h(2) + self.dma_h(3)
        nh = O.get('nh', 10) + len(rest)
        p.add(hq[:nh])
        p.add([WVM('h0'), WVM('wq8'), WLGA(), 's_barrier'])
        p.add(self.stamp('hready'))
        self.p1_gemm(hq[nh:])
        p.add(self.stamp('p1gemm'))
        p.add(self.bar())
        self.tail()
        p('L_END:')
        p('s_endpgm')
        return p.finalize()

    def tail(self):
        p = self.p; O = self.o
        nC, nP, natt = O['nC'], O['nP'], O['natt']
        att = self.attention()
        d = self.touches('att') + flat([self.dma_w1(k) for k in range(natt)])
        p.add(spread(att, d, 0, O.get('attend', 130)))
        p.add(self.stamp('attn'))
        self.epoch()
        ab = [f'v_add_u32 v128, 65536, v{vPB}', f'v_add_u32 v129, 65536, v{vPB+1}']
        for i in range(4):
            hi = WOA[i] >= 65536
            ab += [WVM(f'wo{i}')] + self.absorb_priv(WOA[i], 128 if hi else vPB, 65536 if hi else 0, ('a', 192+16*i), f'wo{i}')
        setup = self.ks_setup(C_O, 16384, 4096, 160)
        setup += [f's_lshr_b32 s{sT2}, s{sW}, 1', f's_lshl_b32 s{sT2}, s{sT2}, 10', f's_and_b32 s{sT0}, s{sW}, 1', f's_lshl3_add_u32 s{sT2}, s{sT0}, s{sT2}',
                  f's_add_u32 s{sT2}, s{sT2}, {L_MISC}', f'v_add_u32 v131, s{sT2}, v{vL16}',
                  f's_lshl_b32 s{sT0}, s{sJ}, 7', f's_add_u32 s{sT0}, s{sT0}, {L_MISC}', f'v_lshlrev_b32 v132, 4, v{vG}',
                  f'v_add_u32 v132, s{sT0}, v132'] + self.unpack8(144, 216)
        p.add(ab + setup)
        self.tagged_check([(208, sXB, 0), (212, sA0, 0)])
        p('ds_write_b64 v131, v[208:209]', None, MW('mod', L_MISC, 4096))
        p('ds_write_b64 v131, v[212:213] offset:2048', None, MW('mod', L_MISC, 4096))
        p.add(self.publish(1, 'ost'))
        p.add(self.stamp('pub1'))
        p.add(self.bar())
        k1 = natt + nC
        assert k1 <= 12
        GA, CB, GBP = 164, 180, 196
        mr = MR('mod', L_MISC, 4096)
        work = [(f'ds_read_b128 {vr(208+8*k+4*pp,4)}, v132 offset:{off+64*pp}', None, mr) for k, off in enumerate((0, 2048)) for pp in range(2)]
        work += [(f'ds_read_b128 {vr(GBP+4*pp,4)}, v132 offset:{3072+64*pp}', None, mr) for pp in range(2)]
        work += self.absorb_w1(range(natt), 128)
        d = self.touches('pub1') + flat([self.dma_w1(k) for k in range(natt, k1)]) + self.poll_issue(1, 133)
        p.add(spread(work, d, 0, int(len(work)*O.get('w1f', 0.7))))
        self.poll_check(1, 133)
        p.add(self.stamp('flag1'))
        lat = [[WVM(f'w1_{k1-1}'), WLGA(), 's_barrier']] + self.absorb_w1(range(natt, k1), 128) + self.unpack8(GA, 208) + self.unpack8(CB, 216)
        lat += [f's_lshl_b32 s{sT0}, s{sW}, 14', f's_lshl_b32 s{sT1}, s{sJ}, 11', f's_add_u32 s{sT0}, s{sT0}, s{sT1}',
                f's_add_u32 s{sT0}, s{sT0}, s{sCB}', f's_add_u32 s{sT2}, s{sT0}, {C_X1}',
                f's_lshl_b32 s{sT0}, s{sW}, 10', f's_lshr_b32 s{sT1}, s{sJ}, 1', f's_lshl_b32 s{sT1}, s{sT1}, 8', f's_add_u32 s{sT0}, s{sT0}, s{sT1}',
                f's_and_b32 s{sT1}, s{sJ}, 1', f's_lshl3_add_u32 s{sT0}, s{sT1}, s{sT0}',
                f's_add_u32 s{sT0}, s{sT0}, s{sCB}', f's_add_u32 s{sT3}, s{sT0}, {C_ST}',
                f'v_lshrrev_b32 v204, 1, v{vG}', f'v_lshlrev_b32 v204, 2, v204', f'v_lshl_add_u32 v204, v{vC}, 4, v204',
                'v_mov_b32 v206, 0', 'v_mov_b32 v207, 0']
        k2 = min(k1 + nP, 16)
        ex = self.touches('p2') + flat([self.dma_w1(k) for k in range(k1, min(k2, 15))])
        ex2 = self.dma_w1(15) if k2 == 16 else []
        left = self.ksplit('ra', 4, lambda i, ct: ar(192+16*i+4*ct, 4), lambda k: ('v', 4*k), 64, 0, 160, O.get('lead2', 10), lat, ex, after2=ex2)
        p.add(self.stamp('p2gemm'))
        Y = 112; X1 = 216
        ep = [f'v_pk_add_f32 {vr(2*k,2)}, {vr(2*k,2)}, {vr(16+2*k,2)}' for k in range(8)]
        ep += [f'v_pk_add_f32 {vr(Y+2*k,2)}, {vr(Y+2*k,2)}, {vr(2*k,2)}' for k in range(8)]
        ep += [f'v_pk_fma_f32 {vr(Y+2*k,2)}, {vr(Y+2*k,2)}, {vr(GA+2*k,2)}, {vr(144+2*k,2)}' for k in range(8)]
        ep += [f'v_cvt_pk_bf16_f32 v{X1+k}, v{Y+2*k}, v{Y+2*k+1}' for k in range(8)]
        ep += [f'v_pk_mul_f32 {vr(Y+2*k,2)}, {vr(Y+2*k,2)}, {vr(CB+2*k,2)}' for k in range(8)]
        for pp in range(2):
            ep += [f'v_cvt_pk_bf16_f32 v{32+k}, v{Y+2*k}, v{Y+2*k+1}' for k in range(4*pp, 4*pp+4)]
            ep.append((f'buffer_store_dwordx4 {vr(32+4*pp,4)}, v{vL16}, {srd(S_WS)}, s{sT2} offen offset:{1024*pp} sc1', 'xst'))
        for k in range(8):
            ep += [f'v_dot2c_f32_bf16 v206, s{sONES}, v{X1+k}', f'v_dot2c_f32_bf16 v207, v{X1+k}, v{X1+k}']
        ep += ['v_permlane32_swap_b32 v206, v207', 'v_add_f32 v206, v206, v207', 'v_mov_b32 v207, v206',
               'v_permlane16_swap_b32 v206, v207', 'v_add_f32 v206, v206, v207',
               (f'buffer_store_dword v206, v204, {srd(S_WS)}, s{sT3} offen sc1', 'xst')]
        p.add(spread(ep, left, 0, 40) if left else ep)
        U, V = 128, 140
        uvr = [f'v_and_b32 v204, 8, v{vC}', f'v_lshlrev_b32 v204, 7, v204', f'v_sub_u32 v204, {L_MISC+2048}, v204',
               f'v_lshl_add_u32 v204, v{vG}, 4, v204'] + [(f'ds_read_b128 {vr(48+4*s,4)}, v204 offset:{64*s}', None, mr) for s in range(16)]
        uvm = lambda ss: [f'{MFMA} {vr(U+4*m,4)}, {ar(s*12+4*m,4)}, {vr(48+4*s,4)}, {"0" if s==0 else vr(U+4*m,4)}' for s in ss for m in range(3)]
        setup2 = [f's_mul_i32 s{sD0}, s{sW}, {11*32768}', f's_lshl_b32 s{sT1}, s{sJ}, 7', f's_add_u32 s{sD0}, s{sD0}, s{sT1}',
                  f'v_add_u32 v{vPB}, {L_W2}, v{vPB}', f'v_add_u32 v{vPB+1}, {L_W2}, v{vPB+1}',
                  f's_lshl_b32 s{sT2}, s{sW}, 14', f's_add_u32 s{sT3}, s{sT2}, s{sCB}', f's_add_u32 s{sT3}, s{sT3}, {C_X1}',
                  [f's_cmp_ge_u32 s{sW}, 2', f's_cselect_b32 s{sT1}, {X1T[2]-32768}, 0'], f's_add_u32 s{sT2}, s{sT2}, s{sT1}',
                  f's_add_u32 s{sA0}, s{sCB}, {C_ST}', f'v_add_u32 v168, {X1T[2]}, v{vL16}']
        late = list(range(k2, 16))
        dl = flat([self.dma_w1(k) for k in late])
        nu = O.get('nu', 8)
        p.add(uvr)
        p.add(spread(uvm(range(0, min(nu, k1))), dl + setup2))
        p.add(self.publish(2, 'xst'))
        p.add(self.stamp('pub2'))
        p.add([WVM('w1_15')] + self.bar())
        w2reg = lambda i: ('a', 192+16*i) if i < 4 else ('a', 16*(i-4))
        dw2 = lambda i: self.dma_priv(S_W2, sD0, L_W2+16384*(i % 4), f'w2_{i}')
        aw2 = lambda i: [WVM(f'w2_{i}')] + self.absorb_priv(L_W2+16384*(i % 4), vPB, L_W2, w2reg(i), f'w2_{i}')
        n2 = O.get('n2', 2)
        d = flat([dw2(i) for i in range(n2)]) + self.poll_issue(2, 169)
        work = self.absorb_w1(range(k1, 16), 0) + uvm(range(min(nu, k1), k1)) + [self.bar()] + uvm(range(k1, 16))
        p.add(spread(work, d, 0, int(len(work)*O.get('w2f', 0.6))))
        self.poll_check(2, 169)
        p.add(self.stamp('flag2'))
        p.add(self.flush())
        STT = 152; TT = 80; FR = 48
        xl = []
        for s in range(16):
            l = []
            if s % 4 == 0:
                if s: l.append(f's_add_u32 s{sT3}, s{sT3}, 4096')
                l.append(f's_add_u32 m0, s{sT2}, {1024*s}')
            l.append((f'buffer_load_dwordx4 v{vL16}, {srd(S_WS)}, s{sT3} offen offset:{1024*(s%4)} sc1 lds', f'x1_{s}',
                      ([(X1T[t]+1024*s, X1T[t]+1024*s+1024) for t in range(4)], 'W', 0, f'x1_{s}')))
            xl.append(l)
        stl = [f'buffer_load_dwordx4 {vr(STT+4*t,4)}, v{vL16}, {srd(S_WS)}, s{sA0} offen offset:{1024*t} sc1' for t in range(4)]
        hs = [[f's_cmp_ge_u32 s{sJ}, 3', f's_cselect_b32 s{sT1}, 3, 99'], f's_mul_i32 s{sT0}, s{sW}, {3*512}',
              f's_lshl_b32 s{sN}, s{sU0}, 10', f's_add_u32 s{sT0}, s{sT0}, s{sN}', f's_add_u32 s{sT0}, s{sT0}, s{sCB}',
              f's_add_u32 s{sN}, s{sT0}, {C_H}', [f's_cmp_eq_u32 s{sW}, s{sT1}', f's_cselect_b32 s{sN+1}, {OOB}, s{sN}'],
              f's_add_u32 s{sN+2}, s{sN}, {2*H_TILE}', f's_add_u32 s{sN+3}, s{sN+1}, {2*H_TILE}']
        uvfix = [f'v_mov_b32 v{V+k}, v{U+k}' for k in range(12)]
        uvfix += [f'v_mov_b32_dpp v{V+k}, v{U+k} row_ror:8 row_mask:0xf bank_mask:0x3' for k in range(12)]
        uvfix += [f'v_mov_b32_dpp v{U+k}, v{U+k} row_ror:8 row_mask:0xf bank_mask:0xc' for k in range(12)]
        p.add(spread(xl[:8], flat([aw2(i) for i in range(n2)]) + hs + uvfix, 3))
        def rd(t, s): return (f'ds_read_b128 {vr(FR+16*(s&1)+4*t,4)}, v{vL16 if t < 2 else 168} offset:{(t&1)*16384+s*1024}', f'f3{s}',
                              MR(f'x1_{s}', X1T[t]+1024*s, 1024))
        st = []
        for t in range(4):
            st += [f'v_add_f32 v{STT+4*t}, v{STT+4*t}, v{STT+4*t+2}', f'v_add_f32 v{STT+4*t+1}, v{STT+4*t+1}, v{STT+4*t+3}']
        a, b = STT, STT+1
        st += [f'v_permlane32_swap_b32 v{a}, v{a+4}', f'v_permlane32_swap_b32 v{b}, v{b+4}',
               f'v_permlane32_swap_b32 v{a+8}, v{a+12}', f'v_permlane32_swap_b32 v{b+8}, v{b+12}',
               f'v_add_f32 v{a}, v{a}, v{a+4}', f'v_add_f32 v{b}, v{b}, v{b+4}',
               f'v_add_f32 v{a+8}, v{a+8}, v{a+12}', f'v_add_f32 v{b+8}, v{b+8}, v{b+12}',
               f'v_permlane16_swap_b32 v{a}, v{a+8}', f'v_permlane16_swap_b32 v{b}, v{b+8}',
               f'v_add_f32 v{a}, v{a}, v{a+8}', f'v_add_f32 v{b}, v{b}, v{b+8}',
               f'v_mul_f32 v{a}, 0x3b000000, v{a}', f'v_mul_f32 v{b}, 0x3b000000, v{b}',
               f'v_fma_f32 v{b}, -v{a}, v{a}, v{b}', f'v_max_f32 v{b}, 0, v{b}', f'v_add_f32 v{b}, 0x3727c5ac, v{b}',
               f'v_rsq_f32 v{b}, v{b}', f'v_mul_f32_e64 v{a}, -v{a}, v{b}',
               f'v_mov_b32 v{b+8}, v{b}', f'v_mov_b32 v{a+8}, v{a}',
               f'v_permlane16_swap_b32 v{b}, v{b+8}', f'v_permlane16_swap_b32 v{a}, v{a+8}',
               f'v_mov_b32 v{b+4}, v{b}', f'v_mov_b32 v{b+12}, v{b+8}', f'v_mov_b32 v{a+4}, v{a}', f'v_mov_b32 v{a+12}, v{a+8}',
               f'v_permlane32_swap_b32 v{b}, v{b+4}', f'v_permlane32_swap_b32 v{b+8}, v{b+12}',
               f'v_permlane32_swap_b32 v{a}, v{a+4}', f'v_permlane32_swap_b32 v{a+8}, v{a+12}']
        for t in range(4):
            for k in range(12): st.append(f'v_fma_f32 v{TT+12*t+k}, v{STT+4*t}, v{U+k}, v{V+k}')
        p.add([WVM('x1_1'), 's_barrier'])
        p.add([rd(t, 0) for t in range(4)])
        head = [[] for _ in range(16)]; tl = [[] for _ in range(16)]
        tl[0] += xl[8:11]; tl[1] += xl[11:14]; tl[2] += xl[14:16] + stl[:1]; tl[3] += stl[1:]
        head[1] += [[WVM('x1_5'), 's_barrier']]
        head[5] += [[WVM('x1_15'), 's_barrier']]
        rem = list(range(n2, 11))
        dstep = {i: 4 + (k*11)//len(rem) for k, i in enumerate(rem)}
        astep = {i: dstep[i]+4 for i in rem if dstep[i]+4 <= 15}
        for i in rem:
            if i >= 4 and i-4 in astep: astep[i-4] = min(astep[i-4], dstep[i]-1)
        for i, s in astep.items():
            assert i < 4 or 16*(i-4)+15 < 12*s, (i, s)
            tl[s] += aw2(i)
        for i, s in dstep.items():
            if i >= 4: tl[s] += [WLG(f'aw2_{i-4}')]
            tl[s] += dw2(i)
        ns = len(st)
        sts = [6, 7, 7, 11, 11, 14, 15, 15]
        for k, s in enumerate(sts): tl[s] += st[k*ns//len(sts):(k+1)*ns//len(sts)]
        for s in range(16):
            ms = [f'{MFMA} {vr(12*t+4*m,4)}, {ar(s*12+4*m,4)}, {vr(FR+16*(s&1)+4*t,4)}, {"0" if s==0 else vr(12*t+4*m,4)}'
                  for t in range(4) for m in range(3)]
            f = head[s] + ([rd(t, s+1) for t in range(4)] if s < 15 else []) + tl[s]
            if s: p.add([WLG(f'f3{s}')])
            p.add(spread(ms, f, 0, 12))
        p.add(self.stamp('p3gemm'))
        for pr in range(2):
            for m in range(3):
                b = FR+12*pr+4*m
                for tt in range(2):
                    t = 2*pr+tt; a = 12*t+4*m
                    for hh in range(2):
                        p(f'v_pk_fma_f32 {vr(a+2*hh,2)}, {vr(a+2*hh,2)}, {vr(STT+4*t,2)}, {vr(TT+a+2*hh,2)} op_sel:[0,1,0] op_sel_hi:[1,1,1]')
                    for hh in range(2):
                        p(f'v_cvt_pk_bf16_f32 v{b+2*tt+hh}, v{a+2*hh}, v{a+2*hh+1}')
                for k in (0, 2, 1, 3): p(f'v_pk_max_i16 v{b+k}, v{b+k}, 0')
                p(f'v_permlane16_swap_b32 v{b}, v{b+2}')
                p(f'v_permlane16_swap_b32 v{b+1}, v{b+3}')
                p(f'buffer_store_dwordx4 {vr(b,4)}, v{vSTH}, {srd(S_WS)}, s{sN+2*pr+(1 if m else 0)} offen offset:{512*m} sc1', 'hdst')
        p.add(flat([aw2(i) for i in rem if i not in astep]))
        p.add(self.ks_setup(C_H, H_TILE, 11*1024, 160))
        p(f's_cmp_eq_u32 s{sW}, 3')
        p(f's_cselect_b32 s{sA0}, {OOB}, 0')
        p.add(self.unpack8(GA, GBP) + self.unpack8(CB, X1))
        p.add(self.publish(3, 'hdst'))
        p.add(self.stamp('pub3'))
        p.add(self.bar())
        p.add(self.poll_issue(3, 0))
        self.poll_check(3, 0)
        p.add(self.stamp('flag3'))
        w2op = lambda i, ct: rr(w2reg(i), 4, 4*ct)
        base = [f'v_fma_f32 v{CB+k}, v{64+k}, v{GA+k}, v{CB+k}' for k in range(16)]
        self.ksplit('rb', 11, w2op, lambda k: ('a', 112+4*(k % 20)), 0, 64, 160, O.get('lead4', 9), [], last_oob=True, base=base)
        p.add(self.stamp('p4gemm'))
        Y = 48
        for pp in range(2):
            for k in range(4*pp, 4*pp+4): p(f'v_pk_fma_f32 {vr(Y+2*k,2)}, {vr(Y+2*k,2)}, {vr(GA+2*k,2)}, {vr(CB+2*k,2)}')
            for k in range(4*pp, 4*pp+4): p(f'v_cvt_pk_bf16_f32 v{96+k}, v{Y+2*k}, v{Y+2*k+1}')
            p(f'buffer_store_dwordx4 {vr(96+4*pp,4)}, v{vXO}, {srd(S_OUT)}, s{sXO} offen offset:{64*pp}')
        self.finish()

    def epoch(self):
        p = self.p
        LE, LL, LD = p.label('L_EP'), p.label('L_EPL'), p.label('L_EPD')
        def chk():
            for k in range(4): p(f'v_xor_b32 v{176+k}, s{sTAG}, v{176+k}')
            p('v_or3_b32 v176, v176, v177, v178')
            p('v_or_b32 v176, v176, v179')
            p('v_cmp_ne_u32 vcc, 0, v176')
            p(f's_cbranch_vccz {LD}')
        p(f's_cmp_lg_u32 s{sGW}, 1')
        p(f's_cbranch_scc1 {LE}')
        p.cond_begin()
        chk()
        p(f's_mov_b32 s{sSPIN}, 20000')
        p(f'{LL}:')
        p(f'buffer_load_dwordx4 v[176:179], v{vL16}, {srd(S_WS)}, 0 offen offset:{WS_HELLO} sc1')
        p('s_waitcnt vmcnt(0)')
        chk()
        p(f's_sub_u32 s{sSPIN}, s{sSPIN}, 1')
        p(f's_cbranch_scc0 {LL}')
        p(f'{LD}:')
        p('s_mov_b64 exec, 1')
        p(f'buffer_store_dword v{vTAG}, v{vL16}, {srd(S_WS)}, 0 offen sc1')
        p('s_mov_b64 exec, -1')
        p.cond_end()
        p(f'{LE}:')

    def finish(self):
        p = self.p
        if self.diag:
            p.add([WVMA()])
            p.add(self.stamp('end'))
            p.add(self.flush())
            p(f's_lshl_b32 s{sT0}, s{sGW}, 8')
            p(f's_add_u32 s{sT0}, s{sT0}, {WS_DIAG}')
            p(f'v_lshlrev_b32 v1, 2, v{vLANE}')
            p(f'buffer_store_dword v{vDIAG}, v1, {srd(S_WS)}, s{sT0} offen')


HEADER = open(os.path.join(os.path.dirname(os.path.abspath(__file__)), '..', 'cdna_kernels',
              'adaLN_cond__sliding_local_dilated__dense_activation_relu__prompt.s.ref')).read()

def emit(diag=False, hdiag=None, **opt):
    g = Gen(diag or bool(hdiag), hdiag, **opt)
    ins = g.build()
    head = HEADER.split(KNAME + ':')[0].replace('grid=(4096,1,1) block=(256,1,1) lds=0', 'grid=(256,1,1) block=(256,1,1) lds=163840')
    tail = HEADER.split('s_endpgm\n')[1].replace('next_free_vgpr 256', 'next_free_vgpr 512')
    body = '\n'.join(('' if i.is_label else '    ') + i.text for i in ins)
    txt = head + KNAME + ':\n' + body + '\n' + tail
    txt += '\n'
    if g.diag: txt += '\n; STAMPS ' + ' '.join(g.stamp_names) + '\n'
    return txt

if __name__ == '__main__':
    import argparse
    ap = argparse.ArgumentParser()
    ap.add_argument('out'); ap.add_argument('--diag', action='store_true'); ap.add_argument('--hdiag')
    ap.add_argument('-o', action='append', default=[])
    a = ap.parse_args()
    opt = {}
    for kv in a.o:
        k, v = kv.split('=')
        try: opt[k] = float(v) if '.' in v else int(v)
        except ValueError: opt[k] = v
    open(a.out, 'w').write(emit(a.diag, a.hdiag.split(',') if a.hdiag else None, **opt))
```

```python
import sys, os
sys.path.insert(0, os.path.dirname(os.path.abspath(__file__)))
from asmlib import *

KNAME = 'adaLN_cond__sliding_local_dilated__dense_activation_relu__prompt_kernel'

WS_HELLO = 0x400
WS_MOD = 0x8000
WS_CL = 0x100000
CL_STRIDE = 0x50000
C_O, C_X1, C_H, C_ST, C_FL = 0, 0x10000, 0x20000, 0x4C000, 0x4D000
H_TILE = 45056
WS_DIAG = 0xE00000
WS_SIZE = 0x1000000
OOB = 0x40000000

SLOT = 12288
L_H = 73728
L_MISC = 155648
L_P0 = L_MISC + 4096
L_RED = 36864
L_W2 = 36864
X1T = [0, 16384, 102400, 118784]
WOA = [86016, 0, 16384, 114688]

S_X, S_WQ, S_WO, S_W1, S_W2, S_WM, S_OUT, S_WS, S_C, S_CODE = 4, 8, 12, 16, 20, 24, 28, 32, 36, 68
sKW = 3
sSPIN, sONES, sR0, sXO = 40, 41, 42, 43
sK = 44
sEP, sCB, sHS1, sHS0 = 46, 47, 48, 49
sXB, sD0, sD1, sMW, sD2, sU0 = 50, 51, 52, 53, 54, 55
sT4, sT5, sFS, sFP = 56, 57, 58, 59
sW, sCL, sJ, sTAG = 60, 61, 62, 63
sT0, sT1, sT2, sT3 = 64, 65, 66, 67
sN = 72
sA0, sA1, sBLK, sGW = 76, 77, 78, 79
STAMP0 = 80
NSTAMP = 11


def srd(b): return f's[{b}:{b+3}]'
def vr(a, n=1): return f'v{a}' if n == 1 else f'v[{a}:{a+n-1}]'
def ar(a, n=1): return f'a{a}' if n == 1 else f'a[{a}:{a+n-1}]'
def rr(r, n=1, off=0): return (vr if r[0] == 'v' else ar)(r[1]+off, n)
def WVM(tag): return Marker('wait_vm', tag)
def WLG(tag): return Marker('wait_lgkm', tag)
WVMA = lambda: Marker('wait_vm_all')
WLGA = lambda: Marker('wait_lgkm_all')
def MW(name, lo, n, priv=0): return ([(lo, lo+n)], 'W', priv, name)
def MR(name, lo, n, priv=0): return ([(lo, lo+n)], 'R', priv, name)
def cdiv(a, b): return -(-a // b)
def flat(l): return [x for y in l for x in y]

vL16, vTAG, vDP, vTS, vDQ, vDW1, vTP, vG, vC, vLANE = 255, 254, 250, 248, 246, 245, 244, 243, 242, 241
vHS, vHR, vXO, vSTO, vSTH, vT1, vFP, vPB, vDIAG = 239, 235, 234, 233, 232, 229, 228, 225, 224
vJUNK, vT128, vT1K = 227, 247, 205
MFMA = 'v_mfma_f32_16x16x32_bf16'


class Gen:
    def __init__(self, diag=False, hdiag=None, **opt):
        self.p = Prog(); self.p.strict_lds = True
        self.diag = diag; self.hdiag = hdiag
        self.nst = 0; self.flushed = 0; self.stamp_names = []
        self.o = dict(nA=7, nC=3, nP=5, two='w0', tw1='w0', tw2='pub1', r3w2='p2', npoll=24, c1=3, c2=3, c3=3, natt=7)
        self.o.update(opt)

    def stamp(self, name):
        hs = self.o.get('hs')
        if hs:
            o = []
            if name == 'rt0': o.append(f's_memrealtime s[{STAMP0+4}:{STAMP0+5}]')
            if name == 'start': o.append(f's_memtime s[{STAMP0}:{STAMP0+1}]')
            if name == hs.lstrip('R'): o.append(f'{"s_memrealtime" if hs[0] == "R" else "s_memtime"} s[{STAMP0+2}:{STAMP0+3}]')
            return o
        if not self.diag: return []
        if self.hdiag and name not in self.hdiag and name not in ('rt0', 'start', 'end', 'rt1'): return []
        k = self.nst; self.nst += 1
        assert k - self.flushed < NSTAMP, name
        if len(self.stamp_names) <= k: self.stamp_names.append(name)
        op = 's_memrealtime' if name.startswith('rt') else 's_memtime'
        k %= NSTAMP
        return [f'{op} s[{STAMP0+2*k}:{STAMP0+2*k+1}]']

    def flush(self):
        if not self.diag: return []
        o = ['s_waitcnt lgkmcnt(0)']
        for k in range(self.flushed, self.nst):
            o.append(f'v_writelane_b32 v{vDIAG}, s{STAMP0+2*(k%NSTAMP)}, {k}')
        self.flushed = self.nst
        return o

    def bar(self): return [WLGA(), 's_barrier']

    def touch(self, S, nlines, stride, idx, nidx, base=0, tag='T'):
        ni = cdiv(nlines, nidx*64); L = cdiv(nlines, nidx*ni)
        o = [f's_bfm_b64 exec, {L}, 0' if L < 64 else 's_mov_b64 exec, -1', f's_mul_i32 s{sT0}, s{idx}, {L*stride}']
        if base >= 4096: o.append(f's_add_u32 s{sT0}, s{sT0}, {base & ~4095}')
        for i in range(ni):
            o.append((f'buffer_load_dword v{vJUNK}, v{vT128 if stride == 128 else vT1K}, {srd(S)}, s{sT0} offen offset:{base & 4095}', tag))
            if i < ni-1: o.append(f's_add_u32 s{sT0}, s{sT0}, {nidx*L*stride}')
        return o

    def touches(self, pos):
        gi, gn, ki, kn = (sT2, 640, sT3, 80) if pos == 'w0' else (sGW, 1024, sKW, 128)
        o = []
        if pos == 'w0':
            nA = self.o['nA']
            if nA: o += self.touch(S_WQ, nA*768, 128, ki, kn)
            if nA < 16:
                o += self.touch(S_WQ, (16-nA)*768, 128, gi, gn, nA*98304)
                o += self.touch(S_WQ, (16-nA)*96, 1024, ki, kn, nA*98304+384)
        if self.o['two'] == pos: o += self.touch(S_WO, 4096, 128, gi, gn) + self.touch(S_WO, 512, 1024, ki, kn, 384)
        if self.o['tw1'] == pos: o += self.touch(S_W1, 11008, 128, gi, gn)
        if self.o['tw2'] == pos: o += self.touch(S_W2, 11008, 128, gi, gn)
        if self.o['r3w2'] == pos: o += self.touch(S_W2, 1376, 1024, ki, kn, 384)
        if o: o.append('s_mov_b64 exec, -1')
        return [o] if o else []

    def entry(self):
        p = self.p
        p('s_load_dwordx16 s[40:55], s[0:1], 0')
        p('s_load_dwordx2 s[56:57], s[0:1], 64')
        p('s_load_dwordx2 s[58:59], s[0:1], 80')
        p('s_cmp_ge_u32 s2, 256')
        p('s_cbranch_scc1 L_END')
        p.add(self.stamp('rt0'))
        p.add(self.stamp('start'))
        p(f'v_lshrrev_b32 v1, 6, v0')
        p(f'v_and_b32 v{vLANE}, 63, v0')
        p(f's_getpc_b64 s[{S_CODE}:{S_CODE+1}]')
        p('L_PC:')
        p(f'v_readfirstlane_b32 s{sW}, v1')
        p(f's_mov_b32 s{S_CODE+2}, L_END-L_PC')
        p(f's_mov_b32 s{S_CODE+3}, 0x00020000')
        p(f'v_lshlrev_b32 v{vT128}, 7, v{vLANE}')
        p(f's_lshr_b32 s{sT2}, s2, 3')
        p(f's_lshl2_add_u32 s{sKW}, s{sT2}, s{sW}')
        p(f's_lshl_b32 s{sT0}, s{sKW}, 8')
        p('s_mov_b64 exec, 3')
        p(f'buffer_load_dword v{vJUNK}, v{vT128}, {srd(S_CODE)}, s{sT0} offen')
        p('s_mov_b64 exec, -1')
        for b, sz in ((S_WM, 512*6144), (S_X, 2048*1024), (S_C, 1024), (S_WQ, 512*3072)):
            p(f's_mov_b32 s{b+2}, {sz}')
            p(f's_mov_b32 s{b+3}, 0x00020000')
        p(f'v_lshlrev_b32 v{vL16}, 4, v{vLANE}')
        p(f'v_lshlrev_b32 v{vT1K}, 10, v{vLANE}')
        p(f'v_lshrrev_b32 v2, 3, v{vLANE}')
        p(f'v_mul_u32_u24 v2, {6144-1024}, v2')
        p(f'v_add_u32 v2, v2, v{vT128}')
        p(f's_and_b32 s{sT0}, s2, 7')
        p(f's_mul_i32 s{sT3}, s{sT0}, 12')
        p(f's_add_u32 s{sBLK}, s{sT3}, s{sT2}')
        p(f's_lshl_b32 s{sT3}, s{sT3}, 6')
        p(f's_mul_i32 s{sT1}, s{sKW}, {4*6144}')
        p(f's_add_u32 s{sN}, s{sT1}, s{sT3}')
        p(f's_lshl_b32 s{sA1}, s{sT0}, 7')
        p(f's_add_u32 s{sA1}, s{sA1}, s{sKW}')
        p(f's_lshl_b32 s{sA1}, s{sA1}, 11')
        p(f's_lshr_b32 s{sT1}, s2, 6')
        p(f's_lshl2_add_u32 s{sCL}, s{sT0}, s{sT1}')
        p(f's_and_b32 s{sJ}, s{sT2}, 7')
        p(f's_lshl_b32 s{sN+1}, s{sCL}, 6')
        p(f's_lshl1_add_u32 s{sT0}, s{sJ}, s{sW}')
        p(f's_add_u32 s{sT0}, s{sT0}, s{sN+1}')
        p(f's_sub_i32 s{sT0}, s{sT0}, 16')
        p(f's_max_i32 s{sT0}, s{sT0}, 0')
        p(f's_lshl_b32 s{sT0}, s{sT0}, 10')
        p(f's_cmp_lt_u32 s{sW}, 2')
        p(f's_cselect_b32 s{sA0}, s{sT0}, {OOB}')
        p(f's_lshl2_add_u32 s{sGW}, s2, s{sW}')
        p(f'v_lshrrev_b32 v3, 2, v{vLANE}')
        p(f'v_and_b32 v4, 0x30, v{vL16}')
        p(f'v_mul_u32_u24 v3, {8*6144}, v3')
        p(f'v_add_u32 v3, v3, v4')
        p(f'v_lshlrev_b32 v1, 2, v{vLANE}')
        p(f's_mul_i32 s{sT0}, s{sW}, {128*6144}')
        p(f's_lshl_b32 s{sT1}, s{sBLK}, 6')
        p(f's_add_u32 s{sT0}, s{sT0}, s{sT1}')
        p(f's_lshl_b32 s{sT1}, s{sW}, 8')
        p(f's_sub_u32 s{sT2}, s{sGW}, 384')
        p(f's_sub_u32 s{sT3}, s{sKW}, 48')
        p('s_mov_b64 exec, 0x3f3f3f3f')
        p('s_cmp_ge_u32 s2, 96')
        p.add([WLGA()])
        p(f's_mov_b64 s[{S_WM}:{S_WM+1}], s[54:55]')
        p(f's_mov_b64 s[{S_X}:{S_X+1}], s[40:41]')
        p(f'buffer_load_dword v{vJUNK}, v2, {srd(S_WM)}, s{sN} offen nt')
        p('s_mov_b64 exec, -1')
        p.add(self.xown())
        p(f's_load_dword s{sEP}, s[58:59], 0')

    def srds(self, which):
        o = []
        for b, sz, k in ((S_WO, 512*1024, 44), (S_W1, 512*2752, 48), (S_W2, 1376*1024, 50), (S_OUT, 2048*1024, 56), (S_WS, WS_SIZE, 58)):
            if b in which: o += [f's_mov_b64 s[{b}:{b+1}], s[{k}:{k+1}]', f's_mov_b32 s{b+2}, {sz}', f's_mov_b32 s{b+3}, 0x00020000']
        return o

    def xown(self):
        return [(f'buffer_load_dwordx4 v[4:7], v{vL16}, {srd(S_X)}, s{sA1} offen nt', 'x'),
                (f'buffer_load_dwordx4 v[8:11], v{vL16}, {srd(S_X)}, s{sA1} offen offset:1024 nt', 'x'),
                (f'buffer_load_dwordx4 v[12:15], v{vL16}, {srd(S_X)}, s{sA0} offen nt', 'x')]

    def mktag(self):
        return [f's_mul_i32 s{sTAG}, s{sEP}, 1664525', f's_add_u32 s{sTAG}, s{sTAG}, 1013904223']

    def p0(self):
        p = self.p
        A, F = 192, 200
        p(f's_mov_b64 s[{S_C}:{S_C+1}], s[52:53]')
        p(f'buffer_load_dword v206, v1, {srd(S_C)}, s{sT1} offen')
        for i in range(8):
            p(f'buffer_load_dwordx4 {vr(160+4*i,4)}, v3, {srd(S_WM)}, s{sT0} offen nt')
            if i < 7: p(f's_add_u32 s{sT0}, s{sT0}, 6144')
            if i == 3:
                p.add([f'v_mov_b32 v{A+a}, 0' for a in range(8)])
                p.add(self.srds((S_WO, S_W1, S_W2, S_OUT, S_WS)) + [f's_mov_b64 s[{S_WQ}:{S_WQ+1}], s[42:43]'])
                p.add([f'v_and_b32 v207, 3, v{vLANE}', f'v_lshlrev_b32 v207, 5, v207', f'v_lshrrev_b32 v204, 4, v{vLANE}',
                       f'v_lshl_add_u32 v207, v204, 3, v207',
                       f's_lshl_b32 s{sT1}, s{sW}, 7', f's_add_u32 s{sT1}, s{sT1}, {L_P0}', f'v_add_u32 v207, s{sT1}, v207',
                       f'v_add_u32 v212, {L_P0}, v{vL16}',
                       f'v_and_b32 v204, 1, v{vLANE}', f'v_lshlrev_b32 v204, 10, v204', f'v_lshrrev_b32 v213, 1, v{vLANE}',
                       f'v_lshl_add_u32 v204, v213, 4, v204',
                       f's_lshr_b32 s{sT1}, s{sBLK}, 4', f's_cmp_eq_u32 s{sT1}, 1', f's_cselect_b32 s{sT2}, 1.0, 0',
                       f's_cmp_eq_u32 s{sT1}, 4', f's_cselect_b32 s{sT2}, 1.0, s{sT2}', f's_mov_b32 s{sT3}, s{sT2}',
                       f's_lshl_b32 s{sT1}, s{sT1}, 11', f's_and_b32 s{sBLK}, s{sBLK}, 15', f's_lshl_b32 s{sBLK}, s{sBLK}, 6',
                       f's_add_u32 s{sT1}, s{sT1}, s{sBLK}', f's_add_u32 s{sT1}, s{sT1}, {WS_MOD}'])
        p.add(self.stamp('iss'))
        p(f'v_lshlrev_b32 v{F}, 16, v206')
        p(f'v_and_b32 v{F+1}, 0xffff0000, v206')
        p(f'v_mul_f32 v{F+2}, 0xbfb8aa3b, v{F}')
        p(f'v_mul_f32 v{F+3}, 0xbfb8aa3b, v{F+1}')
        p(f'v_exp_f32 v{F+2}, v{F+2}')
        p(f'v_exp_f32 v{F+3}, v{F+3}')
        p(f'v_add_f32 v{F+2}, 1.0, v{F+2}')
        p(f'v_add_f32 v{F+3}, 1.0, v{F+3}')
        p(f'v_rcp_f32 v{F+2}, v{F+2}')
        p(f'v_rcp_f32 v{F+3}, v{F+3}')
        p(f'v_mul_f32 v{F}, v{F}, v{F+2}')
        p(f'v_mul_f32 v{F+1}, v{F+1}, v{F+3}')
        p(f'v_cvt_pk_bf16_f32 v206, v{F}, v{F+1}')
        p(f'v_and_b32 v{F}, 0xffff, v206')
        p(f'v_lshlrev_b32 v{F+1}, 16, v206')
        p(f'v_lshrrev_b32 v{F+2}, 16, v206')
        p(f'v_and_b32 v{F+3}, 0xffff0000, v206')
        if self.o.get('hs'): p.add(self.stamp('p0c'))
        dd = []
        for i in range(8):
            q = i >> 1
            for d in range(4):
                for hh in range(2):
                    dd.append(f'v_dot2c_f32_bf16_dpp v{A+2*d+hh}, v{F+2*(i&1)+hh}, v{160+4*i+d} quad_perm:[{q},{q},{q},{q}] row_mask:0xf bank_mask:0xf')
        p.add(dd[:8])
        if self.o.get('hs'): p.add(self.stamp('p0w0'))
        p.add(dd[8:])
        if self.o.get('hs'): p.add(self.stamp('p0w'))
        for m in range(4): p(f'v_permlane32_swap_b32 v{A+m}, v{A+4+m}')
        for m in range(2): p(f'v_pk_add_f32 {vr(A+2*m,2)}, {vr(A+2*m,2)}, {vr(A+4+2*m,2)}')
        for m in range(2): p(f'v_permlane16_swap_b32 v{A+m}, v{A+2+m}')
        p(f'v_pk_add_f32 {vr(A,2)}, {vr(A,2)}, {vr(A+2,2)}')
        for sh in (8, 4):
            for m in range(2): p(f'v_add_f32_dpp v{A+m}, v{A+m}, v{A+m} row_ror:{sh} row_mask:0xf bank_mask:0xf')
        p(f'ds_write_b64 v207, {vr(A,2)}', None, MW('p0', L_P0, 512))
        p.add(self.mktag() + [f'v_mov_b32 v210, s{sTAG}', f'v_mov_b32 v211, s{sTAG}', f's_cmp_lg_u32 s{sW}, 0'])
        p.add(self.bar())
        p('s_cbranch_scc1 L_P0X')
        p.cond_begin()
        p('s_mov_b64 exec, 0xff')
        for k in range(4): p(f'ds_read_b128 {vr(160+4*k,4)}, v212 offset:{128*k}', None, MR('p0', L_P0, 512))
        p('v_pk_add_f32 v[160:161], v[160:161], v[164:165]')
        p('v_pk_add_f32 v[162:163], v[162:163], v[166:167]')
        p('v_pk_add_f32 v[168:169], v[168:169], v[172:173]')
        p('v_pk_add_f32 v[170:171], v[170:171], v[174:175]')
        p('v_pk_add_f32 v[160:161], v[160:161], v[168:169]')
        p('v_pk_add_f32 v[162:163], v[162:163], v[170:171]')
        p('v_cvt_pk_bf16_f32 v160, v160, v161')
        p('v_cvt_pk_bf16_f32 v162, v162, v163')
        p('v_and_b32 v161, 0xffff0000, v160')
        p('v_lshlrev_b32 v160, 16, v160')
        p('v_and_b32 v163, 0xffff0000, v162')
        p('v_lshlrev_b32 v162, 16, v162')
        p(f'v_pk_add_f32 v[160:161], v[160:161], s[{sT2}:{sT3}]')
        p(f'v_pk_add_f32 v[162:163], v[162:163], s[{sT2}:{sT3}]')
        p('v_cvt_pk_bf16_f32 v208, v160, v161')
        p('v_cvt_pk_bf16_f32 v209, v162, v163')
        p(f'buffer_store_dwordx4 v[208:211], v204, {srd(S_WS)}, s{sT1} offen sc1')
        p('s_mov_b64 exec, -1')
        p.cond_end()
        p('L_P0X:')

    MK = 80
    def precompute(self):
        o = []
        t = 104
        o += [f's_mov_b32 s{sR0}, s{sN+1}', f's_mul_i32 s{sCB}, s{sCL}, {CL_STRIDE}', f's_add_u32 s{sCB}, s{sCB}, {WS_CL}',
              f's_add_u32 s{sFP}, s{sCB}, {C_FL}', f's_sub_u32 s{sT0}, s{sCB}, 128',
              's_mov_b64 exec, 0xff', f'buffer_load_dword v{vJUNK}, v{vT128}, {srd(S_WS)}, s{sFP} offen sc1',
              's_mov_b64 exec, 1', f'buffer_load_dword v{vJUNK}, v{vT128}, {srd(S_WS)}, s{sT0} offen sc1',
              f'buffer_load_dword v{vJUNK}, v{vT128}, {srd(S_OUT)}, s{sA1} offen', 's_mov_b64 exec, -1',
              f's_and_b32 s{sT0}, s{sKW}, 31', f's_lshl2_add_u32 s{sFS}, s{sT0}, s{sFP}',
              f'v_and_b32 v{vFP}, 31, v{vLANE}', f'v_lshlrev_b32 v{vFP}, 2, v{vFP}',
              f'v_lshrrev_b32 v{vG}, 4, v{vLANE}', f'v_and_b32 v{vC}, 15, v{vLANE}']
        o += [f'v_lshrrev_b32 v{t}, 3, v{vLANE}', f'v_mul_u32_u24 v{t+6}, 10240, v{t}',
              f'v_lshrrev_b32 v{t+1}, 1, v{t}', f'v_lshlrev_b32 v{t+1}, 5, v{t+1}',
              f'v_and_b32 v{t+5}, 0x70, v{vL16}', f'v_xor_b32 v{t+1}, v{t+1}, v{t+5}',
              f'v_and_b32 v{t+2}, 4, v{t}', f'v_add_u32 v{t}, v{t}, v{t+2}',
              f'v_mul_u32_u24 v{t+2}, 3072, v{t}', f'v_add_u32 v{vDQ}, v{t+2}, v{t+1}',
              f'v_lshl_add_u32 v{vDP}, v{t}, 10, v{t+1}', f'v_add_u32 v{vDP+1}, {15*1024}, v{vDP}',
              f'v_add_u32 v{vDP+2}, {2*1024}, v{vDP}', f'v_add_u32 v{vDP+3}, {17*1024}, v{vDP}',
              f'v_mul_u32_u24 v{t+2}, 2752, v{t}', f'v_add_u32 v{vDW1}, v{t+2}, v{t+1}']
        o += [f's_and_b32 s{sT0}, s{sKW}, 15', f's_lshl_b32 s{sT1}, s{sT0}, 3', f's_and_b32 s{sT1}, s{sT1}, 0x70',
              f'v_xor_b32 v{vHS}, s{sT1}, v{t+5}', f'v_add_u32 v{vHS}, v{vHS}, v{t+6}',
              f's_lshl_b32 s{sT0}, s{sT0}, 7', f's_lshr_b32 s{sT1}, s{sJ}, 2', f's_lshl_b32 s{sT1}, s{sT1}, 12',
              f's_add_u32 s{sT0}, s{sT0}, s{sT1}', f's_add_u32 s{sT2}, s{sCB}, {C_H}', f's_add_u32 s{sHS0}, s{sT0}, s{sT2}',
              f's_xor_b32 s{sT0}, s{sW}, 1', f's_lshl3_add_u32 s{sT0}, s{sT0}, s{sJ}',
              f's_lshl_b32 s{sT1}, s{sT0}, 3', f's_and_b32 s{sT1}, s{sT1}, 0x70',
              f'v_xor_b32 v{vHS+1}, s{sT1}, v{t+5}', f'v_add_u32 v{vHS+1}, v{vHS+1}, v{t+6}',
              f's_lshl_b32 s{sT0}, s{sT0}, 7', f's_add_u32 s{sT0}, s{sT0}, s{sT2}',
              f's_cmp_lt_u32 s{sW}, 2', f's_cselect_b32 s{sHS1}, s{sT0}, {OOB}']
        o += [f's_and_b32 s{sT0}, s{sW}, 1', f's_lshl_b32 s{sT0}, s{sT0}, 4', f's_lshr_b32 s{sT1}, s{sW}, 1',
              f's_lshl2_add_u32 s{sT3}, s{sT1}, s{sT0}',
              f's_mul_i32 s{sD0}, s{sT3}, 3072', f's_lshl_b32 s{sT0}, s{sJ}, 7', f's_add_u32 s{sD0}, s{sD0}, s{sT0}',
              f's_mul_i32 s{sD1}, s{sW}, 3072',
              f's_min_u32 s{sT0}, s{sJ}, 3', f's_mul_i32 s{sU0}, s{sJ}, 5', f's_add_u32 s{sU0}, s{sU0}, s{sT0}',
              f's_mul_i32 s{sD2}, s{sT3}, 2752', f's_lshl_b32 s{sT0}, s{sU0}, 6', f's_add_u32 s{sD2}, s{sD2}, s{sT0}',
              f's_mov_b32 s{sONES}, 0x3f803f80', f's_mov_b32 s{sK}, 0x3eb8aa3b', f's_mov_b32 s{sK+1}, 0x3eb8aa3b']
        o += [f'v_lshrrev_b32 v{t}, 2, v{vLANE}', f'v_and_b32 v{t}, 7, v{t}',
              f'v_lshrrev_b32 v{t+1}, 1, v{t}', f'v_lshlrev_b32 v{t+1}, 5, v{t+1}',
              f'v_and_b32 v{t+2}, 3, v{vLANE}', f'v_lshlrev_b32 v{t+2}, 3, v{t+2}',
              f'v_lshl_add_u32 v{t+2}, v{t}, 7, v{t+2}',
              f'v_lshrrev_b32 v{t+3}, 5, v{vLANE}',
              f'v_and_b32 v{t+4}, 0x30, v{vL16}', f'v_xor_b32 v{t+4}, v{t+4}, v{t+1}',
              f'v_lshl_add_u32 v{t+4}, v{t}, 7, v{t+4}', f'v_lshl_add_u32 v{vTP}, v{t+3}, 10, v{t+4}',
              f'v_mul_u32_u24 v{t+3}, 3072, v{t+3}', f'v_add_u32 v{t+2}, v{t+2}, v{t+3}',
              f's_lshl_b32 s{sT0}, s{sW}, 5', f'v_xor_b32 v{t+3}, s{sT0}, v{t+1}',
              f'v_add_u32 v{vTS}, v{t+2}, v{t+3}', f'v_add_u32 v{vTS+1}, {4*SLOT}, v{vTS}']
        for m in range(3):
            o += [f's_mul_i32 s{sT0}, s{sW}, 3', f's_add_u32 s{sT0}, s{sT0}, {m}', f's_and_b32 s{sT1}, s{sT0}, 3',
                  f's_lshl_b32 s{sT1}, s{sT1}, 5', f's_lshr_b32 s{sT0}, s{sT0}, 2', f's_lshl_b32 s{sT0}, s{sT0}, 10',
                  f'v_xor_b32 v{vT1+m}, s{sT1}, v{t+1}', f'v_add3_u32 v{vT1+m}, v{vT1+m}, v{t+2}, s{sT0}']
        o += [f's_lshl_b32 s{sMW}, s{sW}, 12', f'v_add_u32 v{vPB}, s{sMW}, v{vTP}', f'v_xor_b32 v{vPB+1}, 64, v{vPB}']
        o += [f'v_lshrrev_b32 v{t}, 1, v{vC}', f'v_xor_b32 v{t}, v{t}, v{vG}', f'v_lshlrev_b32 v{t}, 4, v{t}',
              f'v_lshl_add_u32 v{t}, v{vC}, 7, v{t}',
              f'v_add_u32 v{vHR}, {L_H}, v{t}', f'v_xor_b32 v{vHR+1}, 64, v{vHR}',
              f'v_add_u32 v{vHR+2}, 40960, v{vHR}', f'v_add_u32 v{vHR+3}, 40960, v{vHR+1}']
        o += [f's_lshl_b32 s{sT0}, s{sW}, 10', f's_add_u32 s{sXB}, s{sT0}, {WS_MOD+4096}']
        o += [f'v_lshlrev_b32 v{vXO}, 11, v{vC}', f'v_lshl_add_u32 v{vXO}, v{vG}, 4, v{vXO}',
              f's_lshr_b32 s{sT0}, s{sW}, 1', f's_lshl_b32 s{sT0}, s{sT0}, 5', f's_and_b32 s{sT1}, s{sW}, 1',
              f's_add_u32 s{sT0}, s{sT0}, s{sT1}', f's_add_u32 s{sT0}, s{sT0}, s{sR0}', f's_lshl_b32 s{sT0}, s{sT0}, 10',
              f's_lshl_b32 s{sT1}, s{sJ}, 7', f's_add_u32 s{sXO}, s{sT0}, s{sT1}',
              f'v_lshrrev_b32 v{t}, 1, v{vG}', f'v_lshlrev_b32 v{t}, 8, v{t}', f'v_lshl_add_u32 v{t}, v{vC}, 4, v{t}',
              f'v_and_b32 v{t+1}, 1, v{vG}', f'v_lshl_add_u32 v{vSTO}, v{t+1}, 14, v{t}',
              f'v_mul_u32_u24 v{t+1}, {H_TILE}, v{t+1}', f'v_add_u32 v{vSTH}, v{t+1}, v{t}']
        return o

    def masks(self):
        t = 104; MK = self.MK
        o = [f'v_lshlrev_b32 v{t}, 2, v{vG}', f'v_sub_u32 v{t}, v{t}, v{vC}', f'v_mov_b32 v{t+1}, 0xf149f2ca',
             [f's_cmp_eq_u32 s{sCL}, 0', f's_cselect_b32 s{sT2}, 100, 9', f's_cselect_b32 s{sT3}, 100, 1'],
             f'v_and_b32 v{t+2}, 2, v{vG}', f'v_lshlrev_b32 v{t+2}, 6, v{t+2}', f'v_sub_u32 v{t+2}, v{t}, v{t+2}']
        for r in range(4):
            o += [f'v_add_u32 v{t+3}, {r+7}, v{t}', f'v_add_u32 v{t+4}, {r}, v{t}', f'v_add_u32 v{t+5}, {r}, v{t+2}',
                  f'v_cmp_gt_u32 vcc, 8, v{t+3}', f'v_cmp_le_i32 s[{sN}:{sN+1}], 9, v{t+4}',
                  f'v_cmp_le_i32 s[{sN+2}:{sN+3}], s{sT2}, v{t+4}', f'v_cmp_le_i32 s[{sA0}:{sA1}], s{sT3}, v{t+5}',
                  f'v_cndmask_b32 v{MK+r}, v{t+1}, 0, vcc', f'v_cndmask_b32 v{t+8+r}, 0, -1, vcc',
                  f'v_cndmask_b32 v{MK+4+r}, v{t+1}, 0, s[{sN}:{sN+1}]', f'v_cndmask_b32 v{MK+8+r}, v{t+1}, 0, s[{sN+2}:{sN+3}]',
                  f'v_cndmask_b32 v{MK+12+r}, v{t+1}, 0, s[{sA0}:{sA1}]']
        o += [f'v_mov_b32 v{t+3}, 0xffff', f'v_bfi_b32 v{MK+16}, v{t+3}, v{t+8}, v{t+9}', f'v_bfi_b32 v{MK+17}, v{t+3}, v{t+10}, v{t+11}',
              f'v_mov_b32 v100, s{sONES}', f'v_mov_b32 v101, s{sONES}']
        return o

    def hello(self):
        p = self.p
        p.add(self.mktag())
        p(f'v_mov_b32 v{vTAG}, s{sTAG}')
        p(f's_cmp_lg_u32 s{sW}, 3')
        p('s_cbranch_scc1 L_HEL')
        p.cond_begin()
        p(f's_lshl_b32 s{sT0}, s2, 2')
        p('s_mov_b64 exec, 1')
        p(f'buffer_store_dword v{vTAG}, v{vL16}, {srd(S_WS)}, s{sT0} offen offset:{WS_HELLO} sc1')
        p('s_mov_b64 exec, -1')
        p.cond_end()
        p('L_HEL:')

    def ln(self):
        S = 40
        o = [f'v_mov_b32 v{S+k}, 0' for k in range(8)]
        for m in range(4):
            for r in range(3):
                o += [f'v_dot2c_f32_bf16 v{S+r}, s{sONES}, v{4+4*r+m}', f'v_dot2c_f32_bf16 v{S+4+r}, v{4+4*r+m}, v{4+4*r+m}']
        up = []
        for r in range(3):
            for m in range(4):
                up += [f'v_lshlrev_b32 v{16+8*r+2*m}, 16, v{4+4*r+m}', f'v_and_b32 v{17+8*r+2*m}, 0xffff0000, v{4+4*r+m}']
        red = [f'v_permlane32_swap_b32 v{S+2*k}, v{S+2*k+1}' for k in range(4)]
        red += [f'v_add_f32 v{S+2*k}, v{S+2*k}, v{S+2*k+1}' for k in range(4)]
        red += [f'v_permlane16_swap_b32 v{S+4*k}, v{S+4*k+2}' for k in range(2)]
        red += [f'v_add_f32 v{S+4*k}, v{S+4*k}, v{S+4*k+2}' for k in range(2)]
        for sh in (8, 4, 2, 1):
            red += [f'v_add_f32_dpp v{S+4*k}, v{S+4*k}, v{S+4*k} row_ror:{sh} row_mask:0xf bank_mask:0xf' for k in range(2)]
        a, b = S, S+4
        red += [f'v_mul_f32 v{a}, 0x3b000000, v{a}', f'v_mul_f32 v{b}, 0x3b000000, v{b}', f'v_fma_f32 v{b}, -v{a}, v{a}, v{b}',
                f'v_max_f32 v{b}, 0, v{b}', f'v_add_f32 v{b}, 0x3727c5ac, v{b}', f'v_rsq_f32 v{b}, v{b}', f'v_mul_f32_e64 v{a}, -v{a}, v{b}']
        o += up[:4] + interleave(red, up[4:], every=1, per=1, start=6)
        for r, lane in enumerate((0, 32, 16)):
            o += [f'v_readlane_b32 s{sN+2*r}, v{a}, {lane}', f'v_readlane_b32 s{sN+2*r+1}, v{b}, {lane}']
        for r in range(3):
            for m in range(4):
                d = 16+8*r+2*m
                o.append(f'v_pk_fma_f32 {vr(d,2)}, {vr(d,2)}, s[{sN+2*r}:{sN+2*r+1}], s[{sN+2*r}:{sN+2*r+1}] op_sel:[0,1,0] op_sel_hi:[1,1,0]')
        return o

    WQA = [L_H, L_H+SLOT, L_H+2*SLOT] + [k*SLOT for k in range(6)] + [k*SLOT for k in range(6)] + [L_H]
    def dma_wq(self, k):
        a = self.WQA[k]
        o = [f's_add_u32 m0, s{sD1}, {a}']
        for sec in range(3):
            o.append((f'buffer_load_dwordx4 v{vDQ}, {srd(S_WQ)}, s{sD0} offen offset:{1024*sec} lds', f'wq{k}', MW(f'wq{k}', a, SLOT)))
        if k < 15: o.append(f's_add_u32 s{sD0}, s{sD0}, {32*3072}')
        return [o[0:2], o[2], o[3:]]

    def absorb_wq(self, k):
        a = self.WQA[k]; b = 1 if a > 4*SLOT else 0
        return [(f'ds_read_b64_tr_b16 {ar(k*12+sec*4+2*h,2)}, v{vTS+b} offset:{a-b*4*SLOT+h*6144+sec*1024}', f'awq{k}', MR(f'wq{k}', a, SLOT))
                for sec in range(3) for h in range(2)]

    def tagged_loads(self, lst):
        return [f'buffer_load_dwordx4 {vr(d,4)}, v{vL16}, {srd(S_WS)}, s{so} offen offset:{io} sc1' for d, so, io in lst]

    def tagged_check(self, lst):
        p = self.p
        L = p.label('L_PT'); D = p.label('L_PD')
        def chk():
            ds = [d+2 for d, _, _ in lst]
            if len(ds) == 4:
                for d in ds: p(f'v_xor_b32 v{d+1}, s{sTAG}, v{d}')
                p(f'v_or3_b32 v{ds[0]+1}, v{ds[0]+1}, v{ds[1]+1}, v{ds[2]+1}')
                p(f'v_or_b32 v{ds[0]+1}, v{ds[0]+1}, v{ds[3]+1}')
                p(f'v_cmp_ne_u32 vcc, 0, v{ds[0]+1}')
            else:
                p(f'v_cmp_ne_u32 vcc, s{sTAG}, v{ds[0]}')
                for d in ds[1:]:
                    p(f'v_cmp_ne_u32 s[{sT4}:{sT5}], s{sTAG}, v{d}')
                    p(f's_or_b64 vcc, vcc, s[{sT4}:{sT5}]')
            p(f's_cbranch_vccz {D}')
        chk()
        p.cond_begin()
        p(f's_mov_b32 s{sSPIN}, 20000')
        p(f'{L}:')
        p.add(self.tagged_loads(lst))
        p('s_waitcnt vmcnt(0)')
        chk()
        p(f's_sub_u32 s{sSPIN}, s{sSPIN}, 1')
        p(f's_cbranch_scc0 {L}')
        p.cond_end()
        p(f'{D}:')

    def publish(self, ph, tag):
        return [WVM(tag), 's_mov_b64 exec, 1',
                f'buffer_store_dword v{vTAG}, v{vL16}, {srd(S_WS)}, s{sFS} offen offset:{ph*128}',
                f'buffer_store_dword v{vTAG}, v{vL16}, {srd(S_WS)}, s{sFS} offen offset:{512+ph*128} sc1',
                's_mov_b64 exec, -1']

    def poll_issue(self, ph, r, b=0):
        return [f'buffer_load_dword v{r}, v{vFP}, {srd(S_WS)}, s{sFP} offen offset:{512*b+ph*128} sc1']

    def poll_check(self, ph, r):
        p = self.p
        D = p.label('L_WD')
        p(f'v_cmp_ne_u32 vcc, s{sTAG}, v{r}')
        p(f's_cbranch_vccz {D}')
        p.cond_begin()
        for b, n in ((0, self.o['npoll']), (1, 20000)):
            L = p.label('L_WF')
            p(f's_mov_b32 s{sSPIN}, {n}')
            p(f'{L}:')
            p.add(self.poll_issue(ph, r, b))
            p('s_waitcnt vmcnt(0)')
            p(f'v_cmp_ne_u32 vcc, s{sTAG}, v{r}')
            p(f's_cbranch_vccz {D}')
            p(f's_sub_u32 s{sSPIN}, s{sSPIN}, 1')
            p(f's_cbranch_scc0 {L}')
        p.cond_end()
        p(f'{D}:')

    def dma_priv(self, S, soff_reg, a, tag):
        out = [f's_add_u32 m0, s{sMW}, {a}']
        for b in range(4):
            out.append((f'buffer_load_dwordx4 v{vDP+b}, {srd(S)}, s{soff_reg} offen offset:{1024*b} lds', tag, MW(tag, a, 16384, a+1)))
        out.append(f's_add_u32 s{soff_reg}, s{soff_reg}, 32768')
        return [out[0:2], out[2], out[3], out[4:]]

    def absorb_priv(self, a, breg, bval, dst, tag):
        return [(f'ds_read_b64_tr_b16 {rr(dst,2,4*ct+2*h)}, v{breg+(ct>>1)} offset:{a-bval+h*2048+8*(ct&1)}', 'a'+tag, MR(tag, a, 16384, a+1))
                for ct in range(4) for h in range(2)]

    W1A = [36864, 49152, 61440, 73728, 102400, 131072, 143360, 0, 12288, 24576, 86016, 114688, 102400, 131072, 143360, 0]
    def dma_w1(self, k):
        o = []
        for sec in range(3):
            o.append([f's_add_u32 m0, s{sD1}, {self.W1A[k] + sec*896}',
                      (f'buffer_load_dwordx4 v{vDW1}, {srd(S_W1)}, s{sD2} offen offset:{128*sec} lds', f'w1_{k}', MW(f'w1_{k}', self.W1A[k], SLOT))])
        if k < 15: o[-1].append(f's_add_u32 s{sD2}, s{sD2}, {32*2752}')
        return o
    def absorb_w1(self, ks, tmp):
        o = []; cur = None
        for k in ks:
            a = self.W1A[k]
            if a + 6144 <= 65535: base, br = 0, vT1
            else:
                if cur is None or not (0 <= a - cur and a - cur + 6144 <= 65535):
                    cur = 86016 if a >= 86016 else a
                    o += [f'v_add_u32 v{tmp+m}, {cur}, v{vT1+m}' for m in range(3)]
                base, br = cur, tmp
            o += [(f'ds_read_b64_tr_b16 {ar(k*12+m*4+2*h,2)}, v{br+m} offset:{a-base+h*6144}', f'aw1_{k}', MR(f'w1_{k}', a, SLOT))
                  for m in range(3) for h in range(2)]
        return o

    def dma_h(self, g):
        a = L_H + 20480*g
        ld = lambda i: (f'buffer_load_dwordx4 v{vL16}, {srd(S_WS)}, s{sT3} offen offset:{1024*i} sc1 lds', f'h{g}', MW(f'h{g}', a, 20480))
        o = [[f's_add_u32 m0, s{sT2}, {a}', ld(0)], ld(1), ld(2), ld(3),
             [f's_add_u32 m0, s{sT2}, {a+4096}', f's_add_u32 s{sT3}, s{sT3}, 4096', ld(0)]]
        if g < 3: o[-1].append(f's_add_u32 s{sT3}, s{sT3}, 16384')
        return o

    ACCQ = [0, 4, 8, 12]; ACCK = [16, 20, 24, 28, 32]; ACCV = [36, 160, 164, 168, 172]
    def p1_gemm(self, pre):
        p = self.p
        fr = lambda T, s: 40+20*(s & 1)+4*T
        def rd(T, s):
            return (f'ds_read_b128 {vr(fr(T,s),4)}, v{vHR+(s&1)+2*(s>>3)} offset:{((s>>1)&3)*10240+T*2048}', f'fr{s}',
                    MR(f'h{s>>2}', L_H+20480*(s >> 2), 20480))
        p.add([rd(T, 0) for T in range(5)])
        steps = []
        for s in range(16):
            ms = []
            for T in range(5):
                h = vr(fr(T, s), 4)
                C = lambda a: '0' if s == 0 else vr(a, 4)
                ms.append(f'{MFMA} {vr(self.ACCK[T],4)}, {ar(s*12+4,4)}, {h}, {C(self.ACCK[T])}')
                ms.append(f'{MFMA} {vr(self.ACCV[T],4)}, {h}, {ar(s*12+8,4)}, {C(self.ACCV[T])}')
                if T > 0: ms.append(f'{MFMA} {vr(self.ACCQ[T-1],4)}, {ar(s*12,4)}, {h}, {C(self.ACCQ[T-1])}')
            steps.append(ms)
        head = [[] for _ in range(16)]; tail = [[] for _ in range(16)]
        vq = [(0, x) for x in pre]
        for k in (9, 10, 11): vq += [(0, x) for x in self.dma_wq(k)]
        for k in (12, 13, 14): vq += [(3, x) for x in self.dma_wq(k)]
        vq += [(7, x) for x in self.dma_wq(15)]
        wo = [f's_lshl_b32 s{sD0}, s{sW}, 17', f's_lshl_b32 s{sT0}, s{sJ}, 7', f's_add_u32 s{sD0}, s{sD0}, s{sT0}']
        for i, e in enumerate((7, 9, 9, 11)):
            d = self.dma_priv(S_WO, sD0, WOA[i], f'wo{i}')
            if i == 0: d[0] = wo + d[0]
            vq += [(e, x) for x in d]
        late = [[f's_add_u32 s{sA0}, s{sXB}, 4096'] + self.tagged_loads([(208, sXB, 0)])] + self.tagged_loads([(212, sA0, 0)])
        late += [f'buffer_load_dwordx4 {vr(216+4*pp,4)}, v{vXO}, {srd(S_X)}, s{sXO} offen offset:{64*pp}' for pp in range(2)]
        late += [[f's_cmp_eq_u32 s{sGW}, 1', f's_cselect_b32 s{sT0}, 0, {OOB}',
                  f'buffer_load_dwordx4 v[176:179], v{vL16}, {srd(S_WS)}, s{sT0} offen offset:{WS_HELLO} sc1']]
        vq += [(11, x) for x in late]
        rate = self.o.get('rate', 4)
        pos = {}
        qi = 0
        for s in range(16):
            n = 0
            while qi < len(vq) and vq[qi][0] <= s and (n < rate or s == 15):
                tail[s].append(vq[qi][1]); qi += 1; n += 1
            tail[s] += self.touches(f'g{s}')
        for k in (6, 7, 8): tail[k-6] += self.absorb_wq(k)
        head[3] += [[WVM('h1'), WLGA(), 's_barrier']]
        head[7] += [[WVM('h2'), WVM('wq11'), WLGA(), 's_barrier']]
        tail[7] += self.absorb_wq(9) + self.absorb_wq(10)[:3]
        tail[8] += self.absorb_wq(10)[3:] + self.absorb_wq(11)
        head[9] += [[WVM('wq14'), WLGA(), 's_barrier']]
        tail[9] += self.absorb_wq(12); tail[10] += self.absorb_wq(13)
        head[11] += [[WVM('h3'), WVM('wq15'), WLGA(), 's_barrier']]
        tail[11] += self.absorb_wq(14); tail[12] += self.absorb_wq(15)
        tail[15] += [f's_lshl_b32 s{sT0}, s{sJ}, 11', f's_lshl_b32 s{sT1}, s{sW}, 9', f's_add_u32 s{sT0}, s{sT0}, s{sT1}',
                     f's_add_u32 s{sT2}, s{sT0}, s{sCB}', f's_add_u32 s{sT3}, s{sT2}, 32768']
        for s in range(16):
            f = head[s] + ([rd(T, s+1) for T in range(5)] if s < 15 else []) + tail[s]
            if s: p.add([WLG(f'fr{s}')])
            p.add(spread(steps[s], f, 0, 14))

    def attention(self):
        QB, KB, VB = 104, 112, 122
        MK = self.MK
        vpos = {4: 0, 2: 2, 0: 4, 1: 6, 3: 8}
        SP, SC = 40, 56
        prevT = [0, 0, 1, 2]; biasP = [MK+8, MK+12, MK+4, MK+4]
        def cv(d, a): return [f'v_cvt_pk_bf16_f32 v{d}, v{a}, v{a+1}', f'v_cvt_pk_bf16_f32 v{d+1}, v{a+2}, v{a+3}']
        o = []
        o += cv(KB, self.ACCK[0])
        for t in range(4):
            o += cv(KB+2*(t+1), self.ACCK[t+1]) + cv(QB+2*t, self.ACCQ[t])
        vc = []
        for T in range(5): vc += cv(VB+vpos[T], self.ACCV[T])
        ms = []
        for t in range(4):
            ms.append(f'v_mfma_f32_16x16x16_bf16 {vr(SP+4*t,4)}, {vr(KB+2*prevT[t],2)}, {vr(QB+2*t,2)}, {vr(biasP[t],4)}')
            ms.append(f'v_mfma_f32_16x16x16_bf16 {vr(SC+4*t,4)}, {vr(KB+2*(t+1),2)}, {vr(QB+2*t,2)}, {vr(MK,4)}')
        o += interleave(ms, vc, every=1, per=2)
        M = 72
        for t in range(4):
            o += [f'v_max_f32 v{SP+4*t+r}, v{SP+4*t+r}, v{SC+4*t+r}' for r in range(4)]
            o += [f'v_max3_f32 v{M+t}, v{SP+4*t}, v{SP+4*t+1}, v{SP+4*t+2}', f'v_max_f32 v{M+t}, v{M+t}, v{SP+4*t+3}']
            if t == 1: hold = [f'v_permlane32_swap_b32 v{M}, v{M+1}', f'v_max_f32 v{M}, v{M}, v{M+1}']
            if t == 2: o += hold
        o += [f'v_permlane32_swap_b32 v{M+2}, v{M+3}', f'v_max_f32 v{M+2}, v{M+2}, v{M+3}',
              f'v_permlane16_swap_b32 v{M}, v{M+2}', f'v_max_f32 v{M}, v{M}, v{M+2}',
              f'v_mul_f32 v{M+4}, 0xbeb8aa3b, v{M}', f'v_mul_f32 v{M}, 0xbeb8aa3b, v{M}',
              f'v_permlane16_swap_b32 v{M}, v{M+4}', f'v_mov_b32 v{M+2}, v{M}', f'v_mov_b32 v{M+6}, v{M+4}',
              f'v_permlane32_swap_b32 v{M}, v{M+2}', f'v_permlane32_swap_b32 v{M+4}, v{M+6}']
        PB = 0
        OA = [VB+4, VB+2, VB+6, VB+0]
        for t in range(4):
            o += [f'v_pk_fma_f32 {vr(SP+4*t+2*hh,2)}, {vr(SP+4*t+2*hh,2)}, s[{sK}:{sK+1}], {vr(M+2*t,2)} op_sel_hi:[1,1,0]' for hh in range(2)]
        for t in range(4):
            o += [f'v_exp_f32 v{SP+4*t+r}, v{SP+4*t+r}' for r in range(4)]
            if t > 0:
                u = t-1
                o += [f'v_mfma_f32_16x16x16_bf16 {vr(SC+4*u,4)}, v[100:101], {vr(16+2*u,2)}, 0',
                      f'{MFMA} {vr(SP+4*u,4)}, {vr(OA[u],4)}, {vr(PB+4*u,4)}, 0']
            o += cv(16+2*t, SP+4*t)
            pp, pc = (PB+4*t, PB+4*t+2) if (t & 1) == 0 else (PB+4*t+2, PB+4*t)
            for hh in range(2):
                o += [f'v_bfi_b32 v{pp+hh}, v{MK+16+hh}, 0, v{16+2*t+hh}', f'v_and_b32 v{pc+hh}, v{MK+16+hh}, v{16+2*t+hh}']
        o += [f'v_rcp_f32 v{SC}, v{SC}', f'v_rcp_f32 v{SC+4}, v{SC+4}',
              f'v_mfma_f32_16x16x16_bf16 {vr(SC+12,4)}, v[100:101], {vr(22,2)}, 0',
              f'{MFMA} {vr(SP+12,4)}, {vr(OA[3],4)}, {vr(PB+12,4)}, 0']
        for t in range(4):
            if t == 2: o += [f'v_rcp_f32 v{SC+8}, v{SC+8}', f'v_rcp_f32 v{SC+12}, v{SC+12}']
            o += [f'v_mul_f32 v{SP+4*t+r}, v{SP+4*t+r}, v{SC+4*t}' for r in range(4)] if t < 2 else \
                 [f'v_pk_mul_f32 {vr(SP+4*t+2*hh,2)}, {vr(SP+4*t+2*hh,2)}, {vr(SC+4*t,2)} op_sel_hi:[1,0]' for hh in range(2)]
            o += cv(24+2*t, SP+4*t)
            if t & 1:
                b = 24+2*(t-1)
                o += [f'v_permlane16_swap_b32 v{b}, v{b+2}', f'v_permlane16_swap_b32 v{b+1}, v{b+3}',
                      (f'buffer_store_dwordx4 {vr(b,4)}, v{vSTO}, {srd(S_WS)}, s{sT2 if t==1 else sT3} offen sc1', 'ost')]
        return o

    def ks_setup(self, region, tile_stride, wave_stride, areg):
        o = [f's_mul_i32 s{sT0}, s{sW}, {wave_stride}', f's_add_u32 s{sT0}, s{sT0}, s{sCB}', f's_add_u32 s{sT0}, s{sT0}, {region}']
        for n in range(4):
            o += [f's_add_u32 s{sT1}, s{sW}, {n+1}', f's_and_b32 s{sT1}, s{sT1}, 3', f's_mul_i32 s{sN+n}, s{sT1}, {tile_stride}',
                  f's_add_u32 s{sN+n}, s{sN+n}, s{sT0}', f's_mul_i32 s{sT1}, s{sT1}, {3*4096}',
                  f'v_add_u32 v{areg+n}, s{sT1}, v{vL16}']
        return o

    def ksplit(self, nm, nsteps, wreg, breg, acc, part, areg, lead, latfill, extra_vm=(), last_oob=False, base=None, after2=()):
        p = self.p
        loads = []
        for n in range(4):
            for i in range(nsteps):
                l = []
                if i and i % 4 == 0: l.append(f's_add_u32 s{sN+n}, s{sN+n}, 4096')
                if last_oob and i == nsteps-1: l.append(f's_add_u32 s{sN+n}, s{sN+n}, s{sA0}')
                l.append(f'buffer_load_dwordx4 {rr(breg(n*nsteps+i),4)}, v{vL16}, {srd(S_WS)}, s{sN+n} offen offset:{(i%4)*1024} sc1')
                loads.append(l)
        loads += list(extra_vm)
        p.add(spread(loads[:lead], latfill, min(self.o.get('lead0', 4), lead-1)) if latfill else loads[:lead])
        li = lead
        rg = lambda n: [(L_RED+t*12288+4096*n, L_RED+t*12288+4096*n+4096) for t in range(4)]
        wr = lambda n: [(f'ds_write_b128 v{areg+n}, {vr(acc+16*n+4*ct,4)} offset:{L_RED+4096*n+1024*ct}', None, (rg(n), 'W', 0, f'{nm}{n}')) for ct in range(4)]
        rdp = lambda n, dst: [(f'ds_read_b128 {vr(dst+4*ct,4)}, v{areg+3} offset:{L_RED+4096*n+1024*ct}', None, (rg(n), 'R', 0, f'{nm}{n}')) for ct in range(4)]
        for n in range(4):
            ms = []
            if n == 3: loads += list(after2)
            for i in range(nsteps):
                g = []
                for ct in range(4):
                    a = acc+16*n+4*ct
                    c0 = vr(a, 4) if (i or n == 3) else '0'
                    g.append(f'{MFMA} {vr(a,4)}, {wreg(i,ct)}, {rr(breg(n*nsteps+i),4)}, {c0}')
                if li < len(loads):
                    g.insert(1, loads[li]); li += 1
                ms += g
            f = []
            if n >= 1: f += wr(n-1)
            if n == 2: f = f + [self.bar(), rdp(0, acc+48), rdp(1, part)]
            if n == 3:
                f = f + [self.bar(), rdp(2, part+16)]
                f2 = [f'v_add_f32 v{part+k}, v{part+k}, v{part+16+k}' for k in range(16)] + (base or [])
            if n == 3 and nsteps > 4:
                h = len(ms)//2
                p.add(spread(ms[:h], f, 4, h) + spread(ms[h:], f2, 8, len(ms)-h))
            elif n == 3:
                p.add(spread(ms, f, 4, len(ms)))
            else:
                p.add(spread(ms, f, 4, max(len(ms)-8, 12)))
        return loads[li:]

    def unpack8(self, dst, src):
        o = []
        for k in range(8):
            o += [f'v_lshlrev_b32 v{dst+2*k}, 16, v{src+k}', f'v_and_b32 v{dst+2*k+1}, 0xffff0000, v{src+k}']
        return o

    def build(self):
        p = self.p; O = self.o
        self.entry()
        p.add(self.stamp('karg'))
        p.save('head'); st = self.nst
        p('s_cbranch_scc1 L_NP')
        self.p0()
        p('s_branch L_J')
        p('L_NP:')
        p.restore('head'); self.nst = st
        p(f's_mov_b64 s[{S_WQ}:{S_WQ+1}], s[42:43]')
        tt = flat(self.touches('w0'))
        i0 = min([i for i, x in enumerate(tt) if isinstance(x, tuple) and srd(S_WQ) not in x[0]], default=len(tt))
        p.add(tt[:i0] + self.srds((S_WO, S_W1, S_W2, S_OUT, S_WS)) + tt[i0:])
        p.add(self.stamp('iss'))
        p('L_J:')
        p.add(self.stamp('join'))
        p.add(self.precompute())
        self.hello()
        p.add(self.stamp('pre'))
        p.add(self.ln())
        p.add(self.stamp('ln'))
        p(f's_mov_b32 s{sT1}, {WS_MOD}')
        p.add([WVM('T')])
        p.add(self.stamp('tback'))
        ml = [(48+4*i, sT1, 1024*i) for i in range(4)]
        c1, c2, c3 = O['c1'], O['c2'], O['c3']
        assert c1+c2+c3 == 9 and c1 >= 3 or True
        p.add(self.tagged_loads(ml))
        p.add(self.touches('c1'))
        for k in range(c1): p.add(self.dma_wq(k))
        self.tagged_check(ml)
        p.add(self.stamp('moda'))
        for v_, dst in ((1, 72), (0, 64)):
            for e in range(2):
                for m in range(2):
                    s_ = 48+8*v_+4*e+m; d = dst+4*e+2*m
                    p(f'v_lshlrev_b32 v{d}, 16, v{s_}'); p(f'v_and_b32 v{d+1}, 0xffff0000, v{s_}')
        for r in range(3):
            for m in range(4): p(f'v_pk_fma_f32 {vr(16+8*r+2*m,2)}, {vr(16+8*r+2*m,2)}, {vr(72+2*m,2)}, {vr(64+2*m,2)}')
            for m in range(4): p(f'v_cvt_pk_bf16_f32 v{4+4*r+m}, v{16+8*r+2*m}, v{17+8*r+2*m}')
            if r < 2: p(f'buffer_store_dwordx4 {vr(4+4*r,4)}, v{vHS}, {srd(S_WS)}, s{sHS0} offen offset:{2048*(r+1)-(2048 if r else 0)*0} sc1' if r == 0 else
                        f'buffer_store_dwordx4 {vr(4+4*r,4)}, v{vHS}, {srd(S_WS)}, s{sT0} offen sc1', 'hst')
            else: p(f'buffer_store_dwordx4 {vr(4+4*r,4)}, v{vHS+1}, {srd(S_WS)}, s{sHS1} offen sc1', 'hst')
            if r == 0: p(f's_add_u32 s{sT0}, s{sHS0}, 4096')
        p.add(self.touches('c2'))
        mk = self.masks()
        p.add(spread(mk, flat([self.dma_wq(k) for k in range(c1, c1+c2)])))
        p.add(self.publish(0, 'hst'))
        p.add(self.stamp('hpub'))
        p.add([WVM('wq2'), 's_barrier'])
        setup = [f's_mul_i32 s{sT2}, s{sW}, 5120', f's_add_u32 s{sT3}, s{sT2}, s{sCB}', f's_add_u32 s{sT3}, s{sT3}, {C_H}']
        p.add(spread(flat([self.absorb_wq(k) for k in range(3)]) + setup, flat([self.dma_wq(k) for k in range(c1+c2, c1+c2+c3)])))
        p.add(self.poll_issue(0, 48))
        p.add([WVM('wq5'), WLGA(), 's_barrier'])
        p.add(flat([self.absorb_wq(k) for k in range(3, 6)]))
        self.poll_check(0, 48)
        p.add(self.stamp('hflag'))
        p.add(self.flush())
        rest = flat([self.dma_wq(k) for k in range(c1+c2+c3, 9)])
        hq = self.dma_h(0) + rest + self.dma_h(1) + self.dma_h(2) + self.dma_h(3)
        nh = O.get('nh', 10) + len(rest)
        p.add(hq[:nh])
        p.add([WVM('h0'), WVM('wq8'), WLGA(), 's_barrier'])
        p.add(self.stamp('hready'))
        self.p1_gemm(hq[nh:])
        p.add(self.stamp('p1gemm'))
        p.add(self.bar())
        self.tail()
        p('L_END:')
        p('s_endpgm')
        return p.finalize()

    def tail(self):
        p = self.p; O = self.o
        nC, nP, natt = O['nC'], O['nP'], O['natt']
        att = self.attention()
        d = self.touches('att') + flat([self.dma_w1(k) for k in range(natt)])
        p.add(spread(att, d, 0, O.get('attend', 130)))
        p.add(self.stamp('attn'))
        self.epoch()
        ab = [f'v_add_u32 v128, 65536, v{vPB}', f'v_add_u32 v129, 65536, v{vPB+1}']
        for i in range(4):
            hi = WOA[i] >= 65536
            ab += [WVM(f'wo{i}')] + self.absorb_priv(WOA[i], 128 if hi else vPB, 65536 if hi else 0, ('a', 192+16*i), f'wo{i}')
        setup = self.ks_setup(C_O, 16384, 4096, 160)
        setup += [f's_lshr_b32 s{sT2}, s{sW}, 1', f's_lshl_b32 s{sT2}, s{sT2}, 10', f's_and_b32 s{sT0}, s{sW}, 1', f's_lshl3_add_u32 s{sT2}, s{sT0}, s{sT2}',
                  f's_add_u32 s{sT2}, s{sT2}, {L_MISC}', f'v_add_u32 v131, s{sT2}, v{vL16}',
                  f's_lshl_b32 s{sT0}, s{sJ}, 7', f's_add_u32 s{sT0}, s{sT0}, {L_MISC}', f'v_lshlrev_b32 v132, 4, v{vG}',
                  f'v_add_u32 v132, s{sT0}, v132'] + self.unpack8(144, 216)
        p.add(ab + setup)
        self.tagged_check([(208, sXB, 0), (212, sA0, 0)])
        p('ds_write_b64 v131, v[208:209]', None, MW('mod', L_MISC, 4096))
        p('ds_write_b64 v131, v[212:213] offset:2048', None, MW('mod', L_MISC, 4096))
        p.add(self.publish(1, 'ost'))
        p.add(self.stamp('pub1'))
        p.add(self.bar())
        k1 = natt + nC
        assert k1 <= 12
        GA, CB, GBP = 164, 180, 196
        mr = MR('mod', L_MISC, 4096)
        work = [(f'ds_read_b128 {vr(208+8*k+4*pp,4)}, v132 offset:{off+64*pp}', None, mr) for k, off in enumerate((0, 2048)) for pp in range(2)]
        work += [(f'ds_read_b128 {vr(GBP+4*pp,4)}, v132 offset:{3072+64*pp}', None, mr) for pp in range(2)]
        work += self.absorb_w1(range(natt), 128)
        d = self.touches('pub1') + flat([self.dma_w1(k) for k in range(natt, k1)]) + self.poll_issue(1, 133)
        p.add(spread(work, d, 0, int(len(work)*O.get('w1f', 0.7))))
        self.poll_check(1, 133)
        p.add(self.stamp('flag1'))
        lat = [[WVM(f'w1_{k1-1}'), WLGA(), 's_barrier']] + self.absorb_w1(range(natt, k1), 128) + self.unpack8(GA, 208) + self.unpack8(CB, 216)
        lat += [f's_lshl_b32 s{sT0}, s{sW}, 14', f's_lshl_b32 s{sT1}, s{sJ}, 11', f's_add_u32 s{sT0}, s{sT0}, s{sT1}',
                f's_add_u32 s{sT0}, s{sT0}, s{sCB}', f's_add_u32 s{sT2}, s{sT0}, {C_X1}',
                f's_lshl_b32 s{sT0}, s{sW}, 10', f's_lshr_b32 s{sT1}, s{sJ}, 1', f's_lshl_b32 s{sT1}, s{sT1}, 8', f's_add_u32 s{sT0}, s{sT0}, s{sT1}',
                f's_and_b32 s{sT1}, s{sJ}, 1', f's_lshl3_add_u32 s{sT0}, s{sT1}, s{sT0}',
                f's_add_u32 s{sT0}, s{sT0}, s{sCB}', f's_add_u32 s{sT3}, s{sT0}, {C_ST}',
                f'v_lshrrev_b32 v204, 1, v{vG}', f'v_lshlrev_b32 v204, 2, v204', f'v_lshl_add_u32 v204, v{vC}, 4, v204',
                'v_mov_b32 v206, 0', 'v_mov_b32 v207, 0']
        k2 = min(k1 + nP, 16)
        ex = self.touches('p2') + flat([self.dma_w1(k) for k in range(k1, min(k2, 15))])
        ex2 = self.dma_w1(15) if k2 == 16 else []
        left = self.ksplit('ra', 4, lambda i, ct: ar(192+16*i+4*ct, 4), lambda k: ('v', 4*k), 64, 0, 160, O.get('lead2', 10), lat, ex, after2=ex2)
        p.add(self.stamp('p2gemm'))
        Y = 112; X1 = 216
        ep = [f'v_pk_add_f32 {vr(2*k,2)}, {vr(2*k,2)}, {vr(16+2*k,2)}' for k in range(8)]
        ep += [f'v_pk_add_f32 {vr(Y+2*k,2)}, {vr(Y+2*k,2)}, {vr(2*k,2)}' for k in range(8)]
        ep += [f'v_pk_fma_f32 {vr(Y+2*k,2)}, {vr(Y+2*k,2)}, {vr(GA+2*k,2)}, {vr(144+2*k,2)}' for k in range(8)]
        ep += [f'v_cvt_pk_bf16_f32 v{X1+k}, v{Y+2*k}, v{Y+2*k+1}' for k in range(8)]
        ep += [f'v_pk_mul_f32 {vr(Y+2*k,2)}, {vr(Y+2*k,2)}, {vr(CB+2*k,2)}' for k in range(8)]
        for pp in range(2):
            ep += [f'v_cvt_pk_bf16_f32 v{32+k}, v{Y+2*k}, v{Y+2*k+1}' for k in range(4*pp, 4*pp+4)]
            ep.append((f'buffer_store_dwordx4 {vr(32+4*pp,4)}, v{vL16}, {srd(S_WS)}, s{sT2} offen offset:{1024*pp} sc1', 'xst'))
        for k in range(8):
            ep += [f'v_dot2c_f32_bf16 v206, s{sONES}, v{X1+k}', f'v_dot2c_f32_bf16 v207, v{X1+k}, v{X1+k}']
        ep += ['v_permlane32_swap_b32 v206, v207', 'v_add_f32 v206, v206, v207', 'v_mov_b32 v207, v206',
               'v_permlane16_swap_b32 v206, v207', 'v_add_f32 v206, v206, v207',
               (f'buffer_store_dword v206, v204, {srd(S_WS)}, s{sT3} offen sc1', 'xst')]
        p.add(spread(ep, left, 0, 40) if left else ep)
        U, V = 128, 140
        uvr = [f'v_and_b32 v204, 8, v{vC}', f'v_lshlrev_b32 v204, 7, v204', f'v_sub_u32 v204, {L_MISC+2048}, v204',
               f'v_lshl_add_u32 v204, v{vG}, 4, v204'] + [(f'ds_read_b128 {vr(48+4*s,4)}, v204 offset:{64*s}', None, mr) for s in range(16)]
        uvm = lambda ss: [f'{MFMA} {vr(U+4*m,4)}, {ar(s*12+4*m,4)}, {vr(48+4*s,4)}, {"0" if s==0 else vr(U+4*m,4)}' for s in ss for m in range(3)]
        setup2 = [f's_mul_i32 s{sD0}, s{sW}, {11*32768}', f's_lshl_b32 s{sT1}, s{sJ}, 7', f's_add_u32 s{sD0}, s{sD0}, s{sT1}',
                  f'v_add_u32 v{vPB}, {L_W2}, v{vPB}', f'v_add_u32 v{vPB+1}, {L_W2}, v{vPB+1}',
                  f's_lshl_b32 s{sT2}, s{sW}, 14', f's_add_u32 s{sT3}, s{sT2}, s{sCB}', f's_add_u32 s{sT3}, s{sT3}, {C_X1}',
                  [f's_cmp_ge_u32 s{sW}, 2', f's_cselect_b32 s{sT1}, {X1T[2]-32768}, 0'], f's_add_u32 s{sT2}, s{sT2}, s{sT1}',
                  f's_add_u32 s{sA0}, s{sCB}, {C_ST}', f'v_add_u32 v168, {X1T[2]}, v{vL16}']
        late = list(range(k2, 16))
        dl = flat([self.dma_w1(k) for k in late])
        nu = O.get('nu', 8)
        p.add(uvr)
        p.add(spread(uvm(range(0, min(nu, k1))), dl + setup2))
        p.add(self.publish(2, 'xst'))
        p.add(self.stamp('pub2'))
        p.add([WVM('w1_15')] + self.bar())
        w2reg = lambda i: ('a', 192+16*i) if i < 4 else ('a', 16*(i-4))
        dw2 = lambda i: self.dma_priv(S_W2, sD0, L_W2+16384*(i % 4), f'w2_{i}')
        aw2 = lambda i: [WVM(f'w2_{i}')] + self.absorb_priv(L_W2+16384*(i % 4), vPB, L_W2, w2reg(i), f'w2_{i}')
        n2 = O.get('n2', 2)
        d = flat([dw2(i) for i in range(n2)]) + self.poll_issue(2, 169)
        work = self.absorb_w1(range(k1, 16), 0) + uvm(range(min(nu, k1), k1)) + [self.bar()] + uvm(range(k1, 16))
        p.add(spread(work, d, 0, int(len(work)*O.get('w2f', 0.6))))
        self.poll_check(2, 169)
        p.add(self.stamp('flag2'))
        p.add(self.flush())
        STT = 152; TT = 80; FR = 48
        xl = []
        for s in range(16):
            l = []
            if s % 4 == 0:
                if s: l.append(f's_add_u32 s{sT3}, s{sT3}, 4096')
                l.append(f's_add_u32 m0, s{sT2}, {1024*s}')
            l.append((f'buffer_load_dwordx4 v{vL16}, {srd(S_WS)}, s{sT3} offen offset:{1024*(s%4)} sc1 lds', f'x1_{s}',
                      ([(X1T[t]+1024*s, X1T[t]+1024*s+1024) for t in range(4)], 'W', 0, f'x1_{s}')))
            xl.append(l)
        stl = [f'buffer_load_dwordx4 {vr(STT+4*t,4)}, v{vL16}, {srd(S_WS)}, s{sA0} offen offset:{1024*t} sc1' for t in range(4)]
        hs = [[f's_cmp_ge_u32 s{sJ}, 3', f's_cselect_b32 s{sT1}, 3, 99'], f's_mul_i32 s{sT0}, s{sW}, {3*512}',
              f's_lshl_b32 s{sN}, s{sU0}, 10', f's_add_u32 s{sT0}, s{sT0}, s{sN}', f's_add_u32 s{sT0}, s{sT0}, s{sCB}',
              f's_add_u32 s{sN}, s{sT0}, {C_H}', [f's_cmp_eq_u32 s{sW}, s{sT1}', f's_cselect_b32 s{sN+1}, {OOB}, s{sN}'],
              f's_add_u32 s{sN+2}, s{sN}, {2*H_TILE}', f's_add_u32 s{sN+3}, s{sN+1}, {2*H_TILE}']
        uvfix = [f'v_mov_b32 v{V+k}, v{U+k}' for k in range(12)]
        uvfix += [f'v_mov_b32_dpp v{V+k}, v{U+k} row_ror:8 row_mask:0xf bank_mask:0x3' for k in range(12)]
        uvfix += [f'v_mov_b32_dpp v{U+k}, v{U+k} row_ror:8 row_mask:0xf bank_mask:0xc' for k in range(12)]
        p.add(spread(xl[:8], flat([aw2(i) for i in range(n2)]) + hs + uvfix, 3))
        def rd(t, s): return (f'ds_read_b128 {vr(FR+16*(s&1)+4*t,4)}, v{vL16 if t < 2 else 168} offset:{(t&1)*16384+s*1024}', f'f3{s}',
                              MR(f'x1_{s}', X1T[t]+1024*s, 1024))
        st = []
        for t in range(4):
            st += [f'v_add_f32 v{STT+4*t}, v{STT+4*t}, v{STT+4*t+2}', f'v_add_f32 v{STT+4*t+1}, v{STT+4*t+1}, v{STT+4*t+3}']
        a, b = STT, STT+1
        st += [f'v_permlane32_swap_b32 v{a}, v{a+4}', f'v_permlane32_swap_b32 v{b}, v{b+4}',
               f'v_permlane32_swap_b32 v{a+8}, v{a+12}', f'v_permlane32_swap_b32 v{b+8}, v{b+12}',
               f'v_add_f32 v{a}, v{a}, v{a+4}', f'v_add_f32 v{b}, v{b}, v{b+4}',
               f'v_add_f32 v{a+8}, v{a+8}, v{a+12}', f'v_add_f32 v{b+8}, v{b+8}, v{b+12}',
               f'v_permlane16_swap_b32 v{a}, v{a+8}', f'v_permlane16_swap_b32 v{b}, v{b+8}',
               f'v_add_f32 v{a}, v{a}, v{a+8}', f'v_add_f32 v{b}, v{b}, v{b+8}',
               f'v_mul_f32 v{a}, 0x3b000000, v{a}', f'v_mul_f32 v{b}, 0x3b000000, v{b}',
               f'v_fma_f32 v{b}, -v{a}, v{a}, v{b}', f'v_max_f32 v{b}, 0, v{b}', f'v_add_f32 v{b}, 0x3727c5ac, v{b}',
               f'v_rsq_f32 v{b}, v{b}', f'v_mul_f32_e64 v{a}, -v{a}, v{b}',
               f'v_mov_b32 v{b+8}, v{b}', f'v_mov_b32 v{a+8}, v{a}',
               f'v_permlane16_swap_b32 v{b}, v{b+8}', f'v_permlane16_swap_b32 v{a}, v{a+8}',
               f'v_mov_b32 v{b+4}, v{b}', f'v_mov_b32 v{b+12}, v{b+8}', f'v_mov_b32 v{a+4}, v{a}', f'v_mov_b32 v{a+12}, v{a+8}',
               f'v_permlane32_swap_b32 v{b}, v{b+4}', f'v_permlane32_swap_b32 v{b+8}, v{b+12}',
               f'v_permlane32_swap_b32 v{a}, v{a+4}', f'v_permlane32_swap_b32 v{a+8}, v{a+12}']
        for t in range(4):
            for k in range(12): st.append(f'v_fma_f32 v{TT+12*t+k}, v{STT+4*t}, v{U+k}, v{V+k}')
        p.add([WVM('x1_1'), 's_barrier'])
        p.add([rd(t, 0) for t in range(4)])
        head = [[] for _ in range(16)]; tl = [[] for _ in range(16)]
        tl[0] += xl[8:11]; tl[1] += xl[11:14]; tl[2] += xl[14:16] + stl[:1]; tl[3] += stl[1:]
        head[1] += [[WVM('x1_5'), 's_barrier']]
        head[5] += [[WVM('x1_15'), 's_barrier']]
        rem = list(range(n2, 11))
        dstep = {i: 4 + (k*11)//len(rem) for k, i in enumerate(rem)}
        astep = {i: dstep[i]+4 for i in rem if dstep[i]+4 <= 15}
        for i in rem:
            if i >= 4 and i-4 in astep: astep[i-4] = min(astep[i-4], dstep[i]-1)
        for i, s in astep.items():
            assert i < 4 or 16*(i-4)+15 < 12*s, (i, s)
            tl[s] += aw2(i)
        for i, s in dstep.items():
            if i >= 4: tl[s] += [WLG(f'aw2_{i-4}')]
            tl[s] += dw2(i)
        ns = len(st)
        sts = [6, 7, 7, 11, 11, 14, 15, 15]
        for k, s in enumerate(sts): tl[s] += st[k*ns//len(sts):(k+1)*ns//len(sts)]
        for s in range(16):
            ms = [f'{MFMA} {vr(12*t+4*m,4)}, {ar(s*12+4*m,4)}, {vr(FR+16*(s&1)+4*t,4)}, {"0" if s==0 else vr(12*t+4*m,4)}'
                  for t in range(4) for m in range(3)]
            f = head[s] + ([rd(t, s+1) for t in range(4)] if s < 15 else []) + tl[s]
            if s: p.add([WLG(f'f3{s}')])
            p.add(spread(ms, f, 0, 12))
        p.add(self.stamp('p3gemm'))
        for pr in range(2):
            for m in range(3):
                b = FR+12*pr+4*m
                for tt in range(2):
                    t = 2*pr+tt; a = 12*t+4*m
                    for hh in range(2):
                        p(f'v_pk_fma_f32 {vr(a+2*hh,2)}, {vr(a+2*hh,2)}, {vr(STT+4*t,2)}, {vr(TT+a+2*hh,2)} op_sel:[0,1,0] op_sel_hi:[1,1,1]')
                    for hh in range(2):
                        p(f'v_cvt_pk_bf16_f32 v{b+2*tt+hh}, v{a+2*hh}, v{a+2*hh+1}')
                for k in (0, 2, 1, 3): p(f'v_pk_max_i16 v{b+k}, v{b+k}, 0')
                p(f'v_permlane16_swap_b32 v{b}, v{b+2}')
                p(f'v_permlane16_swap_b32 v{b+1}, v{b+3}')
                p(f'buffer_store_dwordx4 {vr(b,4)}, v{vSTH}, {srd(S_WS)}, s{sN+2*pr+(1 if m else 0)} offen offset:{512*m} sc1', 'hdst')
        p.add(flat([aw2(i) for i in rem if i not in astep]))
        p.add(self.ks_setup(C_H, H_TILE, 11*1024, 160))
        p(f's_cmp_eq_u32 s{sW}, 3')
        p(f's_cselect_b32 s{sA0}, {OOB}, 0')
        p.add(self.unpack8(GA, GBP) + self.unpack8(CB, X1))
        p.add(self.publish(3, 'hdst'))
        p.add(self.stamp('pub3'))
        p.add(self.bar())
        p.add(self.poll_issue(3, 0))
        self.poll_check(3, 0)
        p.add(self.stamp('flag3'))
        w2op = lambda i, ct: rr(w2reg(i), 4, 4*ct)
        base = [f'v_fma_f32 v{CB+k}, v{64+k}, v{GA+k}, v{CB+k}' for k in range(16)]
        self.ksplit('rb', 11, w2op, lambda k: ('a', 112+4*(k % 20)), 0, 64, 160, O.get('lead4', 9), [], last_oob=True, base=base)
        p.add(self.stamp('p4gemm'))
        Y = 48
        for pp in range(2):
            for k in range(4*pp, 4*pp+4): p(f'v_pk_fma_f32 {vr(Y+2*k,2)}, {vr(Y+2*k,2)}, {vr(GA+2*k,2)}, {vr(CB+2*k,2)}')
            for k in range(4*pp, 4*pp+4): p(f'v_cvt_pk_bf16_f32 v{96+k}, v{Y+2*k}, v{Y+2*k+1}')
            p(f'buffer_store_dwordx4 {vr(96+4*pp,4)}, v{vXO}, {srd(S_OUT)}, s{sXO} offen offset:{64*pp}')
        self.finish()

    def epoch(self):
        p = self.p
        LE, LL, LD = p.label('L_EP'), p.label('L_EPL'), p.label('L_EPD')
        def chk():
            for k in range(4): p(f'v_xor_b32 v{176+k}, s{sTAG}, v{176+k}')
            p('v_or3_b32 v176, v176, v177, v178')
            p('v_or_b32 v176, v176, v179')
            p('v_cmp_ne_u32 vcc, 0, v176')
            p(f's_cbranch_vccz {LD}')
        p(f's_cmp_lg_u32 s{sGW}, 1')
        p(f's_cbranch_scc1 {LE}')
        p.cond_begin()
        chk()
        p(f's_mov_b32 s{sSPIN}, 20000')
        p(f'{LL}:')
        p(f'buffer_load_dwordx4 v[176:179], v{vL16}, {srd(S_WS)}, 0 offen offset:{WS_HELLO} sc1')
        p('s_waitcnt vmcnt(0)')
        chk()
        p(f's_sub_u32 s{sSPIN}, s{sSPIN}, 1')
        p(f's_cbranch_scc0 {LL}')
        p(f'{LD}:')
        p('s_mov_b64 exec, 1')
        p(f'buffer_store_dword v{vTAG}, v{vL16}, {srd(S_WS)}, 0 offen sc1')
        p('s_mov_b64 exec, -1')
        p.cond_end()
        p(f'{LE}:')

    def finish(self):
        p = self.p
        hs = self.o.get('hs')
        if hs:
            p.add([WVMA()])
            p.add(self.stamp('end'))
            p('s_waitcnt lgkmcnt(0)')
            hw = self.o.get('hw', 532)
            if hw >= 0:
                p(f's_cmp_lg_u32 s{sGW}, {hw}')
                p('s_cbranch_scc1 L_END')
            if hs == 'none': p(f's_mov_b32 s{sT0}, 0')
            elif hs[0] == 'R':
                p(f's_sub_u32 s{sT0}, s{STAMP0+2}, s{STAMP0+4}')
                p(f's_lshl_b32 s{sT0}, s{sT0}, 1')
            else:
                p(f's_sub_u32 s{sT0}, s{STAMP0+2}, s{STAMP0}')
                p(f's_lshr_b32 s{sT0}, s{sT0}, 3')
            p(f's_min_u32 s{sT0}, s{sT0}, 20000')
            p(f's_add_u32 s{sT0}, s{sT0}, 3000')
            p(f's_mov_b32 s{sSPIN}, 200000')
            p('L_HS:')
            p(f's_memrealtime s[{STAMP0+6}:{STAMP0+7}]')
            p('s_waitcnt lgkmcnt(0)')
            p(f's_sub_u32 s{sT1}, s{STAMP0+6}, s{STAMP0+4}')
            p(f's_cmp_ge_u32 s{sT1}, s{sT0}')
            p('s_cbranch_scc1 L_END')
            p(f's_sub_u32 s{sSPIN}, s{sSPIN}, 1')
            p('s_cbranch_scc0 L_HS')
            return
        if self.diag:
            p.add([WVMA()])
            p.add(self.stamp('end'))
            p.add(self.flush())
            p(f's_lshl_b32 s{sT0}, s{sGW}, 8')
            p(f's_add_u32 s{sT0}, s{sT0}, {WS_DIAG}')
            p(f'v_lshlrev_b32 v1, 2, v{vLANE}')
            p(f'buffer_store_dword v{vDIAG}, v1, {srd(S_WS)}, s{sT0} offen')


HEADER = open(os.path.join(os.path.dirname(os.path.abspath(__file__)), '..', 'cdna_kernels',
              'adaLN_cond__sliding_local_dilated__dense_activation_relu__prompt.s.ref')).read()

def emit(diag=False, hdiag=None, **opt):
    g = Gen(diag or bool(hdiag), hdiag, **opt)
    ins = g.build()
    head = HEADER.split(KNAME + ':')[0].replace('grid=(4096,1,1) block=(256,1,1) lds=0', 'grid=(256,1,1) block=(256,1,1) lds=163840')
    tail = HEADER.split('s_endpgm\n')[1].replace('next_free_vgpr 256', 'next_free_vgpr 512')
    body = '\n'.join(('' if i.is_label else '    ') + i.text for i in ins)
    txt = head + KNAME + ':\n' + body + '\n' + tail
    txt += '\n'
    if g.diag: txt += '\n; STAMPS ' + ' '.join(g.stamp_names) + '\n'
    return txt

if __name__ == '__main__':
    import argparse
    ap = argparse.ArgumentParser()
    ap.add_argument('out'); ap.add_argument('--diag', action='store_true'); ap.add_argument('--hdiag')
    ap.add_argument('-o', action='append', default=[])
    a = ap.parse_args()
    opt = {}
    for kv in a.o:
        k, v = kv.split('=')
        try: opt[k] = float(v) if '.' in v else int(v)
        except ValueError: opt[k] = v
    open(a.out, 'w').write(emit(a.diag, a.hdiag.split(',') if a.hdiag else None, **opt))
```

```python
import sys, os
sys.path.insert(0, os.path.dirname(os.path.abspath(__file__)))
from asmlib import *

KNAME = 'adaLN_cond__sliding_local_dilated__dense_activation_relu__prompt_kernel'

WS_HELLO = 0x400
WS_MOD = 0x8000
WS_CL = 0x100000
CL_STRIDE = 0x50000
C_O, C_X1, C_H, C_ST, C_FL = 0, 0x10000, 0x20000, 0x4C000, 0x4D000
H_TILE = 45056
WS_DIAG = 0xE00000
WS_SIZE = 0x1000000
OOB = 0x40000000

SLOT = 12288
L_H = 73728
L_MISC = 155648
L_P0 = L_MISC + 4096
L_RED = 36864
L_W2 = 36864
X1T = [0, 16384, 102400, 118784]
WOA = [86016, 0, 16384, 114688]

S_X, S_WQ, S_WO, S_W1, S_W2, S_WM, S_OUT, S_WS, S_C, S_CODE = 4, 8, 12, 16, 20, 24, 28, 32, 36, 68
sKW = 3
sSPIN, sONES, sR0, sXO = 40, 41, 42, 43
sK = 44
sEP, sCB, sHS1, sHS0 = 46, 47, 48, 49
sXB, sD0, sD1, sMW, sD2, sU0 = 50, 51, 52, 53, 54, 55
sT4, sT5, sFS, sFP = 56, 57, 58, 59
sW, sCL, sJ, sTAG = 60, 61, 62, 63
sT0, sT1, sT2, sT3 = 64, 65, 66, 67
sN = 72
sA0, sA1, sBLK, sGW = 76, 77, 78, 79
STAMP0 = 80
NSTAMP = 11


def srd(b): return f's[{b}:{b+3}]'
def vr(a, n=1): return f'v{a}' if n == 1 else f'v[{a}:{a+n-1}]'
def ar(a, n=1): return f'a{a}' if n == 1 else f'a[{a}:{a+n-1}]'
def rr(r, n=1, off=0): return (vr if r[0] == 'v' else ar)(r[1]+off, n)
def WVM(tag): return Marker('wait_vm', tag)
def WLG(tag): return Marker('wait_lgkm', tag)
WVMA = lambda: Marker('wait_vm_all')
WLGA = lambda: Marker('wait_lgkm_all')
def MW(name, lo, n, priv=0): return ([(lo, lo+n)], 'W', priv, name)
def MR(name, lo, n, priv=0): return ([(lo, lo+n)], 'R', priv, name)
def cdiv(a, b): return -(-a // b)
def flat(l): return [x for y in l for x in y]

vL16, vTAG, vDP, vTS, vDQ, vDW1, vTP, vG, vC, vLANE = 255, 254, 250, 248, 246, 245, 244, 243, 242, 241
vHS, vHR, vXO, vSTO, vSTH, vT1, vFP, vPB, vDIAG = 239, 235, 234, 233, 232, 229, 228, 225, 224
vJUNK, vT128, vT1K = 227, 247, 205
MFMA = 'v_mfma_f32_16x16x32_bf16'


class Gen:
    def __init__(self, diag=False, hdiag=None, **opt):
        self.p = Prog(); self.p.strict_lds = True
        self.diag = diag; self.hdiag = hdiag
        self.nst = 0; self.flushed = 0; self.stamp_names = []
        self.o = dict(nA=7, nC=3, nP=5, two='w0', tw1='w0', tw2='pub1', r3w2='p2', npoll=24, c1=3, c2=3, c3=3, natt=7)
        self.o.update(opt)

    def stamp(self, name):
        hs = self.o.get('hs')
        if hs:
            o = []
            if name == 'rt0': o.append(f's_memrealtime s[{STAMP0+4}:{STAMP0+5}]')
            if name == 'start': o.append(f's_memtime s[{STAMP0}:{STAMP0+1}]')
            if name == hs.lstrip('R'): o.append(f'{"s_memrealtime" if hs[0] == "R" else "s_memtime"} s[{STAMP0+2}:{STAMP0+3}]')
            return o
        if not self.diag: return []
        if self.hdiag and name not in self.hdiag and name not in ('rt0', 'start', 'end', 'rt1'): return []
        k = self.nst; self.nst += 1
        assert k - self.flushed < NSTAMP, name
        if len(self.stamp_names) <= k: self.stamp_names.append(name)
        op = 's_memrealtime' if name.startswith('rt') else 's_memtime'
        k %= NSTAMP
        return [f'{op} s[{STAMP0+2*k}:{STAMP0+2*k+1}]']

    def flush(self):
        if not self.diag: return []
        o = ['s_waitcnt lgkmcnt(0)']
        for k in range(self.flushed, self.nst):
            o.append(f'v_writelane_b32 v{vDIAG}, s{STAMP0+2*(k%NSTAMP)}, {k}')
        self.flushed = self.nst
        return o

    def bar(self): return [WLGA(), 's_barrier']

    def touch(self, S, nlines, stride, idx, nidx, base=0, tag='T'):
        ni = cdiv(nlines, nidx*64); L = cdiv(nlines, nidx*ni)
        o = [f's_bfm_b64 exec, {L}, 0' if L < 64 else 's_mov_b64 exec, -1', f's_mul_i32 s{sT0}, s{idx}, {L*stride}']
        if base >= 4096: o.append(f's_add_u32 s{sT0}, s{sT0}, {base & ~4095}')
        for i in range(ni):
            o.append((f'buffer_load_dword v{vJUNK}, v{vT128 if stride == 128 else vT1K}, {srd(S)}, s{sT0} offen offset:{base & 4095}', tag))
            if i < ni-1: o.append(f's_add_u32 s{sT0}, s{sT0}, {nidx*L*stride}')
        return o

    def touches(self, pos):
        gi, gn, ki, kn = (sT2, 640, sT3, 80) if pos == 'w0' else (sGW, 1024, sKW, 128)
        o = []
        if pos == 'w0':
            nA = self.o['nA']
            if nA: o += self.touch(S_WQ, nA*768, 128, ki, kn)
            if nA < 16:
                o += self.touch(S_WQ, (16-nA)*768, 128, gi, gn, nA*98304)
                o += self.touch(S_WQ, (16-nA)*96, 1024, ki, kn, nA*98304+384)
        if self.o['two'] == pos: o += self.touch(S_WO, 4096, 128, gi, gn) + self.touch(S_WO, 512, 1024, ki, kn, 384)
        if self.o['tw1'] == pos: o += self.touch(S_W1, 11008, 128, gi, gn)
        if self.o['tw2'] == pos: o += self.touch(S_W2, 11008, 128, gi, gn)
        if self.o['r3w2'] == pos: o += self.touch(S_W2, 1376, 1024, ki, kn, 384)
        if o: o.append('s_mov_b64 exec, -1')
        return [o] if o else []

    def entry(self):
        p = self.p
        p('s_load_dwordx16 s[40:55], s[0:1], 0')
        p('s_load_dwordx2 s[56:57], s[0:1], 64')
        p('s_load_dwordx2 s[58:59], s[0:1], 80')
        p('s_cmp_ge_u32 s2, 256')
        p('s_cbranch_scc1 L_END')
        p.add(self.stamp('rt0'))
        p.add(self.stamp('start'))
        p(f'v_lshrrev_b32 v1, 6, v0')
        p(f'v_and_b32 v{vLANE}, 63, v0')
        p(f's_getpc_b64 s[{S_CODE}:{S_CODE+1}]')
        p('L_PC:')
        p(f'v_readfirstlane_b32 s{sW}, v1')
        p(f's_mov_b32 s{S_CODE+2}, L_END-L_PC')
        p(f's_mov_b32 s{S_CODE+3}, 0x00020000')
        p(f'v_lshlrev_b32 v{vT128}, 7, v{vLANE}')
        p(f's_lshr_b32 s{sT2}, s2, 3')
        p(f's_lshl2_add_u32 s{sKW}, s{sT2}, s{sW}')
        p(f's_lshl_b32 s{sT0}, s{sKW}, 8')
        p('s_mov_b64 exec, 3')
        p(f'buffer_load_dword v{vJUNK}, v{vT128}, {srd(S_CODE)}, s{sT0} offen')
        p('s_mov_b64 exec, -1')
        for b, sz in ((S_WM, 512*6144), (S_X, 2048*1024), (S_C, 1024), (S_WQ, 512*3072)):
            p(f's_mov_b32 s{b+2}, {sz}')
            p(f's_mov_b32 s{b+3}, 0x00020000')
        p(f'v_lshlrev_b32 v{vL16}, 4, v{vLANE}')
        p(f'v_lshlrev_b32 v{vT1K}, 10, v{vLANE}')
        p(f'v_lshrrev_b32 v2, 3, v{vLANE}')
        p(f'v_mul_u32_u24 v2, {6144-1024}, v2')
        p(f'v_add_u32 v2, v2, v{vT128}')
        p(f's_and_b32 s{sT0}, s2, 7')
        p(f's_mul_i32 s{sT3}, s{sT0}, 12')
        p(f's_add_u32 s{sBLK}, s{sT3}, s{sT2}')
        p(f's_lshl_b32 s{sT3}, s{sT3}, 6')
        p(f's_mul_i32 s{sT1}, s{sKW}, {4*6144}')
        p(f's_add_u32 s{sN}, s{sT1}, s{sT3}')
        p(f's_lshl_b32 s{sA1}, s{sT0}, 7')
        p(f's_add_u32 s{sA1}, s{sA1}, s{sKW}')
        p(f's_lshl_b32 s{sA1}, s{sA1}, 11')
        p(f's_lshr_b32 s{sT1}, s2, 6')
        p(f's_lshl2_add_u32 s{sCL}, s{sT0}, s{sT1}')
        p(f's_and_b32 s{sJ}, s{sT2}, 7')
        p(f's_lshl_b32 s{sN+1}, s{sCL}, 6')
        p(f's_lshl1_add_u32 s{sT0}, s{sJ}, s{sW}')
        p(f's_add_u32 s{sT0}, s{sT0}, s{sN+1}')
        p(f's_sub_i32 s{sT0}, s{sT0}, 16')
        p(f's_max_i32 s{sT0}, s{sT0}, 0')
        p(f's_lshl_b32 s{sT0}, s{sT0}, 10')
        p(f's_cmp_lt_u32 s{sW}, 2')
        p(f's_cselect_b32 s{sA0}, s{sT0}, {OOB}')
        p(f's_lshl2_add_u32 s{sGW}, s2, s{sW}')
        p(f'v_lshrrev_b32 v3, 2, v{vLANE}')
        p(f'v_and_b32 v4, 0x30, v{vL16}')
        p(f'v_mul_u32_u24 v3, {8*6144}, v3')
        p(f'v_add_u32 v3, v3, v4')
        p(f'v_lshlrev_b32 v1, 2, v{vLANE}')
        p(f's_mul_i32 s{sT0}, s{sW}, {128*6144}')
        p(f's_lshl_b32 s{sT1}, s{sBLK}, 6')
        p(f's_add_u32 s{sT0}, s{sT0}, s{sT1}')
        p(f's_lshl_b32 s{sT1}, s{sW}, 8')
        p(f's_sub_u32 s{sT2}, s{sGW}, 384')
        p(f's_sub_u32 s{sT3}, s{sKW}, 48')
        p('s_mov_b64 exec, 0x3f3f3f3f')
        p('s_cmp_ge_u32 s2, 96')
        p.add([WLGA()])
        p(f's_mov_b64 s[{S_WM}:{S_WM+1}], s[54:55]')
        p(f's_mov_b64 s[{S_X}:{S_X+1}], s[40:41]')
        if self.o.get('twm', 1): p(f'buffer_load_dword v{vJUNK}, v2, {srd(S_WM)}, s{sN} offen' + self.o.get('ntw', ' nt').replace('_', ' '))
        p('s_mov_b64 exec, -1')
        p.add(self.xown())
        p(f's_load_dword s{sEP}, s[58:59], 0')

    def srds(self, which):
        o = []
        for b, sz, k in ((S_WO, 512*1024, 44), (S_W1, 512*2752, 48), (S_W2, 1376*1024, 50), (S_OUT, 2048*1024, 56), (S_WS, WS_SIZE, 58)):
            if b in which: o += [f's_mov_b64 s[{b}:{b+1}], s[{k}:{k+1}]', f's_mov_b32 s{b+2}, {sz}', f's_mov_b32 s{b+3}, 0x00020000']
        return o

    def xown(self):
        nt = self.o.get('ntx', ' nt').replace('_', ' ')
        return [(f'buffer_load_dwordx4 v[4:7], v{vL16}, {srd(S_X)}, s{sA1} offen{nt}', 'x'),
                (f'buffer_load_dwordx4 v[8:11], v{vL16}, {srd(S_X)}, s{sA1} offen offset:1024{nt}', 'x'),
                (f'buffer_load_dwordx4 v[12:15], v{vL16}, {srd(S_X)}, s{sA0} offen{nt}', 'x')]

    def mktag(self):
        return [f's_mul_i32 s{sTAG}, s{sEP}, 1664525', f's_add_u32 s{sTAG}, s{sTAG}, 1013904223']

    def p0(self):
        p = self.p
        A, F = 192, 200
        p(f's_mov_b64 s[{S_C}:{S_C+1}], s[52:53]')
        p(f'buffer_load_dword v206, v1, {srd(S_C)}, s{sT1} offen')
        for i in range(8):
            p(f'buffer_load_dwordx4 {vr(160+4*i,4)}, v3, {srd(S_WM)}, s{sT0} offen' + self.o.get('ntp', ' nt').replace('_', ' '))
            if i < 7: p(f's_add_u32 s{sT0}, s{sT0}, 6144')
            if i == 3:
                p.add([f'v_mov_b32 v{A+a}, 0' for a in range(8)])
                p.add(self.srds((S_WO, S_W1, S_W2, S_OUT, S_WS)) + [f's_mov_b64 s[{S_WQ}:{S_WQ+1}], s[42:43]'])
                p.add([f'v_and_b32 v207, 3, v{vLANE}', f'v_lshlrev_b32 v207, 5, v207', f'v_lshrrev_b32 v204, 4, v{vLANE}',
                       f'v_lshl_add_u32 v207, v204, 3, v207',
                       f's_lshl_b32 s{sT1}, s{sW}, 7', f's_add_u32 s{sT1}, s{sT1}, {L_P0}', f'v_add_u32 v207, s{sT1}, v207',
                       f'v_add_u32 v212, {L_P0}, v{vL16}',
                       f'v_and_b32 v204, 1, v{vLANE}', f'v_lshlrev_b32 v204, 10, v204', f'v_lshrrev_b32 v213, 1, v{vLANE}',
                       f'v_lshl_add_u32 v204, v213, 4, v204',
                       f's_lshr_b32 s{sT1}, s{sBLK}, 4', f's_cmp_eq_u32 s{sT1}, 1', f's_cselect_b32 s{sT2}, 1.0, 0',
                       f's_cmp_eq_u32 s{sT1}, 4', f's_cselect_b32 s{sT2}, 1.0, s{sT2}', f's_mov_b32 s{sT3}, s{sT2}',
                       f's_lshl_b32 s{sT1}, s{sT1}, 11', f's_and_b32 s{sBLK}, s{sBLK}, 15', f's_lshl_b32 s{sBLK}, s{sBLK}, 6',
                       f's_add_u32 s{sT1}, s{sT1}, s{sBLK}', f's_add_u32 s{sT1}, s{sT1}, {WS_MOD}'])
        p.add(self.stamp('iss'))
        p(f'v_lshlrev_b32 v{F}, 16, v206')
        p(f'v_and_b32 v{F+1}, 0xffff0000, v206')
        p(f'v_mul_f32 v{F+2}, 0xbfb8aa3b, v{F}')
        p(f'v_mul_f32 v{F+3}, 0xbfb8aa3b, v{F+1}')
        p(f'v_exp_f32 v{F+2}, v{F+2}')
        p(f'v_exp_f32 v{F+3}, v{F+3}')
        p(f'v_add_f32 v{F+2}, 1.0, v{F+2}')
        p(f'v_add_f32 v{F+3}, 1.0, v{F+3}')
        p(f'v_rcp_f32 v{F+2}, v{F+2}')
        p(f'v_rcp_f32 v{F+3}, v{F+3}')
        p(f'v_mul_f32 v{F}, v{F}, v{F+2}')
        p(f'v_mul_f32 v{F+1}, v{F+1}, v{F+3}')
        p(f'v_cvt_pk_bf16_f32 v206, v{F}, v{F+1}')
        p(f'v_and_b32 v{F}, 0xffff, v206')
        p(f'v_lshlrev_b32 v{F+1}, 16, v206')
        p(f'v_lshrrev_b32 v{F+2}, 16, v206')
        p(f'v_and_b32 v{F+3}, 0xffff0000, v206')
        if self.o.get('hs'): p.add(self.stamp('p0c'))
        dd = []
        for i in range(8):
            q = i >> 1
            for d in range(4):
                for hh in range(2):
                    dd.append(f'v_dot2c_f32_bf16_dpp v{A+2*d+hh}, v{F+2*(i&1)+hh}, v{160+4*i+d} quad_perm:[{q},{q},{q},{q}] row_mask:0xf bank_mask:0xf')
        p.add(dd[:8])
        if self.o.get('hs'): p.add(self.stamp('p0w0'))
        p.add(dd[8:])
        if self.o.get('hs'): p.add(self.stamp('p0w'))
        for m in range(4): p(f'v_permlane32_swap_b32 v{A+m}, v{A+4+m}')
        for m in range(2): p(f'v_pk_add_f32 {vr(A+2*m,2)}, {vr(A+2*m,2)}, {vr(A+4+2*m,2)}')
        for m in range(2): p(f'v_permlane16_swap_b32 v{A+m}, v{A+2+m}')
        p(f'v_pk_add_f32 {vr(A,2)}, {vr(A,2)}, {vr(A+2,2)}')
        for sh in (8, 4):
            for m in range(2): p(f'v_add_f32_dpp v{A+m}, v{A+m}, v{A+m} row_ror:{sh} row_mask:0xf bank_mask:0xf')
        p(f'ds_write_b64 v207, {vr(A,2)}', None, MW('p0', L_P0, 512))
        p.add(self.mktag() + [f'v_mov_b32 v210, s{sTAG}', f'v_mov_b32 v211, s{sTAG}', f's_cmp_lg_u32 s{sW}, 0'])
        p.add(self.bar())
        p('s_cbranch_scc1 L_P0X')
        p.cond_begin()
        p('s_mov_b64 exec, 0xff')
        for k in range(4): p(f'ds_read_b128 {vr(160+4*k,4)}, v212 offset:{128*k}', None, MR('p0', L_P0, 512))
        p('v_pk_add_f32 v[160:161], v[160:161], v[164:165]')
        p('v_pk_add_f32 v[162:163], v[162:163], v[166:167]')
        p('v_pk_add_f32 v[168:169], v[168:169], v[172:173]')
        p('v_pk_add_f32 v[170:171], v[170:171], v[174:175]')
        p('v_pk_add_f32 v[160:161], v[160:161], v[168:169]')
        p('v_pk_add_f32 v[162:163], v[162:163], v[170:171]')
        p('v_cvt_pk_bf16_f32 v160, v160, v161')
        p('v_cvt_pk_bf16_f32 v162, v162, v163')
        p('v_and_b32 v161, 0xffff0000, v160')
        p('v_lshlrev_b32 v160, 16, v160')
        p('v_and_b32 v163, 0xffff0000, v162')
        p('v_lshlrev_b32 v162, 16, v162')
        p(f'v_pk_add_f32 v[160:161], v[160:161], s[{sT2}:{sT3}]')
        p(f'v_pk_add_f32 v[162:163], v[162:163], s[{sT2}:{sT3}]')
        p('v_cvt_pk_bf16_f32 v208, v160, v161')
        p('v_cvt_pk_bf16_f32 v209, v162, v163')
        p(f'buffer_store_dwordx4 v[208:211], v204, {srd(S_WS)}, s{sT1} offen sc1')
        p('s_mov_b64 exec, -1')
        p.cond_end()
        p('L_P0X:')

    MK = 80
    def precompute(self):
        o = []
        t = 104
        o += [f's_mov_b32 s{sR0}, s{sN+1}', f's_mul_i32 s{sCB}, s{sCL}, {CL_STRIDE}', f's_add_u32 s{sCB}, s{sCB}, {WS_CL}',
              f's_add_u32 s{sFP}, s{sCB}, {C_FL}', f's_sub_u32 s{sT0}, s{sCB}, 128',
              's_mov_b64 exec, 0xff', f'buffer_load_dword v{vJUNK}, v{vT128}, {srd(S_WS)}, s{sFP} offen sc1',
              's_mov_b64 exec, 1', f'buffer_load_dword v{vJUNK}, v{vT128}, {srd(S_WS)}, s{sT0} offen sc1',
              f'buffer_load_dword v{vJUNK}, v{vT128}, {srd(S_OUT)}, s{sA1} offen', 's_mov_b64 exec, -1',
              f's_and_b32 s{sT0}, s{sKW}, 31', f's_lshl2_add_u32 s{sFS}, s{sT0}, s{sFP}',
              f'v_and_b32 v{vFP}, 31, v{vLANE}', f'v_lshlrev_b32 v{vFP}, 2, v{vFP}',
              f'v_lshrrev_b32 v{vG}, 4, v{vLANE}', f'v_and_b32 v{vC}, 15, v{vLANE}']
        o += [f'v_lshrrev_b32 v{t}, 3, v{vLANE}', f'v_mul_u32_u24 v{t+6}, 10240, v{t}',
              f'v_lshrrev_b32 v{t+1}, 1, v{t}', f'v_lshlrev_b32 v{t+1}, 5, v{t+1}',
              f'v_and_b32 v{t+5}, 0x70, v{vL16}', f'v_xor_b32 v{t+1}, v{t+1}, v{t+5}',
              f'v_and_b32 v{t+2}, 4, v{t}', f'v_add_u32 v{t}, v{t}, v{t+2}',
              f'v_mul_u32_u24 v{t+2}, 3072, v{t}', f'v_add_u32 v{vDQ}, v{t+2}, v{t+1}',
              f'v_lshl_add_u32 v{vDP}, v{t}, 10, v{t+1}', f'v_add_u32 v{vDP+1}, {15*1024}, v{vDP}',
              f'v_add_u32 v{vDP+2}, {2*1024}, v{vDP}', f'v_add_u32 v{vDP+3}, {17*1024}, v{vDP}',
              f'v_mul_u32_u24 v{t+2}, 2752, v{t}', f'v_add_u32 v{vDW1}, v{t+2}, v{t+1}']
        o += [f's_and_b32 s{sT0}, s{sKW}, 15', f's_lshl_b32 s{sT1}, s{sT0}, 3', f's_and_b32 s{sT1}, s{sT1}, 0x70',
              f'v_xor_b32 v{vHS}, s{sT1}, v{t+5}', f'v_add_u32 v{vHS}, v{vHS}, v{t+6}',
              f's_lshl_b32 s{sT0}, s{sT0}, 7', f's_lshr_b32 s{sT1}, s{sJ}, 2', f's_lshl_b32 s{sT1}, s{sT1}, 12',
              f's_add_u32 s{sT0}, s{sT0}, s{sT1}', f's_add_u32 s{sT2}, s{sCB}, {C_H}', f's_add_u32 s{sHS0}, s{sT0}, s{sT2}',
              f's_xor_b32 s{sT0}, s{sW}, 1', f's_lshl3_add_u32 s{sT0}, s{sT0}, s{sJ}',
              f's_lshl_b32 s{sT1}, s{sT0}, 3', f's_and_b32 s{sT1}, s{sT1}, 0x70',
              f'v_xor_b32 v{vHS+1}, s{sT1}, v{t+5}', f'v_add_u32 v{vHS+1}, v{vHS+1}, v{t+6}',
              f's_lshl_b32 s{sT0}, s{sT0}, 7', f's_add_u32 s{sT0}, s{sT0}, s{sT2}',
              f's_cmp_lt_u32 s{sW}, 2', f's_cselect_b32 s{sHS1}, s{sT0}, {OOB}']
        o += [f's_and_b32 s{sT0}, s{sW}, 1', f's_lshl_b32 s{sT0}, s{sT0}, 4', f's_lshr_b32 s{sT1}, s{sW}, 1',
              f's_lshl2_add_u32 s{sT3}, s{sT1}, s{sT0}',
              f's_mul_i32 s{sD0}, s{sT3}, 3072', f's_lshl_b32 s{sT0}, s{sJ}, 7', f's_add_u32 s{sD0}, s{sD0}, s{sT0}',
              f's_mul_i32 s{sD1}, s{sW}, 3072',
              f's_min_u32 s{sT0}, s{sJ}, 3', f's_mul_i32 s{sU0}, s{sJ}, 5', f's_add_u32 s{sU0}, s{sU0}, s{sT0}',
              f's_mul_i32 s{sD2}, s{sT3}, 2752', f's_lshl_b32 s{sT0}, s{sU0}, 6', f's_add_u32 s{sD2}, s{sD2}, s{sT0}',
              f's_mov_b32 s{sONES}, 0x3f803f80', f's_mov_b32 s{sK}, 0x3eb8aa3b', f's_mov_b32 s{sK+1}, 0x3eb8aa3b']
        o += [f'v_lshrrev_b32 v{t}, 2, v{vLANE}', f'v_and_b32 v{t}, 7, v{t}',
              f'v_lshrrev_b32 v{t+1}, 1, v{t}', f'v_lshlrev_b32 v{t+1}, 5, v{t+1}',
              f'v_and_b32 v{t+2}, 3, v{vLANE}', f'v_lshlrev_b32 v{t+2}, 3, v{t+2}',
              f'v_lshl_add_u32 v{t+2}, v{t}, 7, v{t+2}',
              f'v_lshrrev_b32 v{t+3}, 5, v{vLANE}',
              f'v_and_b32 v{t+4}, 0x30, v{vL16}', f'v_xor_b32 v{t+4}, v{t+4}, v{t+1}',
              f'v_lshl_add_u32 v{t+4}, v{t}, 7, v{t+4}', f'v_lshl_add_u32 v{vTP}, v{t+3}, 10, v{t+4}',
              f'v_mul_u32_u24 v{t+3}, 3072, v{t+3}', f'v_add_u32 v{t+2}, v{t+2}, v{t+3}',
              f's_lshl_b32 s{sT0}, s{sW}, 5', f'v_xor_b32 v{t+3}, s{sT0}, v{t+1}',
              f'v_add_u32 v{vTS}, v{t+2}, v{t+3}', f'v_add_u32 v{vTS+1}, {4*SLOT}, v{vTS}']
        for m in range(3):
            o += [f's_mul_i32 s{sT0}, s{sW}, 3', f's_add_u32 s{sT0}, s{sT0}, {m}', f's_and_b32 s{sT1}, s{sT0}, 3',
                  f's_lshl_b32 s{sT1}, s{sT1}, 5', f's_lshr_b32 s{sT0}, s{sT0}, 2', f's_lshl_b32 s{sT0}, s{sT0}, 10',
                  f'v_xor_b32 v{vT1+m}, s{sT1}, v{t+1}', f'v_add3_u32 v{vT1+m}, v{vT1+m}, v{t+2}, s{sT0}']
        o += [f's_lshl_b32 s{sMW}, s{sW}, 12', f'v_add_u32 v{vPB}, s{sMW}, v{vTP}', f'v_xor_b32 v{vPB+1}, 64, v{vPB}']
        o += [f'v_lshrrev_b32 v{t}, 1, v{vC}', f'v_xor_b32 v{t}, v{t}, v{vG}', f'v_lshlrev_b32 v{t}, 4, v{t}',
              f'v_lshl_add_u32 v{t}, v{vC}, 7, v{t}',
              f'v_add_u32 v{vHR}, {L_H}, v{t}', f'v_xor_b32 v{vHR+1}, 64, v{vHR}',
              f'v_add_u32 v{vHR+2}, 40960, v{vHR}', f'v_add_u32 v{vHR+3}, 40960, v{vHR+1}']
        o += [f's_lshl_b32 s{sT0}, s{sW}, 10', f's_add_u32 s{sXB}, s{sT0}, {WS_MOD+4096}']
        o += [f'v_lshlrev_b32 v{vXO}, 11, v{vC}', f'v_lshl_add_u32 v{vXO}, v{vG}, 4, v{vXO}',
              f's_lshr_b32 s{sT0}, s{sW}, 1', f's_lshl_b32 s{sT0}, s{sT0}, 5', f's_and_b32 s{sT1}, s{sW}, 1',
              f's_add_u32 s{sT0}, s{sT0}, s{sT1}', f's_add_u32 s{sT0}, s{sT0}, s{sR0}', f's_lshl_b32 s{sT0}, s{sT0}, 10',
              f's_lshl_b32 s{sT1}, s{sJ}, 7', f's_add_u32 s{sXO}, s{sT0}, s{sT1}',
              f'v_lshrrev_b32 v{t}, 1, v{vG}', f'v_lshlrev_b32 v{t}, 8, v{t}', f'v_lshl_add_u32 v{t}, v{vC}, 4, v{t}',
              f'v_and_b32 v{t+1}, 1, v{vG}', f'v_lshl_add_u32 v{vSTO}, v{t+1}, 14, v{t}',
              f'v_mul_u32_u24 v{t+1}, {H_TILE}, v{t+1}', f'v_add_u32 v{vSTH}, v{t+1}, v{t}']
        return o

    def masks(self):
        t = 104; MK = self.MK
        o = [f'v_lshlrev_b32 v{t}, 2, v{vG}', f'v_sub_u32 v{t}, v{t}, v{vC}', f'v_mov_b32 v{t+1}, 0xf149f2ca',
             [f's_cmp_eq_u32 s{sCL}, 0', f's_cselect_b32 s{sT2}, 100, 9', f's_cselect_b32 s{sT3}, 100, 1'],
             f'v_and_b32 v{t+2}, 2, v{vG}', f'v_lshlrev_b32 v{t+2}, 6, v{t+2}', f'v_sub_u32 v{t+2}, v{t}, v{t+2}']
        for r in range(4):
            o += [f'v_add_u32 v{t+3}, {r+7}, v{t}', f'v_add_u32 v{t+4}, {r}, v{t}', f'v_add_u32 v{t+5}, {r}, v{t+2}',
                  f'v_cmp_gt_u32 vcc, 8, v{t+3}', f'v_cmp_le_i32 s[{sN}:{sN+1}], 9, v{t+4}',
                  f'v_cmp_le_i32 s[{sN+2}:{sN+3}], s{sT2}, v{t+4}', f'v_cmp_le_i32 s[{sA0}:{sA1}], s{sT3}, v{t+5}',
                  f'v_cndmask_b32 v{MK+r}, v{t+1}, 0, vcc', f'v_cndmask_b32 v{t+8+r}, 0, -1, vcc',
                  f'v_cndmask_b32 v{MK+4+r}, v{t+1}, 0, s[{sN}:{sN+1}]', f'v_cndmask_b32 v{MK+8+r}, v{t+1}, 0, s[{sN+2}:{sN+3}]',
                  f'v_cndmask_b32 v{MK+12+r}, v{t+1}, 0, s[{sA0}:{sA1}]']
        o += [f'v_mov_b32 v{t+3}, 0xffff', f'v_bfi_b32 v{MK+16}, v{t+3}, v{t+8}, v{t+9}', f'v_bfi_b32 v{MK+17}, v{t+3}, v{t+10}, v{t+11}',
              f'v_mov_b32 v100, s{sONES}', f'v_mov_b32 v101, s{sONES}']
        return o

    def hello(self):
        p = self.p
        p.add(self.mktag())
        p(f'v_mov_b32 v{vTAG}, s{sTAG}')
        p(f's_cmp_lg_u32 s{sW}, 3')
        p('s_cbranch_scc1 L_HEL')
        p.cond_begin()
        p(f's_lshl_b32 s{sT0}, s2, 2')
        p('s_mov_b64 exec, 1')
        p(f'buffer_store_dword v{vTAG}, v{vL16}, {srd(S_WS)}, s{sT0} offen offset:{WS_HELLO} sc1')
        p('s_mov_b64 exec, -1')
        p.cond_end()
        p('L_HEL:')

    def ln(self):
        S = 40
        o = [f'v_mov_b32 v{S+k}, 0' for k in range(8)]
        for m in range(4):
            for r in range(3):
                o += [f'v_dot2c_f32_bf16 v{S+r}, s{sONES}, v{4+4*r+m}', f'v_dot2c_f32_bf16 v{S+4+r}, v{4+4*r+m}, v{4+4*r+m}']
        up = []
        for r in range(3):
            for m in range(4):
                up += [f'v_lshlrev_b32 v{16+8*r+2*m}, 16, v{4+4*r+m}', f'v_and_b32 v{17+8*r+2*m}, 0xffff0000, v{4+4*r+m}']
        red = [f'v_permlane32_swap_b32 v{S+2*k}, v{S+2*k+1}' for k in range(4)]
        red += [f'v_add_f32 v{S+2*k}, v{S+2*k}, v{S+2*k+1}' for k in range(4)]
        red += [f'v_permlane16_swap_b32 v{S+4*k}, v{S+4*k+2}' for k in range(2)]
        red += [f'v_add_f32 v{S+4*k}, v{S+4*k}, v{S+4*k+2}' for k in range(2)]
        for sh in (8, 4, 2, 1):
            red += [f'v_add_f32_dpp v{S+4*k}, v{S+4*k}, v{S+4*k} row_ror:{sh} row_mask:0xf bank_mask:0xf' for k in range(2)]
        a, b = S, S+4
        red += [f'v_mul_f32 v{a}, 0x3b000000, v{a}', f'v_mul_f32 v{b}, 0x3b000000, v{b}', f'v_fma_f32 v{b}, -v{a}, v{a}, v{b}',
                f'v_max_f32 v{b}, 0, v{b}', f'v_add_f32 v{b}, 0x3727c5ac, v{b}', f'v_rsq_f32 v{b}, v{b}', f'v_mul_f32_e64 v{a}, -v{a}, v{b}']
        o += up[:4] + interleave(red, up[4:], every=1, per=1, start=6)
        for r, lane in enumerate((0, 32, 16)):
            o += [f'v_readlane_b32 s{sN+2*r}, v{a}, {lane}', f'v_readlane_b32 s{sN+2*r+1}, v{b}, {lane}']
        for r in range(3):
            for m in range(4):
                d = 16+8*r+2*m
                o.append(f'v_pk_fma_f32 {vr(d,2)}, {vr(d,2)}, s[{sN+2*r}:{sN+2*r+1}], s[{sN+2*r}:{sN+2*r+1}] op_sel:[0,1,0] op_sel_hi:[1,1,0]')
        return o

    WQA = [L_H, L_H+SLOT, L_H+2*SLOT] + [k*SLOT for k in range(6)] + [k*SLOT for k in range(6)] + [L_H]
    def dma_wq(self, k):
        a = self.WQA[k]
        o = [f's_add_u32 m0, s{sD1}, {a}']
        for sec in range(3):
            o.append((f'buffer_load_dwordx4 v{vDQ}, {srd(S_WQ)}, s{sD0} offen offset:{1024*sec} lds', f'wq{k}', MW(f'wq{k}', a, SLOT)))
        if k < 15: o.append(f's_add_u32 s{sD0}, s{sD0}, {32*3072}')
        return [o[0:2], o[2], o[3:]]

    def absorb_wq(self, k):
        a = self.WQA[k]; b = 1 if a > 4*SLOT else 0
        return [(f'ds_read_b64_tr_b16 {ar(k*12+sec*4+2*h,2)}, v{vTS+b} offset:{a-b*4*SLOT+h*6144+sec*1024}', f'awq{k}', MR(f'wq{k}', a, SLOT))
                for sec in range(3) for h in range(2)]

    def tagged_loads(self, lst):
        return [f'buffer_load_dwordx4 {vr(d,4)}, v{vL16}, {srd(S_WS)}, s{so} offen offset:{io} sc1' for d, so, io in lst]

    def tagged_check(self, lst):
        p = self.p
        L = p.label('L_PT'); D = p.label('L_PD')
        def chk():
            ds = [d+2 for d, _, _ in lst]
            if len(ds) == 4:
                for d in ds: p(f'v_xor_b32 v{d+1}, s{sTAG}, v{d}')
                p(f'v_or3_b32 v{ds[0]+1}, v{ds[0]+1}, v{ds[1]+1}, v{ds[2]+1}')
                p(f'v_or_b32 v{ds[0]+1}, v{ds[0]+1}, v{ds[3]+1}')
                p(f'v_cmp_ne_u32 vcc, 0, v{ds[0]+1}')
            else:
                p(f'v_cmp_ne_u32 vcc, s{sTAG}, v{ds[0]}')
                for d in ds[1:]:
                    p(f'v_cmp_ne_u32 s[{sT4}:{sT5}], s{sTAG}, v{d}')
                    p(f's_or_b64 vcc, vcc, s[{sT4}:{sT5}]')
            p(f's_cbranch_vccz {D}')
        chk()
        p.cond_begin()
        p(f's_mov_b32 s{sSPIN}, 20000')
        p(f'{L}:')
        p.add(self.tagged_loads(lst))
        p('s_waitcnt vmcnt(0)')
        chk()
        p(f's_sub_u32 s{sSPIN}, s{sSPIN}, 1')
        p(f's_cbranch_scc0 {L}')
        p.cond_end()
        p(f'{D}:')

    def publish(self, ph, tag):
        return [WVM(tag), 's_mov_b64 exec, 1',
                f'buffer_store_dword v{vTAG}, v{vL16}, {srd(S_WS)}, s{sFS} offen offset:{ph*128}',
                f'buffer_store_dword v{vTAG}, v{vL16}, {srd(S_WS)}, s{sFS} offen offset:{512+ph*128} sc1',
                's_mov_b64 exec, -1']

    def poll_issue(self, ph, r, b=0):
        return [f'buffer_load_dword v{r}, v{vFP}, {srd(S_WS)}, s{sFP} offen offset:{512*b+ph*128} sc1']

    def poll_check(self, ph, r):
        p = self.p
        D = p.label('L_WD')
        p(f'v_cmp_ne_u32 vcc, s{sTAG}, v{r}')
        p(f's_cbranch_vccz {D}')
        p.cond_begin()
        for b, n in ((0, self.o['npoll']), (1, 20000)):
            L = p.label('L_WF')
            p(f's_mov_b32 s{sSPIN}, {n}')
            p(f'{L}:')
            p.add(self.poll_issue(ph, r, b))
            p('s_waitcnt vmcnt(0)')
            p(f'v_cmp_ne_u32 vcc, s{sTAG}, v{r}')
            p(f's_cbranch_vccz {D}')
            p(f's_sub_u32 s{sSPIN}, s{sSPIN}, 1')
            p(f's_cbranch_scc0 {L}')
        p.cond_end()
        p(f'{D}:')

    def dma_priv(self, S, soff_reg, a, tag):
        out = [f's_add_u32 m0, s{sMW}, {a}']
        for b in range(4):
            out.append((f'buffer_load_dwordx4 v{vDP+b}, {srd(S)}, s{soff_reg} offen offset:{1024*b} lds', tag, MW(tag, a, 16384, a+1)))
        out.append(f's_add_u32 s{soff_reg}, s{soff_reg}, 32768')
        return [out[0:2], out[2], out[3], out[4:]]

    def absorb_priv(self, a, breg, bval, dst, tag):
        return [(f'ds_read_b64_tr_b16 {rr(dst,2,4*ct+2*h)}, v{breg+(ct>>1)} offset:{a-bval+h*2048+8*(ct&1)}', 'a'+tag, MR(tag, a, 16384, a+1))
                for ct in range(4) for h in range(2)]

    W1A = [36864, 49152, 61440, 73728, 102400, 131072, 143360, 0, 12288, 24576, 86016, 114688, 102400, 131072, 143360, 0]
    def dma_w1(self, k):
        o = []
        for sec in range(3):
            o.append([f's_add_u32 m0, s{sD1}, {self.W1A[k] + sec*896}',
                      (f'buffer_load_dwordx4 v{vDW1}, {srd(S_W1)}, s{sD2} offen offset:{128*sec} lds', f'w1_{k}', MW(f'w1_{k}', self.W1A[k], SLOT))])
        if k < 15: o[-1].append(f's_add_u32 s{sD2}, s{sD2}, {32*2752}')
        return o
    def absorb_w1(self, ks, tmp):
        o = []; cur = None
        for k in ks:
            a = self.W1A[k]
            if a + 6144 <= 65535: base, br = 0, vT1
            else:
                if cur is None or not (0 <= a - cur and a - cur + 6144 <= 65535):
                    cur = 86016 if a >= 86016 else a
                    o += [f'v_add_u32 v{tmp+m}, {cur}, v{vT1+m}' for m in range(3)]
                base, br = cur, tmp
            o += [(f'ds_read_b64_tr_b16 {ar(k*12+m*4+2*h,2)}, v{br+m} offset:{a-base+h*6144}', f'aw1_{k}', MR(f'w1_{k}', a, SLOT))
                  for m in range(3) for h in range(2)]
        return o

    def dma_h(self, g):
        a = L_H + 20480*g
        ld = lambda i: (f'buffer_load_dwordx4 v{vL16}, {srd(S_WS)}, s{sT3} offen offset:{1024*i} sc1 lds', f'h{g}', MW(f'h{g}', a, 20480))
        o = [[f's_add_u32 m0, s{sT2}, {a}', ld(0)], ld(1), ld(2), ld(3),
             [f's_add_u32 m0, s{sT2}, {a+4096}', f's_add_u32 s{sT3}, s{sT3}, 4096', ld(0)]]
        if g < 3: o[-1].append(f's_add_u32 s{sT3}, s{sT3}, 16384')
        return o

    ACCQ = [0, 4, 8, 12]; ACCK = [16, 20, 24, 28, 32]; ACCV = [36, 160, 164, 168, 172]
    def p1_gemm(self, pre):
        p = self.p
        fr = lambda T, s: 40+20*(s & 1)+4*T
        def rd(T, s):
            return (f'ds_read_b128 {vr(fr(T,s),4)}, v{vHR+(s&1)+2*(s>>3)} offset:{((s>>1)&3)*10240+T*2048}', f'fr{s}',
                    MR(f'h{s>>2}', L_H+20480*(s >> 2), 20480))
        p.add([rd(T, 0) for T in range(5)])
        steps = []
        for s in range(16):
            ms = []
            for T in range(5):
                h = vr(fr(T, s), 4)
                C = lambda a: '0' if s == 0 else vr(a, 4)
                ms.append(f'{MFMA} {vr(self.ACCK[T],4)}, {ar(s*12+4,4)}, {h}, {C(self.ACCK[T])}')
                ms.append(f'{MFMA} {vr(self.ACCV[T],4)}, {h}, {ar(s*12+8,4)}, {C(self.ACCV[T])}')
                if T > 0: ms.append(f'{MFMA} {vr(self.ACCQ[T-1],4)}, {ar(s*12,4)}, {h}, {C(self.ACCQ[T-1])}')
            steps.append(ms)
        head = [[] for _ in range(16)]; tail = [[] for _ in range(16)]
        vq = [(0, x) for x in pre]
        for k in (9, 10, 11): vq += [(0, x) for x in self.dma_wq(k)]
        for k in (12, 13, 14): vq += [(3, x) for x in self.dma_wq(k)]
        vq += [(7, x) for x in self.dma_wq(15)]
        wo = [f's_lshl_b32 s{sD0}, s{sW}, 17', f's_lshl_b32 s{sT0}, s{sJ}, 7', f's_add_u32 s{sD0}, s{sD0}, s{sT0}']
        for i, e in enumerate((7, 9, 9, 11)):
            d = self.dma_priv(S_WO, sD0, WOA[i], f'wo{i}')
            if i == 0: d[0] = wo + d[0]
            vq += [(e, x) for x in d]
        late = [[f's_add_u32 s{sA0}, s{sXB}, 4096'] + self.tagged_loads([(208, sXB, 0)])] + self.tagged_loads([(212, sA0, 0)])
        late += [f'buffer_load_dwordx4 {vr(216+4*pp,4)}, v{vXO}, {srd(S_X)}, s{sXO} offen offset:{64*pp}' for pp in range(2)]
        late += [[f's_cmp_eq_u32 s{sGW}, 1', f's_cselect_b32 s{sT0}, 0, {OOB}',
                  f'buffer_load_dwordx4 v[176:179], v{vL16}, {srd(S_WS)}, s{sT0} offen offset:{WS_HELLO} sc1']]
        vq += [(11, x) for x in late]
        rate = self.o.get('rate', 4)
        pos = {}
        qi = 0
        for s in range(16):
            n = 0
            while qi < len(vq) and vq[qi][0] <= s and (n < rate or s == 15):
                tail[s].append(vq[qi][1]); qi += 1; n += 1
            tail[s] += self.touches(f'g{s}')
        for k in (6, 7, 8): tail[k-6] += self.absorb_wq(k)
        head[3] += [[WVM('h1'), WLGA(), 's_barrier']]
        head[7] += [[WVM('h2'), WVM('wq11'), WLGA(), 's_barrier']]
        tail[7] += self.absorb_wq(9) + self.absorb_wq(10)[:3]
        tail[8] += self.absorb_wq(10)[3:] + self.absorb_wq(11)
        head[9] += [[WVM('wq14'), WLGA(), 's_barrier']]
        tail[9] += self.absorb_wq(12); tail[10] += self.absorb_wq(13)
        head[11] += [[WVM('h3'), WVM('wq15'), WLGA(), 's_barrier']]
        tail[11] += self.absorb_wq(14); tail[12] += self.absorb_wq(15)
        tail[15] += [f's_lshl_b32 s{sT0}, s{sJ}, 11', f's_lshl_b32 s{sT1}, s{sW}, 9', f's_add_u32 s{sT0}, s{sT0}, s{sT1}',
                     f's_add_u32 s{sT2}, s{sT0}, s{sCB}', f's_add_u32 s{sT3}, s{sT2}, 32768']
        for s in range(16):
            f = head[s] + ([rd(T, s+1) for T in range(5)] if s < 15 else []) + tail[s]
            if s: p.add([WLG(f'fr{s}')])
            p.add(spread(steps[s], f, 0, 14))

    def attention(self):
        QB, KB, VB = 104, 112, 122
        MK = self.MK
        vpos = {4: 0, 2: 2, 0: 4, 1: 6, 3: 8}
        SP, SC = 40, 56
        prevT = [0, 0, 1, 2]; biasP = [MK+8, MK+12, MK+4, MK+4]
        def cv(d, a): return [f'v_cvt_pk_bf16_f32 v{d}, v{a}, v{a+1}', f'v_cvt_pk_bf16_f32 v{d+1}, v{a+2}, v{a+3}']
        o = []
        o += cv(KB, self.ACCK[0])
        for t in range(4):
            o += cv(KB+2*(t+1), self.ACCK[t+1]) + cv(QB+2*t, self.ACCQ[t])
        vc = []
        for T in range(5): vc += cv(VB+vpos[T], self.ACCV[T])
        ms = []
        for t in range(4):
            ms.append(f'v_mfma_f32_16x16x16_bf16 {vr(SP+4*t,4)}, {vr(KB+2*prevT[t],2)}, {vr(QB+2*t,2)}, {vr(biasP[t],4)}')
            ms.append(f'v_mfma_f32_16x16x16_bf16 {vr(SC+4*t,4)}, {vr(KB+2*(t+1),2)}, {vr(QB+2*t,2)}, {vr(MK,4)}')
        o += interleave(ms, vc, every=1, per=2)
        M = 72
        for t in range(4):
            o += [f'v_max_f32 v{SP+4*t+r}, v{SP+4*t+r}, v{SC+4*t+r}' for r in range(4)]
            o += [f'v_max3_f32 v{M+t}, v{SP+4*t}, v{SP+4*t+1}, v{SP+4*t+2}', f'v_max_f32 v{M+t}, v{M+t}, v{SP+4*t+3}']
            if t == 1: hold = [f'v_permlane32_swap_b32 v{M}, v{M+1}', f'v_max_f32 v{M}, v{M}, v{M+1}']
            if t == 2: o += hold
        o += [f'v_permlane32_swap_b32 v{M+2}, v{M+3}', f'v_max_f32 v{M+2}, v{M+2}, v{M+3}',
              f'v_permlane16_swap_b32 v{M}, v{M+2}', f'v_max_f32 v{M}, v{M}, v{M+2}',
              f'v_mul_f32 v{M+4}, 0xbeb8aa3b, v{M}', f'v_mul_f32 v{M}, 0xbeb8aa3b, v{M}',
              f'v_permlane16_swap_b32 v{M}, v{M+4}', f'v_mov_b32 v{M+2}, v{M}', f'v_mov_b32 v{M+6}, v{M+4}',
              f'v_permlane32_swap_b32 v{M}, v{M+2}', f'v_permlane32_swap_b32 v{M+4}, v{M+6}']
        PB = 0
        OA = [VB+4, VB+2, VB+6, VB+0]
        for t in range(4):
            o += [f'v_pk_fma_f32 {vr(SP+4*t+2*hh,2)}, {vr(SP+4*t+2*hh,2)}, s[{sK}:{sK+1}], {vr(M+2*t,2)} op_sel_hi:[1,1,0]' for hh in range(2)]
        for t in range(4):
            o += [f'v_exp_f32 v{SP+4*t+r}, v{SP+4*t+r}' for r in range(4)]
            if t > 0:
                u = t-1
                o += [f'v_mfma_f32_16x16x16_bf16 {vr(SC+4*u,4)}, v[100:101], {vr(16+2*u,2)}, 0',
                      f'{MFMA} {vr(SP+4*u,4)}, {vr(OA[u],4)}, {vr(PB+4*u,4)}, 0']
            o += cv(16+2*t, SP+4*t)
            pp, pc = (PB+4*t, PB+4*t+2) if (t & 1) == 0 else (PB+4*t+2, PB+4*t)
            for hh in range(2):
                o += [f'v_bfi_b32 v{pp+hh}, v{MK+16+hh}, 0, v{16+2*t+hh}', f'v_and_b32 v{pc+hh}, v{MK+16+hh}, v{16+2*t+hh}']
        o += [f'v_rcp_f32 v{SC}, v{SC}', f'v_rcp_f32 v{SC+4}, v{SC+4}',
              f'v_mfma_f32_16x16x16_bf16 {vr(SC+12,4)}, v[100:101], {vr(22,2)}, 0',
              f'{MFMA} {vr(SP+12,4)}, {vr(OA[3],4)}, {vr(PB+12,4)}, 0']
        for t in range(4):
            if t == 2: o += [f'v_rcp_f32 v{SC+8}, v{SC+8}', f'v_rcp_f32 v{SC+12}, v{SC+12}']
            o += [f'v_mul_f32 v{SP+4*t+r}, v{SP+4*t+r}, v{SC+4*t}' for r in range(4)] if t < 2 else \
                 [f'v_pk_mul_f32 {vr(SP+4*t+2*hh,2)}, {vr(SP+4*t+2*hh,2)}, {vr(SC+4*t,2)} op_sel_hi:[1,0]' for hh in range(2)]
            o += cv(24+2*t, SP+4*t)
            if t & 1:
                b = 24+2*(t-1)
                o += [f'v_permlane16_swap_b32 v{b}, v{b+2}', f'v_permlane16_swap_b32 v{b+1}, v{b+3}',
                      (f'buffer_store_dwordx4 {vr(b,4)}, v{vSTO}, {srd(S_WS)}, s{sT2 if t==1 else sT3} offen sc1', 'ost')]
        return o

    def ks_setup(self, region, tile_stride, wave_stride, areg):
        o = [f's_mul_i32 s{sT0}, s{sW}, {wave_stride}', f's_add_u32 s{sT0}, s{sT0}, s{sCB}', f's_add_u32 s{sT0}, s{sT0}, {region}']
        for n in range(4):
            o += [f's_add_u32 s{sT1}, s{sW}, {n+1}', f's_and_b32 s{sT1}, s{sT1}, 3', f's_mul_i32 s{sN+n}, s{sT1}, {tile_stride}',
                  f's_add_u32 s{sN+n}, s{sN+n}, s{sT0}', f's_mul_i32 s{sT1}, s{sT1}, {3*4096}',
                  f'v_add_u32 v{areg+n}, s{sT1}, v{vL16}']
        return o

    def ksplit(self, nm, nsteps, wreg, breg, acc, part, areg, lead, latfill, extra_vm=(), last_oob=False, base=None, after2=()):
        p = self.p
        loads = []
        for n in range(4):
            for i in range(nsteps):
                l = []
                if i and i % 4 == 0: l.append(f's_add_u32 s{sN+n}, s{sN+n}, 4096')
                if last_oob and i == nsteps-1: l.append(f's_add_u32 s{sN+n}, s{sN+n}, s{sA0}')
                l.append(f'buffer_load_dwordx4 {rr(breg(n*nsteps+i),4)}, v{vL16}, {srd(S_WS)}, s{sN+n} offen offset:{(i%4)*1024} sc1')
                loads.append(l)
        loads += list(extra_vm)
        p.add(spread(loads[:lead], latfill, min(self.o.get('lead0', 4), lead-1)) if latfill else loads[:lead])
        li = lead
        rg = lambda n: [(L_RED+t*12288+4096*n, L_RED+t*12288+4096*n+4096) for t in range(4)]
        wr = lambda n: [(f'ds_write_b128 v{areg+n}, {vr(acc+16*n+4*ct,4)} offset:{L_RED+4096*n+1024*ct}', None, (rg(n), 'W', 0, f'{nm}{n}')) for ct in range(4)]
        rdp = lambda n, dst: [(f'ds_read_b128 {vr(dst+4*ct,4)}, v{areg+3} offset:{L_RED+4096*n+1024*ct}', None, (rg(n), 'R', 0, f'{nm}{n}')) for ct in range(4)]
        for n in range(4):
            ms = []
            if n == 3: loads += list(after2)
            for i in range(nsteps):
                g = []
                for ct in range(4):
                    a = acc+16*n+4*ct
                    c0 = vr(a, 4) if (i or n == 3) else '0'
                    g.append(f'{MFMA} {vr(a,4)}, {wreg(i,ct)}, {rr(breg(n*nsteps+i),4)}, {c0}')
                if li < len(loads):
                    g.insert(1, loads[li]); li += 1
                ms += g
            f = []
            if n >= 1: f += wr(n-1)
            if n == 2: f = f + [self.bar(), rdp(0, acc+48), rdp(1, part)]
            if n == 3:
                f = f + [self.bar(), rdp(2, part+16)]
                f2 = [f'v_add_f32 v{part+k}, v{part+k}, v{part+16+k}' for k in range(16)] + (base or [])
            if n == 3 and nsteps > 4:
                h = len(ms)//2
                p.add(spread(ms[:h], f, 4, h) + spread(ms[h:], f2, 8, len(ms)-h))
            elif n == 3:
                p.add(spread(ms, f, 4, len(ms)))
            else:
                p.add(spread(ms, f, 4, max(len(ms)-8, 12)))
        return loads[li:]

    def unpack8(self, dst, src):
        o = []
        for k in range(8):
            o += [f'v_lshlrev_b32 v{dst+2*k}, 16, v{src+k}', f'v_and_b32 v{dst+2*k+1}, 0xffff0000, v{src+k}']
        return o

    def build(self):
        p = self.p; O = self.o
        self.entry()
        p.add(self.stamp('karg'))
        p.save('head'); st = self.nst
        p('s_cbranch_scc1 L_NP')
        self.p0()
        p('s_branch L_J')
        p('L_NP:')
        p.restore('head'); self.nst = st
        p(f's_mov_b64 s[{S_WQ}:{S_WQ+1}], s[42:43]')
        tt = flat(self.touches('w0'))
        i0 = min([i for i, x in enumerate(tt) if isinstance(x, tuple) and srd(S_WQ) not in x[0]], default=len(tt))
        p.add(tt[:i0] + self.srds((S_WO, S_W1, S_W2, S_OUT, S_WS)) + tt[i0:])
        p.add(self.stamp('iss'))
        p('L_J:')
        p.add(self.stamp('join'))
        p.add(self.precompute())
        self.hello()
        p.add(self.stamp('pre'))
        p.add(self.ln())
        p.add(self.stamp('ln'))
        p(f's_mov_b32 s{sT1}, {WS_MOD}')
        p.add([WVM('T')])
        p.add(self.stamp('tback'))
        ml = [(48+4*i, sT1, 1024*i) for i in range(4)]
        c1, c2, c3 = O['c1'], O['c2'], O['c3']
        assert c1+c2+c3 == 9 and c1 >= 3 or True
        p.add(self.tagged_loads(ml))
        p.add(self.touches('c1'))
        for k in range(c1): p.add(self.dma_wq(k))
        self.tagged_check(ml)
        p.add(self.stamp('moda'))
        for v_, dst in ((1, 72), (0, 64)):
            for e in range(2):
                for m in range(2):
                    s_ = 48+8*v_+4*e+m; d = dst+4*e+2*m
                    p(f'v_lshlrev_b32 v{d}, 16, v{s_}'); p(f'v_and_b32 v{d+1}, 0xffff0000, v{s_}')
        for r in range(3):
            for m in range(4): p(f'v_pk_fma_f32 {vr(16+8*r+2*m,2)}, {vr(16+8*r+2*m,2)}, {vr(72+2*m,2)}, {vr(64+2*m,2)}')
            for m in range(4): p(f'v_cvt_pk_bf16_f32 v{4+4*r+m}, v{16+8*r+2*m}, v{17+8*r+2*m}')
            if r < 2: p(f'buffer_store_dwordx4 {vr(4+4*r,4)}, v{vHS}, {srd(S_WS)}, s{sHS0} offen offset:{2048*(r+1)-(2048 if r else 0)*0} sc1' if r == 0 else
                        f'buffer_store_dwordx4 {vr(4+4*r,4)}, v{vHS}, {srd(S_WS)}, s{sT0} offen sc1', 'hst')
            else: p(f'buffer_store_dwordx4 {vr(4+4*r,4)}, v{vHS+1}, {srd(S_WS)}, s{sHS1} offen sc1', 'hst')
            if r == 0: p(f's_add_u32 s{sT0}, s{sHS0}, 4096')
        p.add(self.touches('c2'))
        mk = self.masks()
        p.add(spread(mk, flat([self.dma_wq(k) for k in range(c1, c1+c2)])))
        p.add(self.publish(0, 'hst'))
        p.add(self.stamp('hpub'))
        p.add([WVM('wq2'), 's_barrier'])
        setup = [f's_mul_i32 s{sT2}, s{sW}, 5120', f's_add_u32 s{sT3}, s{sT2}, s{sCB}', f's_add_u32 s{sT3}, s{sT3}, {C_H}']
        p.add(spread(flat([self.absorb_wq(k) for k in range(3)]) + setup, flat([self.dma_wq(k) for k in range(c1+c2, c1+c2+c3)])))
        p.add(self.poll_issue(0, 48))
        p.add([WVM('wq5'), WLGA(), 's_barrier'])
        p.add(flat([self.absorb_wq(k) for k in range(3, 6)]))
        self.poll_check(0, 48)
        p.add(self.stamp('hflag'))
        p.add(self.flush())
        rest = flat([self.dma_wq(k) for k in range(c1+c2+c3, 9)])
        hq = self.dma_h(0) + rest + self.dma_h(1) + self.dma_h(2) + self.dma_h(3)
        nh = O.get('nh', 10) + len(rest)
        p.add(hq[:nh])
        p.add([WVM('h0'), WVM('wq8'), WLGA(), 's_barrier'])
        p.add(self.stamp('hready'))
        self.p1_gemm(hq[nh:])
        p.add(self.stamp('p1gemm'))
        p.add(self.bar())
        self.tail()
        p('L_END:')
        p('s_endpgm')
        return p.finalize()

    def tail(self):
        p = self.p; O = self.o
        nC, nP, natt = O['nC'], O['nP'], O['natt']
        att = self.attention()
        d = self.touches('att') + flat([self.dma_w1(k) for k in range(natt)])
        p.add(spread(att, d, 0, O.get('attend', 130)))
        p.add(self.stamp('attn'))
        self.epoch()
        ab = [f'v_add_u32 v128, 65536, v{vPB}', f'v_add_u32 v129, 65536, v{vPB+1}']
        for i in range(4):
            hi = WOA[i] >= 65536
            ab += [WVM(f'wo{i}')] + self.absorb_priv(WOA[i], 128 if hi else vPB, 65536 if hi else 0, ('a', 192+16*i), f'wo{i}')
        setup = self.ks_setup(C_O, 16384, 4096, 160)
        setup += [f's_lshr_b32 s{sT2}, s{sW}, 1', f's_lshl_b32 s{sT2}, s{sT2}, 10', f's_and_b32 s{sT0}, s{sW}, 1', f's_lshl3_add_u32 s{sT2}, s{sT0}, s{sT2}',
                  f's_add_u32 s{sT2}, s{sT2}, {L_MISC}', f'v_add_u32 v131, s{sT2}, v{vL16}',
                  f's_lshl_b32 s{sT0}, s{sJ}, 7', f's_add_u32 s{sT0}, s{sT0}, {L_MISC}', f'v_lshlrev_b32 v132, 4, v{vG}',
                  f'v_add_u32 v132, s{sT0}, v132'] + self.unpack8(144, 216)
        p.add(ab + setup)
        self.tagged_check([(208, sXB, 0), (212, sA0, 0)])
        p('ds_write_b64 v131, v[208:209]', None, MW('mod', L_MISC, 4096))
        p('ds_write_b64 v131, v[212:213] offset:2048', None, MW('mod', L_MISC, 4096))
        p.add(self.publish(1, 'ost'))
        p.add(self.stamp('pub1'))
        p.add(self.bar())
        k1 = natt + nC
        assert k1 <= 12
        GA, CB, GBP = 164, 180, 196
        mr = MR('mod', L_MISC, 4096)
        work = [(f'ds_read_b128 {vr(208+8*k+4*pp,4)}, v132 offset:{off+64*pp}', None, mr) for k, off in enumerate((0, 2048)) for pp in range(2)]
        work += [(f'ds_read_b128 {vr(GBP+4*pp,4)}, v132 offset:{3072+64*pp}', None, mr) for pp in range(2)]
        work += self.absorb_w1(range(natt), 128)
        d = self.touches('pub1') + flat([self.dma_w1(k) for k in range(natt, k1)]) + self.poll_issue(1, 133)
        p.add(spread(work, d, 0, int(len(work)*O.get('w1f', 0.7))))
        self.poll_check(1, 133)
        p.add(self.stamp('flag1'))
        lat = [[WVM(f'w1_{k1-1}'), WLGA(), 's_barrier']] + self.absorb_w1(range(natt, k1), 128) + self.unpack8(GA, 208) + self.unpack8(CB, 216)
        lat += [f's_lshl_b32 s{sT0}, s{sW}, 14', f's_lshl_b32 s{sT1}, s{sJ}, 11', f's_add_u32 s{sT0}, s{sT0}, s{sT1}',
                f's_add_u32 s{sT0}, s{sT0}, s{sCB}', f's_add_u32 s{sT2}, s{sT0}, {C_X1}',
                f's_lshl_b32 s{sT0}, s{sW}, 10', f's_lshr_b32 s{sT1}, s{sJ}, 1', f's_lshl_b32 s{sT1}, s{sT1}, 8', f's_add_u32 s{sT0}, s{sT0}, s{sT1}',
                f's_and_b32 s{sT1}, s{sJ}, 1', f's_lshl3_add_u32 s{sT0}, s{sT1}, s{sT0}',
                f's_add_u32 s{sT0}, s{sT0}, s{sCB}', f's_add_u32 s{sT3}, s{sT0}, {C_ST}',
                f'v_lshrrev_b32 v204, 1, v{vG}', f'v_lshlrev_b32 v204, 2, v204', f'v_lshl_add_u32 v204, v{vC}, 4, v204',
                'v_mov_b32 v206, 0', 'v_mov_b32 v207, 0']
        k2 = min(k1 + nP, 16)
        ex = self.touches('p2') + flat([self.dma_w1(k) for k in range(k1, min(k2, 15))])
        ex2 = self.dma_w1(15) if k2 == 16 else []
        left = self.ksplit('ra', 4, lambda i, ct: ar(192+16*i+4*ct, 4), lambda k: ('v', 4*k), 64, 0, 160, O.get('lead2', 10), lat, ex, after2=ex2)
        p.add(self.stamp('p2gemm'))
        Y = 112; X1 = 216
        ep = [f'v_pk_add_f32 {vr(2*k,2)}, {vr(2*k,2)}, {vr(16+2*k,2)}' for k in range(8)]
        ep += [f'v_pk_add_f32 {vr(Y+2*k,2)}, {vr(Y+2*k,2)}, {vr(2*k,2)}' for k in range(8)]
        ep += [f'v_pk_fma_f32 {vr(Y+2*k,2)}, {vr(Y+2*k,2)}, {vr(GA+2*k,2)}, {vr(144+2*k,2)}' for k in range(8)]
        ep += [f'v_cvt_pk_bf16_f32 v{X1+k}, v{Y+2*k}, v{Y+2*k+1}' for k in range(8)]
        ep += [f'v_pk_mul_f32 {vr(Y+2*k,2)}, {vr(Y+2*k,2)}, {vr(CB+2*k,2)}' for k in range(8)]
        for pp in range(2):
            ep += [f'v_cvt_pk_bf16_f32 v{32+k}, v{Y+2*k}, v{Y+2*k+1}' for k in range(4*pp, 4*pp+4)]
            ep.append((f'buffer_store_dwordx4 {vr(32+4*pp,4)}, v{vL16}, {srd(S_WS)}, s{sT2} offen offset:{1024*pp} sc1', 'xst'))
        for k in range(8):
            ep += [f'v_dot2c_f32_bf16 v206, s{sONES}, v{X1+k}', f'v_dot2c_f32_bf16 v207, v{X1+k}, v{X1+k}']
        ep += ['v_permlane32_swap_b32 v206, v207', 'v_add_f32 v206, v206, v207', 'v_mov_b32 v207, v206',
               'v_permlane16_swap_b32 v206, v207', 'v_add_f32 v206, v206, v207',
               (f'buffer_store_dword v206, v204, {srd(S_WS)}, s{sT3} offen sc1', 'xst')]
        p.add(spread(ep, left, 0, 40) if left else ep)
        U, V = 128, 140
        uvr = [f'v_and_b32 v204, 8, v{vC}', f'v_lshlrev_b32 v204, 7, v204', f'v_sub_u32 v204, {L_MISC+2048}, v204',
               f'v_lshl_add_u32 v204, v{vG}, 4, v204'] + [(f'ds_read_b128 {vr(48+4*s,4)}, v204 offset:{64*s}', None, mr) for s in range(16)]
        uvm = lambda ss: [f'{MFMA} {vr(U+4*m,4)}, {ar(s*12+4*m,4)}, {vr(48+4*s,4)}, {"0" if s==0 else vr(U+4*m,4)}' for s in ss for m in range(3)]
        setup2 = [f's_mul_i32 s{sD0}, s{sW}, {11*32768}', f's_lshl_b32 s{sT1}, s{sJ}, 7', f's_add_u32 s{sD0}, s{sD0}, s{sT1}',
                  f'v_add_u32 v{vPB}, {L_W2}, v{vPB}', f'v_add_u32 v{vPB+1}, {L_W2}, v{vPB+1}',
                  f's_lshl_b32 s{sT2}, s{sW}, 14', f's_add_u32 s{sT3}, s{sT2}, s{sCB}', f's_add_u32 s{sT3}, s{sT3}, {C_X1}',
                  [f's_cmp_ge_u32 s{sW}, 2', f's_cselect_b32 s{sT1}, {X1T[2]-32768}, 0'], f's_add_u32 s{sT2}, s{sT2}, s{sT1}',
                  f's_add_u32 s{sA0}, s{sCB}, {C_ST}', f'v_add_u32 v168, {X1T[2]}, v{vL16}']
        late = list(range(k2, 16))
        dl = flat([self.dma_w1(k) for k in late])
        nu = O.get('nu', 8)
        p.add(uvr)
        p.add(spread(uvm(range(0, min(nu, k1))), dl + setup2))
        p.add(self.publish(2, 'xst'))
        p.add(self.stamp('pub2'))
        p.add([WVM('w1_15')] + self.bar())
        w2reg = lambda i: ('a', 192+16*i) if i < 4 else ('a', 16*(i-4))
        dw2 = lambda i: self.dma_priv(S_W2, sD0, L_W2+16384*(i % 4), f'w2_{i}')
        aw2 = lambda i: [WVM(f'w2_{i}')] + self.absorb_priv(L_W2+16384*(i % 4), vPB, L_W2, w2reg(i), f'w2_{i}')
        n2 = O.get('n2', 2)
        d = flat([dw2(i) for i in range(n2)]) + self.poll_issue(2, 169)
        work = self.absorb_w1(range(k1, 16), 0) + uvm(range(min(nu, k1), k1)) + [self.bar()] + uvm(range(k1, 16))
        p.add(spread(work, d, 0, int(len(work)*O.get('w2f', 0.6))))
        self.poll_check(2, 169)
        p.add(self.stamp('flag2'))
        p.add(self.flush())
        STT = 152; TT = 80; FR = 48
        xl = []
        for s in range(16):
            l = []
            if s % 4 == 0:
                if s: l.append(f's_add_u32 s{sT3}, s{sT3}, 4096')
                l.append(f's_add_u32 m0, s{sT2}, {1024*s}')
            l.append((f'buffer_load_dwordx4 v{vL16}, {srd(S_WS)}, s{sT3} offen offset:{1024*(s%4)} sc1 lds', f'x1_{s}',
                      ([(X1T[t]+1024*s, X1T[t]+1024*s+1024) for t in range(4)], 'W', 0, f'x1_{s}')))
            xl.append(l)
        stl = [f'buffer_load_dwordx4 {vr(STT+4*t,4)}, v{vL16}, {srd(S_WS)}, s{sA0} offen offset:{1024*t} sc1' for t in range(4)]
        hs = [[f's_cmp_ge_u32 s{sJ}, 3', f's_cselect_b32 s{sT1}, 3, 99'], f's_mul_i32 s{sT0}, s{sW}, {3*512}',
              f's_lshl_b32 s{sN}, s{sU0}, 10', f's_add_u32 s{sT0}, s{sT0}, s{sN}', f's_add_u32 s{sT0}, s{sT0}, s{sCB}',
              f's_add_u32 s{sN}, s{sT0}, {C_H}', [f's_cmp_eq_u32 s{sW}, s{sT1}', f's_cselect_b32 s{sN+1}, {OOB}, s{sN}'],
              f's_add_u32 s{sN+2}, s{sN}, {2*H_TILE}', f's_add_u32 s{sN+3}, s{sN+1}, {2*H_TILE}']
        uvfix = [f'v_mov_b32 v{V+k}, v{U+k}' for k in range(12)]
        uvfix += [f'v_mov_b32_dpp v{V+k}, v{U+k} row_ror:8 row_mask:0xf bank_mask:0x3' for k in range(12)]
        uvfix += [f'v_mov_b32_dpp v{U+k}, v{U+k} row_ror:8 row_mask:0xf bank_mask:0xc' for k in range(12)]
        p.add(spread(xl[:8], flat([aw2(i) for i in range(n2)]) + hs + uvfix, 3))
        def rd(t, s): return (f'ds_read_b128 {vr(FR+16*(s&1)+4*t,4)}, v{vL16 if t < 2 else 168} offset:{(t&1)*16384+s*1024}', f'f3{s}',
                              MR(f'x1_{s}', X1T[t]+1024*s, 1024))
        st = []
        for t in range(4):
            st += [f'v_add_f32 v{STT+4*t}, v{STT+4*t}, v{STT+4*t+2}', f'v_add_f32 v{STT+4*t+1}, v{STT+4*t+1}, v{STT+4*t+3}']
        a, b = STT, STT+1
        st += [f'v_permlane32_swap_b32 v{a}, v{a+4}', f'v_permlane32_swap_b32 v{b}, v{b+4}',
               f'v_permlane32_swap_b32 v{a+8}, v{a+12}', f'v_permlane32_swap_b32 v{b+8}, v{b+12}',
               f'v_add_f32 v{a}, v{a}, v{a+4}', f'v_add_f32 v{b}, v{b}, v{b+4}',
               f'v_add_f32 v{a+8}, v{a+8}, v{a+12}', f'v_add_f32 v{b+8}, v{b+8}, v{b+12}',
               f'v_permlane16_swap_b32 v{a}, v{a+8}', f'v_permlane16_swap_b32 v{b}, v{b+8}',
               f'v_add_f32 v{a}, v{a}, v{a+8}', f'v_add_f32 v{b}, v{b}, v{b+8}',
               f'v_mul_f32 v{a}, 0x3b000000, v{a}', f'v_mul_f32 v{b}, 0x3b000000, v{b}',
               f'v_fma_f32 v{b}, -v{a}, v{a}, v{b}', f'v_max_f32 v{b}, 0, v{b}', f'v_add_f32 v{b}, 0x3727c5ac, v{b}',
               f'v_rsq_f32 v{b}, v{b}', f'v_mul_f32_e64 v{a}, -v{a}, v{b}',
               f'v_mov_b32 v{b+8}, v{b}', f'v_mov_b32 v{a+8}, v{a}',
               f'v_permlane16_swap_b32 v{b}, v{b+8}', f'v_permlane16_swap_b32 v{a}, v{a+8}',
               f'v_mov_b32 v{b+4}, v{b}', f'v_mov_b32 v{b+12}, v{b+8}', f'v_mov_b32 v{a+4}, v{a}', f'v_mov_b32 v{a+12}, v{a+8}',
               f'v_permlane32_swap_b32 v{b}, v{b+4}', f'v_permlane32_swap_b32 v{b+8}, v{b+12}',
               f'v_permlane32_swap_b32 v{a}, v{a+4}', f'v_permlane32_swap_b32 v{a+8}, v{a+12}']
        for t in range(4):
            for k in range(12): st.append(f'v_fma_f32 v{TT+12*t+k}, v{STT+4*t}, v{U+k}, v{V+k}')
        p.add([WVM('x1_1'), 's_barrier'])
        p.add([rd(t, 0) for t in range(4)])
        head = [[] for _ in range(16)]; tl = [[] for _ in range(16)]
        tl[0] += xl[8:11]; tl[1] += xl[11:14]; tl[2] += xl[14:16] + stl[:1]; tl[3] += stl[1:]
        head[1] += [[WVM('x1_5'), 's_barrier']]
        head[5] += [[WVM('x1_15'), 's_barrier']]
        rem = list(range(n2, 11))
        dstep = {i: 4 + (k*11)//len(rem) for k, i in enumerate(rem)}
        astep = {i: dstep[i]+4 for i in rem if dstep[i]+4 <= 15}
        for i in rem:
            if i >= 4 and i-4 in astep: astep[i-4] = min(astep[i-4], dstep[i]-1)
        for i, s in astep.items():
            assert i < 4 or 16*(i-4)+15 < 12*s, (i, s)
            tl[s] += aw2(i)
        for i, s in dstep.items():
            if i >= 4: tl[s] += [WLG(f'aw2_{i-4}')]
            tl[s] += dw2(i)
        ns = len(st)
        sts = [6, 7, 7, 11, 11, 14, 15, 15]
        for k, s in enumerate(sts): tl[s] += st[k*ns//len(sts):(k+1)*ns//len(sts)]
        for s in range(16):
            ms = [f'{MFMA} {vr(12*t+4*m,4)}, {ar(s*12+4*m,4)}, {vr(FR+16*(s&1)+4*t,4)}, {"0" if s==0 else vr(12*t+4*m,4)}'
                  for t in range(4) for m in range(3)]
            f = head[s] + ([rd(t, s+1) for t in range(4)] if s < 15 else []) + tl[s]
            if s: p.add([WLG(f'f3{s}')])
            p.add(spread(ms, f, 0, 12))
        p.add(self.stamp('p3gemm'))
        for pr in range(2):
            for m in range(3):
                b = FR+12*pr+4*m
                for tt in range(2):
                    t = 2*pr+tt; a = 12*t+4*m
                    for hh in range(2):
                        p(f'v_pk_fma_f32 {vr(a+2*hh,2)}, {vr(a+2*hh,2)}, {vr(STT+4*t,2)}, {vr(TT+a+2*hh,2)} op_sel:[0,1,0] op_sel_hi:[1,1,1]')
                    for hh in range(2):
                        p(f'v_cvt_pk_bf16_f32 v{b+2*tt+hh}, v{a+2*hh}, v{a+2*hh+1}')
                for k in (0, 2, 1, 3): p(f'v_pk_max_i16 v{b+k}, v{b+k}, 0')
                p(f'v_permlane16_swap_b32 v{b}, v{b+2}')
                p(f'v_permlane16_swap_b32 v{b+1}, v{b+3}')
                p(f'buffer_store_dwordx4 {vr(b,4)}, v{vSTH}, {srd(S_WS)}, s{sN+2*pr+(1 if m else 0)} offen offset:{512*m} sc1', 'hdst')
        p.add(flat([aw2(i) for i in rem if i not in astep]))
        p.add(self.ks_setup(C_H, H_TILE, 11*1024, 160))
        p(f's_cmp_eq_u32 s{sW}, 3')
        p(f's_cselect_b32 s{sA0}, {OOB}, 0')
        p.add(self.unpack8(GA, GBP) + self.unpack8(CB, X1))
        p.add(self.publish(3, 'hdst'))
        p.add(self.stamp('pub3'))
        p.add(self.bar())
        p.add(self.poll_issue(3, 0))
        self.poll_check(3, 0)
        p.add(self.stamp('flag3'))
        w2op = lambda i, ct: rr(w2reg(i), 4, 4*ct)
        base = [f'v_fma_f32 v{CB+k}, v{64+k}, v{GA+k}, v{CB+k}' for k in range(16)]
        self.ksplit('rb', 11, w2op, lambda k: ('a', 112+4*(k % 20)), 0, 64, 160, O.get('lead4', 9), [], last_oob=True, base=base)
        p.add(self.stamp('p4gemm'))
        Y = 48
        for pp in range(2):
            for k in range(4*pp, 4*pp+4): p(f'v_pk_fma_f32 {vr(Y+2*k,2)}, {vr(Y+2*k,2)}, {vr(GA+2*k,2)}, {vr(CB+2*k,2)}')
            for k in range(4*pp, 4*pp+4): p(f'v_cvt_pk_bf16_f32 v{96+k}, v{Y+2*k}, v{Y+2*k+1}')
            p(f'buffer_store_dwordx4 {vr(96+4*pp,4)}, v{vXO}, {srd(S_OUT)}, s{sXO} offen offset:{64*pp}')
        self.finish()

    def epoch(self):
        p = self.p
        LE, LL, LD = p.label('L_EP'), p.label('L_EPL'), p.label('L_EPD')
        def chk():
            for k in range(4): p(f'v_xor_b32 v{176+k}, s{sTAG}, v{176+k}')
            p('v_or3_b32 v176, v176, v177, v178')
            p('v_or_b32 v176, v176, v179')
            p('v_cmp_ne_u32 vcc, 0, v176')
            p(f's_cbranch_vccz {LD}')
        p(f's_cmp_lg_u32 s{sGW}, 1')
        p(f's_cbranch_scc1 {LE}')
        p.cond_begin()
        chk()
        p(f's_mov_b32 s{sSPIN}, 20000')
        p(f'{LL}:')
        p(f'buffer_load_dwordx4 v[176:179], v{vL16}, {srd(S_WS)}, 0 offen offset:{WS_HELLO} sc1')
        p('s_waitcnt vmcnt(0)')
        chk()
        p(f's_sub_u32 s{sSPIN}, s{sSPIN}, 1')
        p(f's_cbranch_scc0 {LL}')
        p(f'{LD}:')
        p('s_mov_b64 exec, 1')
        p(f'buffer_store_dword v{vTAG}, v{vL16}, {srd(S_WS)}, 0 offen sc1')
        p('s_mov_b64 exec, -1')
        p.cond_end()
        p(f'{LE}:')

    def finish(self):
        p = self.p
        hs = self.o.get('hs')
        if hs:
            p.add([WVMA()])
            p.add(self.stamp('end'))
            p('s_waitcnt lgkmcnt(0)')
            hw = self.o.get('hw', 532)
            if hw >= 0:
                p(f's_cmp_lg_u32 s{sGW}, {hw}')
                p('s_cbranch_scc1 L_END')
            if hs == 'none': p(f's_mov_b32 s{sT0}, 0')
            elif hs[0] == 'R':
                p(f's_sub_u32 s{sT0}, s{STAMP0+2}, s{STAMP0+4}')
                p(f's_lshl_b32 s{sT0}, s{sT0}, 1')
            else:
                p(f's_sub_u32 s{sT0}, s{STAMP0+2}, s{STAMP0}')
                p(f's_lshr_b32 s{sT0}, s{sT0}, 3')
            p(f's_min_u32 s{sT0}, s{sT0}, 20000')
            p(f's_add_u32 s{sT0}, s{sT0}, 3000')
            p(f's_mov_b32 s{sSPIN}, 200000')
            p('L_HS:')
            p(f's_memrealtime s[{STAMP0+6}:{STAMP0+7}]')
            p('s_waitcnt lgkmcnt(0)')
            p(f's_sub_u32 s{sT1}, s{STAMP0+6}, s{STAMP0+4}')
            p(f's_cmp_ge_u32 s{sT1}, s{sT0}')
            p('s_cbranch_scc1 L_END')
            p(f's_sub_u32 s{sSPIN}, s{sSPIN}, 1')
            p('s_cbranch_scc0 L_HS')
            return
        if self.diag:
            p.add([WVMA()])
            p.add(self.stamp('end'))
            p.add(self.flush())
            p(f's_lshl_b32 s{sT0}, s{sGW}, 8')
            p(f's_add_u32 s{sT0}, s{sT0}, {WS_DIAG}')
            p(f'v_lshlrev_b32 v1, 2, v{vLANE}')
            p(f'buffer_store_dword v{vDIAG}, v1, {srd(S_WS)}, s{sT0} offen')


HEADER = open(os.path.join(os.path.dirname(os.path.abspath(__file__)), '..', 'cdna_kernels',
              'adaLN_cond__sliding_local_dilated__dense_activation_relu__prompt.s.ref')).read()

def emit(diag=False, hdiag=None, **opt):
    g = Gen(diag or bool(hdiag), hdiag, **opt)
    ins = g.build()
    head = HEADER.split(KNAME + ':')[0].replace('grid=(4096,1,1) block=(256,1,1) lds=0', 'grid=(256,1,1) block=(256,1,1) lds=163840')
    tail = HEADER.split('s_endpgm\n')[1].replace('next_free_vgpr 256', 'next_free_vgpr 512')
    body = '\n'.join(('' if i.is_label else '    ') + i.text for i in ins)
    txt = head + KNAME + ':\n' + body + '\n' + tail
    txt += '\n'
    if g.diag: txt += '\n; STAMPS ' + ' '.join(g.stamp_names) + '\n'
    return txt

if __name__ == '__main__':
    import argparse
    ap = argparse.ArgumentParser()
    ap.add_argument('out'); ap.add_argument('--diag', action='store_true'); ap.add_argument('--hdiag')
    ap.add_argument('-o', action='append', default=[])
    a = ap.parse_args()
    opt = {}
    for kv in a.o:
        k, v = kv.split('=')
        try: opt[k] = float(v) if '.' in v else int(v)
        except ValueError: opt[k] = v
    open(a.out, 'w').write(emit(a.diag, a.hdiag.split(',') if a.hdiag else None, **opt))
```
